```python
import torch

def _softmax(x, axis=-1):
    return torch.softmax(x, dim=axis)
def _gelu(x):
    return torch.nn.functional.gelu(x, approximate="tanh")
def _silu(x):
    return torch.nn.functional.silu(x)
def _sigmoid(x):
    return torch.sigmoid(x)
def _layernorm(x, axis=-1, eps=1e-5):
    m = x.mean(dim=axis, keepdim=True)
    v = x.var(dim=axis, keepdim=True, unbiased=False)
    return (x - m) / torch.sqrt(v + eps)
def _scatter_add(tgt, idx, src, axis=0):
    return tgt.clone().index_add_(axis, idx, src)
def _segment_sum(src, seg, n):
    out = torch.zeros((n,) + src.shape[1:], dtype=src.dtype)
    return out.index_add_(0, seg, src)
def _pad(x, pw):
    flat = tuple(v for pair in reversed(pw) for v in pair)
    return torch.nn.functional.pad(x, flat)

kernel_name = 'gated_mix__ssm_conv_s5__glu_gated_geglu__prompt'

def setup_inputs():

    _w = (lambda a: (lambda t: t.to(torch.bfloat16) if t.is_floating_point() else t)(torch.as_tensor(a)))
    def _A_setup():
        B, S, D = 1, 2048, 1024
        P = D
        Lambda_re = -0.5 * (lambda _x: torch.exp(torch.as_tensor(_x)))((lambda *s: torch.randn(*s, dtype=torch.bfloat16) * 0.4)(P))
        Lambda_im = (lambda *s: torch.randn(*s, dtype=torch.bfloat16) * 0.8)(P) * 1.0
        B_re = (lambda *s: torch.randn(*s, dtype=torch.bfloat16) * 0.4)(P, D) * (D ** -0.5)
        B_im = (lambda *s: torch.randn(*s, dtype=torch.bfloat16) * 0.4)(P, D) * (D ** -0.5)
        C_re = (lambda *s: torch.randn(*s, dtype=torch.bfloat16) * 0.4)(D, P) * (P ** -0.5)
        C_im = (lambda *s: torch.randn(*s, dtype=torch.bfloat16) * 0.4)(D, P) * (P ** -0.5)
        log_dt = (lambda *s: torch.randn(*s, dtype=torch.bfloat16) * 0.4)(P) * 0.3 - 2.0
        Dskip = (lambda *s: torch.randn(*s, dtype=torch.bfloat16) * 0.1)(D)
        return {
            "x": _w((lambda *s: torch.randn(*s, dtype=torch.bfloat16) * 0.05)(B, S, D)),
            "Lambda_re": _w(Lambda_re),
            "Lambda_im": _w(Lambda_im),
            "B_re": _w(B_re),
            "B_im": _w(B_im),
            "C_re": _w(C_re),
            "C_im": _w(C_im),
            "log_dt": _w(log_dt),
            "Dskip": _w(Dskip),
        }
    _A_in = _A_setup()

    def _B_setup():
        B, S, Dm, Df = 1, 2048, 1024, 3584
        return {
            "x": _w((lambda *s: torch.randn(*s, dtype=torch.bfloat16) * 0.05)(B, S, Dm)),
            "w_gate": _w((lambda *s: torch.randn(*s, dtype=torch.bfloat16) * 3.2)(Dm, Df) * (Dm ** -0.5)),
            "w_up": _w((lambda *s: torch.randn(*s, dtype=torch.bfloat16) * 3.2)(Dm, Df) * (Dm ** -0.5)),
            "w_down": _w((lambda *s: torch.randn(*s, dtype=torch.bfloat16) * 3.2)(Df, Dm) * (Df ** -0.5)),
        }
    _B_in = _B_setup()

    return {
        "A_x": _A_in["x"],
        "A_Lambda_re": _A_in["Lambda_re"],
        "A_Lambda_im": _A_in["Lambda_im"],
        "A_B_re": _A_in["B_re"],
        "A_B_im": _A_in["B_im"],
        "A_C_re": _A_in["C_re"],
        "A_C_im": _A_in["C_im"],
        "A_log_dt": _A_in["log_dt"],
        "A_Dskip": _A_in["Dskip"],
        "B_x": _B_in["x"],
        "B_w_gate": _B_in["w_gate"],
        "B_w_up": _B_in["w_up"],
        "B_w_down": _B_in["w_down"],
        "gate_w": _w((lambda *s: torch.randn(*s, dtype=torch.bfloat16) * 0.05)(1024) * 16.0),
    }

def reference(A_x, A_Lambda_re, A_Lambda_im, A_B_re, A_B_im, A_C_re, A_C_im, A_log_dt, A_Dskip, B_x, B_w_gate, B_w_up, B_w_down, gate_w):
    def _A_ref(x, Lambda_re, Lambda_im, B_re, B_im, C_re, C_im, log_dt, Dskip):
        Bsz, L, H = x.shape
        Lam = Lambda_re + 1j * Lambda_im
        Bmat = B_re + 1j * B_im
        Cmat = C_re + 1j * C_im
        dt = torch.exp(log_dt)
        Lam_bar = torch.exp(dt * Lam)
        B_bar = ((Lam_bar - 1.0) / Lam)[:, None] * Bmat
        Bu = torch.einsum("bld,pd->blp", x + 0j, B_bar)
        h = torch.zeros_like(Bu[:, 0, :])
        hs = []
        for t in range(L):
            h = Lam_bar[None, :] * h + Bu[:, t, :]
            hs.append(h)
        hseq = torch.stack(hs, 1)
        y = 2.0 * torch.einsum("blp,dp->bld", hseq, Cmat).real + x * Dskip[None, None, :]
        return y

    def _B_ref(x, w_gate, w_up, w_down):
        g = torch.einsum("bsd,df->bsf", x, w_gate)
        u = torch.einsum("bsd,df->bsf", x, w_up)
        h = _gelu(g) * u
        return torch.einsum("bsf,fd->bsd", h, w_down)

    x = A_x
    g = _sigmoid((x * gate_w).sum(-1, keepdims=True))
    a = _A_ref(x, A_Lambda_re, A_Lambda_im, A_B_re, A_B_im, A_C_re, A_C_im, A_log_dt, A_Dskip)
    b = _B_ref(x, B_w_gate, B_w_up, B_w_down)
    return g * a + (1 - g) * b
```

```python
import re

class Em:
    def __init__(self):
        self.L = []
        self.q = []
        self.t = 0
        self.age = 8
    def I(self, text):
        for ln in text.split("\n"):
            ln = ln.strip()
            if not ln: continue
            self.L.append(ln)
            if ln.startswith("v_mfma"): self.t += 1
    __call__ = I
    def _wait(self, k):
        while k + 1 < len(self.q) and self.q[k + 1][1] <= self.t - self.age: k += 1
        self.L.append(f"s_waitcnt lgkmcnt({len(self.q)-1-k})"); self.q = self.q[k + 1:]
    def ds(self, text, tag=None):
        if len(self.q) >= 15: self._wait(0)
        self.L.append(text); self.q.append((tag, self.t))
    def need(self, tags):
        idx = [i for i, (t, _) in enumerate(self.q) if t in tags]
        if idx: self._wait(max(idx))
    def drain(self, extra=""):
        self.L.append(f"s_waitcnt lgkmcnt(0) {extra}".strip()); self.q = []
    def text(self): return "\n".join(self.L) + "\n"

def vr(base, n=1, k="v"):
    return f"{k}{base}" if n == 1 else f"{k}[{base}:{base+n-1}]"
def ar(base, n=1): return vr(base, n, "a")
def sr(base, n=1): return vr(base, n, "s")

_reg = re.compile(r"(?<![\w.])(-|abs\()?([vas])(?:(\d+)|\[(\d+):(\d+)\])")
def regs(op):
    out = set()
    for m in _reg.finditer(op):
        k = m.group(2)
        if m.group(3) is not None: out.add((k, int(m.group(3))))
        else: out.update((k, r) for r in range(int(m.group(4)), int(m.group(5)) + 1))
    if re.search(r"\bvcc\b", op): out.add(("s", "vcc"))
    if re.search(r"\bm0\b", op): out.add(("s", "m0"))
    if re.search(r"\bexec\b", op): out.add(("s", "exec"))
    return out
TRANS = ("v_exp_f32", "v_log_f32", "v_rcp_f32", "v_rsq_f32", "v_sqrt_f32", "v_sin_f32", "v_cos_f32")
def parse(ln):
    ln = ln.split(";")[0].strip()
    if not ln or ln.endswith(":") or ln.startswith("."): return None
    parts = ln.split(None, 1); mn = parts[0]; rest = parts[1] if len(parts) > 1 else ""
    ops = [o.strip() for o in re.split(r",(?![^\[]*\])", rest)] if rest else []
    d = dict(mn=mn, ln=ln, w=set(), r=set(), cls="other", ws=1, srcA=set(), srcC=set(), data=set())
    if mn == "s_nop": d["ws"] = int(ops[0], 0) + 1; d["cls"] = "nop"; return d
    if mn.startswith("v_mfma"):
        d["cls"] = "mfma"; d["w"] = regs(ops[0]); d["srcA"] = regs(ops[1]) | regs(ops[2]); d["srcC"] = regs(ops[3].split()[0])
        d["r"] = d["srcA"] | d["srcC"]; d["passes"] = 8 if "32x32" in mn else 4
    elif mn.startswith("v_"):
        d["cls"] = "valu"
        nd = 1
        if mn.startswith(("v_add_co", "v_sub_co", "v_addc_co", "v_subb_co")): nd = 2
        for o in ops[:nd]: d["w"] |= regs(o)
        for o in ops[nd:]: d["r"] |= regs(o)
        if mn.startswith(("v_fmac", "v_pk_fmac", "v_dot2c", "v_writelane")): d["r"] |= d["w"]
        if mn.startswith("v_permlane") and "swap" in mn:
            d["w"] = regs(ops[0]) | regs(ops[1]); d["r"] = set(d["w"]); d["perm"] = True
        if "_dpp" in mn or "row_" in rest or "quad_perm" in rest: d["dpp"] = True
        if mn.startswith(TRANS): d["trans"] = True
        if mn.startswith("v_cndmask") and len(ops) == 3: d["r"].add(("s", "vcc"))
    elif mn.startswith(("buffer_", "global_")):
        d["cls"] = "vmem"
        if mn in ("buffer_wbl2", "buffer_inv"): return d
        st = "store" in mn or "atomic" in mn
        lds = re.search(r"\blds\b", rest) is not None or "load_lds" in mn
        if lds:
            for o in ops: d["r"] |= regs(o)
            d["r"].add(("s", "m0")); d["ldsdma"] = True
        elif mn.startswith("buffer_"):
            if st:
                d["data"] = regs(ops[0])
                for o in ops: d["r"] |= regs(o)
                if "atomic" in mn and re.search(r"\bsc0\b", rest): d["w"] = regs(ops[0])
            else:
                d["w"] = regs(ops[0])
                for o in ops[1:]: d["r"] |= regs(o)
        else:
            if st and not ("atomic" in mn and re.search(r"\bsc0\b", rest)):
                d["data"] = regs(ops[1])
                for o in ops: d["r"] |= regs(o)
            else:
                d["w"] = regs(ops[0])
                for o in ops[1:]: d["r"] |= regs(o)
        d["wide"] = st and ("x4" in mn or "x3" in mn)
    elif mn.startswith("ds_"):
        d["cls"] = "ds"
        if "read" in mn or "permute" in mn or "swizzle" in mn:
            d["w"] = regs(ops[0])
            for o in ops[1:]: d["r"] |= regs(o)
        else:
            for o in ops: d["r"] |= regs(o)
    elif mn.startswith("s_"):
        d["cls"] = "salu"
        if mn.startswith(("s_cmp", "s_cbranch", "s_branch", "s_waitcnt", "s_barrier", "s_endpgm", "s_sleep", "s_setprio")):
            for o in ops: d["r"] |= regs(o)
        else:
            d["w"] = regs(ops[0]) if ops else set()
            for o in ops[1:]: d["r"] |= regs(o)
            if "saveexec" in mn: d["w"].add(("s", "exec"))
    return d

def check(lines, name=""):
    ins = [p for p in (parse(l) for l in lines) if p]
    errs = []
    for i, c in enumerate(ins):
        dist = 0
        for j in range(i - 1, max(-1, i - 24), -1):
            p = ins[j]
            need = 0; why = ""
            def ov(a, b): return a & b
            vg = lambda s: {x for x in s if x[0] in "va"}
            sg = lambda s: {x for x in s if x[0] == "s"}
            if p["cls"] == "valu":
                if c["cls"] == "mfma" and ov(vg(p["w"]), c["r"]): need, why = 2, "valu->mfma"
                if c["cls"] == "valu" and c.get("perm") and ov(vg(p["w"]), c["r"]): need, why = 2, "valu->permlane"
                if c["cls"] == "valu" and c.get("dpp") and ov(vg(p["w"]), c["r"]): need, why = 2, "valu->dpp"
                if c["cls"] == "valu" and c["mn"].startswith(("v_readlane", "v_readfirstlane")) and ov(vg(p["w"]), c["r"]): need, why = max(need, 1), "valu->readlane"
                if p.get("trans") and c["cls"] in ("valu",) and not c.get("trans") and ov(vg(p["w"]), c["r"]): need, why = max(need, 1), "trans->valu"
                if p.get("trans") and c["cls"] in ("vmem", "ds") and ov(vg(p["w"]), c["r"]): need, why = max(need, 1), "trans->mem"
                if c["cls"] == "vmem" and ov(sg(p["w"]), c["r"]): need, why = 5, "valu sgpr->vmem"
                if c["cls"] == "valu" and ov(sg(p["w"]), c["r"]): need, why = max(need, 4 if c["mn"].startswith(("v_readlane", "v_writelane")) else 2), "valu sgpr->valu"
                if c["cls"] == "salu" and ov(sg(p["w"]), c["r"]): need, why = max(need, 1), "valu sgpr->salu(pad)"
            if p["cls"] == "mfma":
                ps = p["passes"]; full = {4: 8, 8: 12}[ps]
                if c["cls"] == "mfma":
                    if ov(p["w"], c["srcA"]): need, why = full, "mfma D->mfma A/B"
                    elif ov(p["w"], c["srcC"]) and (p["w"] != c["srcC"] or c["passes"] != ps): need, why = {4: 6, 8: 10}[ps], "mfma D->overlapping C"
                elif c["cls"] in ("valu", "vmem", "ds") and ov(p["w"], c["r"] | c["w"]): need, why = full, "mfma D->" + c["cls"]
                if c["cls"] == "valu" and ov(p["srcC"], c["w"]): need, why = max(need, {4: 3, 8: 7}[ps]), why or "mfma C WAR"
            if p["cls"] == "vmem" and p.get("wide") and ov(p["data"], c["w"]):
                need, why = (2 if c["cls"] in ("valu", "mfma") else 1), "wide store WAR"
            if p["cls"] == "salu" and ("s", "m0") in p["w"] and c.get("ldsdma"): need, why = 1, "m0->ldsdma"
            if p["cls"] == "salu" and ("s", "exec") in p["w"] and False: pass
            if need > dist: errs.append(f"{name}: {why} needs {need} has {dist}: [{p['ln']}] -> [{c['ln']}]")
            dist += p["ws"]
            if dist >= 20: break
    return errs

_lit = re.compile(r"(?<![\w\[:])(0x[0-9a-fA-F]+|-?\d+\.\d+(?:e-?\d+)?|-?\d+)(?![\w\]:])")
```

```python
from asmlib import *
ACT_OFF = 4096
G_OFF   = 0x1700000
AGG_OFF = G_OFF + 0x4000
FLG_OFF = AGG_OFF + 0x10000
XCH_OFF = 0x1800000
WS_SIZE = 0x3800000
LOG2E = 1.4426950408889634
import struct
def f2u(x): return struct.unpack("<I", struct.pack("<f", x))[0]
def hexf(x): return f"0x{f2u(x):08x}"
def srd(E, d, lo, size):
    E(f"s_mov_b32 s{d}, s{lo}\ns_and_b32 s{d+1}, s{lo+1}, 0xffff\ns_mov_b32 s{d+2}, {size}\ns_mov_b32 s{d+3}, 0x20000")
def kernel_head(name):
    return f".globl {name}\n.p2align 8\n.type {name},@function\n{name}:"
def kernel_desc(name, vgpr=512, sgpr=96, acc=256):
    return (f".amdhsa_kernel {name}\n  .amdhsa_next_free_vgpr {vgpr}\n  .amdhsa_next_free_sgpr {sgpr}\n  .amdhsa_accum_offset {acc}\n"
            "  .amdhsa_group_segment_fixed_size 0\n  .amdhsa_kernarg_size 136\n  .amdhsa_user_sgpr_count 2\n"
            "  .amdhsa_user_sgpr_kernarg_segment_ptr 1\n  .amdhsa_system_sgpr_workgroup_id_x 1\n"
            "  .amdhsa_float_denorm_mode_32 3\n.end_amdhsa_kernel")
def place(gaps, start, items, step=1, room=1):
    g = start
    for it in items:
        while len(gaps[g]) > room: g += 1
        gaps[g].append(it); g += step
    return g
```

```python
from common import *
NAME = "proj_scan_kernel"
GOFF = 65536; WBUF = 28688; UOFF = 14352; BOFF = GOFF + 2 * WBUF; SCR = 139520; LDS = SCR + 2048
MF = "v_mfma_f32_16x16x32_bf16"
S_W, S_MT, S_NT, S_WM, S_WN = 3, 4, 5, 6, 7
RX, RW, RB, RWS, RDBG, RAGG = 8, 12, 16, 20, 24, 28
S_KX, S_KW, S_MX, S_MW, S_MB, S_CNT = 32, 33, 34, 35, 64, 65
T0, T1, T2, T3 = 66, 67, 68, 69
V_X, V_W, V_B = 2, 10, 17
V_RX, V_RW, V_RM, V_RB = 19, 21, 22, 23
A_XF, A_WF = 64, 192
A_LAM, A_C2, A_L16, A_L32, A_L256, A_L32P = 216, 218, 220, 222, 224, 226
def acc(g, i):
    return ("v", 32 + g * 32 + 4 * i) if g < 7 else ("a", (g - 7) * 32 + 4 * i)
def accs(g, i): k, r = acc(g, i); return vr(r, 4, k)
def xf(b, s, i): return A_XF + b * 64 + (s * 8 + i) * 4
def wf(slot, s): return A_WF + slot * 8 + s * 4

def cmul(E, dr, di, ar_, ai, br, bi):
    E(f"v_mul_f32 v{dr}, v{ar_}, v{br}\nv_mul_f32 v{di}, v{ar_}, v{bi}")
    E(f"v_fma_f32 v{dr}, -v{ai}, v{bi}, v{dr}\nv_fma_f32 v{di}, v{ai}, v{br}, v{di}")
def cfma(E, dr, di, ar_, ai, br, bi, cr, ci):
    E(f"v_fma_f32 v{dr}, v{ar_}, v{br}, v{cr}\nv_fma_f32 v{di}, v{ar_}, v{bi}, v{ci}")
    E(f"v_fma_f32 v{dr}, -v{ai}, v{bi}, v{dr}\nv_fma_f32 v{di}, v{ai}, v{br}, v{di}")
def lam_of(E, lre, lim, ldt, o, t):
    E(f"v_lshlrev_b32 v{lre}, 16, v{lre}\nv_lshlrev_b32 v{lim}, 16, v{lim}\nv_lshlrev_b32 v{ldt}, 16, v{ldt}")
    E(f"v_mul_f32 v{ldt}, {hexf(LOG2E)}, v{ldt}\nv_exp_f32 v{ldt}, v{ldt}\ns_nop 0")
    E(f"v_cvt_pk_bf16_f32 v{ldt}, v{ldt}, v{ldt}\nv_lshlrev_b32 v{ldt}, 16, v{ldt}")
    E(f"v_mul_f32 v{t}, v{ldt}, v{lre}\nv_mul_f32 v{t+1}, v{ldt}, v{lim}")
    E(f"v_mul_f32 v{t}, {hexf(LOG2E)}, v{t}\nv_mul_f32 v{t+1}, 0.15915494309189535, v{t+1}")
    E(f"v_exp_f32 v{t}, v{t}\nv_rndne_f32 v{t+2}, v{t+1}\nv_sub_f32 v{t+1}, v{t+1}, v{t+2}")
    E(f"v_cos_f32 v{t+2}, v{t+1}\nv_sin_f32 v{t+3}, v{t+1}\ns_nop 0")
    E(f"v_mul_f32 v{o}, v{t}, v{t+2}\nv_mul_f32 v{o+1}, v{t}, v{t+3}")
def csq(E, d, a):
    E(f"v_mul_f32 v{d}, v{a}, v{a}\nv_mul_f32 v{d+1}, v{a}, v{a+1}")
    E(f"v_fma_f32 v{d}, -v{a+1}, v{a+1}, v{d}\nv_add_f32 v{d+1}, v{d+1}, v{d+1}")
def stash(E, a, v): E(f"v_accvgpr_write_b32 a{a}, v{v}\nv_accvgpr_write_b32 a{a+1}, v{v+1}")
def unstash(E, v, a): E(f"v_accvgpr_read_b32 v{v}, a{a}\nv_accvgpr_read_b32 v{v+1}, a{a+1}")

def dma_ops(buf):
    ops = []
    for j in range(7): ops.append((f"s_add_u32 m0, s{S_MW}, {buf*WBUF + j*1024}", f"buffer_load_dwordx4 v{V_W+j}, s[{RW}:{RW+3}], s{S_KW} offen lds", f"s_add_u32 s{S_KW}, s{S_KW}, {64*7168}" if j == 6 else None))
    for j in range(2): ops.append((f"s_add_u32 m0, s{S_MB}, {buf*8192 + j*1024}", f"buffer_load_dwordx4 v{V_B+j}, s[{RB}:{RB+3}], s{S_KX} offen lds", None))
    for j in range(8): ops.append((f"s_add_u32 m0, s{S_MX}, {buf*32768 + j*1024}", f"buffer_load_dwordx4 v{V_X+j}, s[{RX}:{RX+3}], s{S_KX} offen lds", f"s_add_u32 s{S_KX}, s{S_KX}, 128" if j == 7 else None))
    return ops
def rd_x(b, s, i):
    return (f"ds_read_b128 {ar(xf(b,s,i),4)}, v{V_RX+s} offset:{b*32768 + i*2048}", ("x", b, s, i))
def rd_w(b, g, slot, s):
    r = wf(slot, s)
    if g < 2: return [(f"ds_read_b128 {ar(r,4)}, v{V_RB+s} offset:{b*8192 + g*4096}", ("w", slot, s, 0))]
    if g < 8: base, off = V_RW, b * WBUF + ((g - 2) & 1) * UOFF + s * 7168 + ((g - 2) >> 1) * 32
    else: base, off = V_RM, b * WBUF + s * 7168
    return [(f"ds_read_b64_tr_b16 {ar(r+2*h,2)}, v{base} offset:{off + h*1792}", ("w", slot, s, h)) for h in (0, 1)]
def mfma_group(E, st, g, gaps, n):
    slot = (st * 9 + g) % 3
    for i in range(8):
        for s in (0, 1):
            E.need([("w", slot, s, 0), ("w", slot, s, 1), ("x", st, s, i)])
            a = accs(g, i); w_ = ar(wf(slot, s), 4); x_ = ar(xf(st, s, i), 4)
            E(f"{MF} {a}, {x_}, {w_}, {a}" if g < 2 else f"{MF} {a}, {w_}, {x_}, {a}")
            for it in gaps[n]:
                if it[0] == "ds": E.ds(it[1], it[2])
                else: E(it[1])
            n += 1
    return n
def segment(E, prev, dma, cfg):
    nxt = 1 - prev
    gaps = [[] for _ in range(146)]
    xq = [rd_x(nxt, s, i) for i in range(8) for s in (0, 1)]
    seq = [(prev, 7), (prev, 8)] + [(nxt, g) for g in range(7)]
    for p, (st, g) in enumerate(seq):
        gn = g + 2
        b, j = (st, gn) if gn < 9 else (nxt, gn - 9)
        w = [it for s in (0, 1) for it in rd_w(b, j, (st * 9 + g + 2) % 3, s)]
        if p < 2:
            for k, it in enumerate(xq[p*8:p*8+8] + w): gaps[p*16 + k].append(("ds",) + it)
        else:
            for k, it in enumerate(w): gaps[p*16 + 1 + 2*k].append(("ds",) + it)
    if dma:
        g = cfg.get("dma_start", 0)
        for m, d, adv in dma_ops(prev):
            while len(gaps[g]) > 1 or len(gaps[g+1]) > 1: g += 1
            gaps[g].append(("raw", m)); gaps[g+1].append(("raw", d))
            if adv: gaps[g+2].append(("raw", adv))
            g += cfg.get("dma_every", 5)
    E.drain("vmcnt(0)")
    E("s_barrier")
    n = 0
    for st, g in seq: n = mfma_group(E, st, g, gaps, n)
    assert not any(gaps[n:])

def gelu_quads(E, quads, T=(6, 8, 12, 14)):
    K = "v[30:31]"
    P = lambda r: vr(r, 2)
    for (g, u), t in zip(quads, T): E(f"v_pk_mul_f32 {P(t)}, {P(g)}, {P(g)}")
    for (g, u), t in zip(quads, T): E(f"v_pk_fma_f32 {P(t)}, {P(t)}, {K}, {K} op_sel:[0,1,0] op_sel_hi:[1,1,0]")
    for (g, u), t in zip(quads, T): E(f"v_pk_mul_f32 {P(t)}, {P(t)}, {P(g)}")
    for (g, u), t in zip(quads, T): E(f"v_exp_f32_e64 v{t}, v{t}\nv_exp_f32_e64 v{t+1}, v{t+1}")
    for (g, u), t in zip(quads, T): E(f"v_pk_add_f32 {P(t)}, {P(t)}, 1.0 op_sel_hi:[1,0]")
    for (g, u), t in zip(quads, T): E(f"v_rcp_f32_e64 v{t}, v{t}\nv_rcp_f32_e64 v{t+1}, v{t+1}")
    for (g, u), t in zip(quads, T): E(f"v_pk_mul_f32 {P(u)}, {P(u)}, {P(g)}")
    for (g, u), t in zip(quads, T): E(f"v_pk_mul_f32 {P(u)}, {P(u)}, {P(t)}")

def gen(cfg=None):
    cfg = cfg or {}
    st_aux = cfg.get("st_aux", "")
    E = Em()
    E(kernel_head(NAME))
    E("s_cmp_ge_u32 s2, 256\ns_cbranch_scc1 K1_end")
    E("s_load_dwordx16 s[36:51], s[0:1], 0\ns_load_dwordx8 s[52:59], s[0:1], 80\ns_load_dwordx4 s[60:63], s[0:1], 120")
    E(f"v_lshrrev_b32 v1, 6, v0\nv_and_b32 v0, 63, v0\nv_readfirstlane_b32 s{S_W}, v1")
    E(f"s_lshr_b32 s{S_MT}, s2, 5\ns_and_b32 s{T0}, s2, 7\ns_lshr_b32 s{T1}, s2, 3\ns_and_b32 s{T1}, s{T1}, 3")
    E(f"s_lshl_b32 s{S_NT}, s{T0}, 2\ns_add_u32 s{S_NT}, s{S_NT}, s{T1}")
    E(f"s_lshr_b32 s{S_WM}, s{S_W}, 1\ns_and_b32 s{S_WN}, s{S_W}, 1")
    E("v_lshrrev_b32 v25, 3, v0\nv_and_b32 v26, 7, v0")
    E("v_lshrrev_b32 v27, 2, v25\nv_lshlrev_b32 v27, 5, v27")
    E("v_and_b32 v28, 1, v25\nv_lshl_add_u32 v27, v28, 4, v27")
    E("v_lshrrev_b32 v28, 1, v25\nv_and_b32 v29, 1, v28\nv_add_u32 v27, v27, v29")
    E("v_xor_b32 v29, v26, v28\nv_lshlrev_b32 v29, 4, v29")
    E("v_xor_b32 v30, 64, v29")
    E(f"s_lshl_b32 s{T0}, s{S_MT}, 8\ns_lshl_b32 s{T1}, s{S_WM}, 7\ns_add_u32 s{T0}, s{T0}, s{T1}")
    E(f"s_lshl_b32 s{T1}, s{S_WN}, 3\ns_add_u32 s{T0}, s{T0}, s{T1}")
    E(f"v_add_u32 v27, s{T0}, v27\nv_lshlrev_b32 v27, 11, v27")
    E(f"v_add_u32 v{V_X}, v27, v29\nv_add_u32 v{V_X+1}, v27, v30\nv_add_u32 v{V_X+1}, {64*2048}, v{V_X+1}")
    for j in range(2, 8): E(f"v_add_u32 v{V_X+j}, {2*2048}, v{V_X+j-2}")
    E(f"s_lshl_b32 s{T0}, s{S_NT}, 5\ns_lshl_b32 s{T1}, s{S_WN}, 4\ns_add_u32 s{T0}, s{T0}, s{T1}")
    E(f"v_add_u32 v27, s{T0}, v25\nv_lshlrev_b32 v27, 11, v27")
    E(f"v_add_u32 v{V_B}, v27, v29\nv_add_u32 v{V_B+1}, v27, v30\nv_add_u32 v{V_B+1}, {8*2048}, v{V_B+1}")
    E(f"s_mul_i32 s{T1}, s{S_NT}, 224\ns_mul_i32 s{T2}, s{S_WN}, {32*7168}\ns_add_u32 s{T1}, s{T1}, s{T2}\ns_movk_i32 s{T2}, 7168")
    for j in range(7):
        E(f"v_add_u32 v25, {64*j}, v0\nv_mul_u32_u24 v26, 4682, v25\nv_lshrrev_b32 v26, 16, v26")
        E("v_mul_u32_u24 v27, 14, v26\nv_sub_u32 v27, v25, v27")
        E("v_and_b32 v28, 19, v26\nv_and_b32 v29, 4, v26\nv_lshl_or_b32 v28, v29, 1, v28")
        E("v_and_b32 v29, 8, v26\nv_lshrrev_b32 v29, 1, v29\nv_or_b32 v28, v28, v29")
        E(f"v_mul_u32_u24 v28, s{T2}, v28\nv_lshl_add_u32 v28, v27, 4, v28\nv_add_u32 v{V_W+j}, s{T1}, v28")
    E(f"s_lshl_b32 s{S_MX}, s{S_W}, 13")
    E(f"s_mul_i32 s{S_MW}, s{S_WM}, {UOFF}\ns_mul_i32 s{T1}, s{S_WN}, 7168\ns_add_u32 s{S_MW}, s{S_MW}, s{T1}\ns_add_u32 s{S_MW}, s{S_MW}, {GOFF}")
    E(f"s_lshl_b32 s{S_MB}, s{S_W}, 11\ns_add_u32 s{S_MB}, s{S_MB}, {BOFF}")
    E(f"s_mov_b32 s{S_KX}, 0\ns_mov_b32 s{S_KW}, 0")
    E("s_waitcnt lgkmcnt(0)")
    srd(E, RX, 36, 2048 * 2048)
    E(f"s_cmp_eq_u32 s{S_WM}, 0\ns_cselect_b32 s{T2}, s52, s54\ns_cselect_b32 s{T3}, s53, s55")
    srd(E, RW, T2, 1024 * 7168)
    E(f"s_cmp_eq_u32 s{S_WM}, 0\ns_cselect_b32 s{T2}, s42, s44\ns_cselect_b32 s{T3}, s43, s45")
    srd(E, RB, T2, 1024 * 2048)
    srd(E, RWS, 62, WS_SIZE)
    srd(E, RDBG, 60, 256)
    E(f"s_add_u32 s{T2}, s62, {AGG_OFF}\ns_addc_u32 s{T3}, s63, 0")
    srd(E, RAGG, T2, 65536)
    E(f"v_and_b32 v25, 15, v0\nv_add_u32 v25, s{T0}, v25\nv_lshlrev_b32 v25, 1, v25")
    E(f"s_lshl_b32 s{T1}, s{S_NT}, 5\nv_and_b32 v26, 31, v0\nv_add_u32 v26, s{T1}, v26\nv_lshlrev_b32 v26, 1, v26")
    E("global_load_ushort v32, v25, s[38:39]\nglobal_load_ushort v33, v25, s[40:41]\nglobal_load_ushort v34, v25, s[50:51]")
    E("global_load_ushort v35, v26, s[38:39]\nglobal_load_ushort v36, v26, s[40:41]\nglobal_load_ushort v37, v26, s[50:51]")
    E(f"s_lshl_b32 s70, s{S_MT}, 8\ns_lshl_b32 s{T1}, s{S_NT}, 3\ns_add_u32 s70, s70, s{T1}\ns_lshl_b32 s{T1}, s{S_W}, 1\ns_add_u32 s70, s70, s{T1}")
    E(f"s_and_b32 s71, s70, 0xff80\ns_bfe_u32 s{T1}, s70, 0x30004\ns_lshl_b32 s{T1}, s{T1}, 1\ns_add_u32 s71, s71, s{T1}")
    E(f"s_bfe_u32 s{T1}, s70, 0x20002\ns_lshl_b32 s{T1}, s{T1}, 5\ns_add_u32 s71, s71, s{T1}")
    E(f"s_bfe_u32 s{T1}, s70, 0x10001\ns_add_u32 s71, s71, s{T1}\ns_lshl_b32 s71, s71, 11\ns_add_u32 s72, s71, {16*2048}")
    E("v_lshlrev_b32 v27, 4, v0")
    E("global_load_dwordx4 v[40:43], v27, s[58:59]\nglobal_load_dwordx4 v[44:47], v27, s[58:59] offset:1024")
    E(f"buffer_load_dwordx4 v[48:51], v27, s[{RX}:{RX+3}], s71 offen\nbuffer_load_dwordx4 v[52:55], v27, s[{RX}:{RX+3}], s71 offen offset:1024")
    E(f"buffer_load_dwordx4 v[56:59], v27, s[{RX}:{RX+3}], s72 offen\nbuffer_load_dwordx4 v[60:63], v27, s[{RX}:{RX+3}], s72 offen offset:1024")
    for b in (0, 1):
        for m, d, adv in dma_ops(b):
            E(m); E("s_nop 0"); E(d)
            if adv: E(adv)
    E("v_and_b32 v25, 15, v0\nv_lshrrev_b32 v26, 4, v0")
    E("v_lshrrev_b32 v27, 1, v25\nv_xor_b32 v27, v27, v26\nv_lshlrev_b32 v27, 4, v27\nv_lshl_add_u32 v27, v25, 7, v27")
    E(f"s_lshl_b32 s{T1}, s{S_WM}, 14\nv_add_u32 v{V_RX}, s{T1}, v27\nv_xor_b32 v{V_RX+1}, 64, v{V_RX}")
    E(f"s_lshl_b32 s{T1}, s{S_WN}, 11\ns_add_u32 s{T1}, s{T1}, {BOFF}\nv_xor_b32 v28, 64, v27\nv_add_u32 v{V_RB}, s{T1}, v27\nv_add_u32 v{V_RB+1}, s{T1}, v28")
    E("v_lshrrev_b32 v27, 5, v0\nv_lshlrev_b32 v27, 4, v27\nv_and_b32 v28, 1, v26\nv_lshl_add_u32 v27, v28, 2, v27")
    E("v_bfe_u32 v28, v0, 2, 2\nv_add_u32 v27, v27, v28\nv_mul_u32_u24 v27, 224, v27")
    E(f"s_mul_i32 s{T1}, s{S_WN}, 112\ns_add_u32 s{T1}, s{T1}, {GOFF}\nv_add_u32 v27, s{T1}, v27")
    E(f"v_and_b32 v28, 3, v0\nv_lshl_add_u32 v{V_RW}, v28, 3, v27")
    E(f"v_and_b32 v28, 1, v0\nv_lshl_add_u32 v27, v28, 3, v27\nv_bfe_u32 v28, v0, 1, 1\nv_mul_u32_u24 v28, {UOFF}, v28")
    E(f"v_add_u32 v27, 96, v27\nv_add_u32 v{V_RM}, v27, v28")
    E("s_waitcnt vmcnt(40)")
    lam_of(E, 32, 33, 34, 64, 70)
    stash(E, A_LAM, 64)
    E("v_add_f32 v70, -1.0, v64\nv_mul_f32 v71, v32, v32\nv_fma_f32 v71, v33, v33, v71\nv_rcp_f32 v71, v71")
    E("v_mul_f32 v72, v70, v32\nv_mul_f32 v73, v65, v32\nv_fma_f32 v72, v65, v33, v72\nv_fma_f32 v73, -v70, v33, v73")
    E("v_add_f32 v71, v71, v71\nv_mul_f32 v72, v72, v71\nv_mul_f32 v73, v73, v71")
    stash(E, A_C2, 72)
    a, b = 64, 66
    for k in range(1, 9):
        csq(E, b, a); a, b = b, a
        if k == 4: stash(E, A_L16, a)
        if k == 5: stash(E, A_L32, a)
        if k == 8: stash(E, A_L256, a)
    lam_of(E, 35, 36, 37, 64, 70)
    a, b = 64, 66
    for k in range(1, 6): csq(E, b, a); a, b = b, a
    stash(E, A_L32P, a)
    E("s_waitcnt vmcnt(34)")
    for k in range(8): E(f"v_lshlrev_b32 v{64+2*k}, 16, v{40+k}\nv_and_b32 v{65+2*k}, 0xffff0000, v{40+k}")
    E("v_mov_b32 v80, 0\nv_mov_b32 v81, 0\nv_mov_b32 v82, 0\nv_mov_b32 v83, 0")
    for k in range(8):
        for u in (0, 1):
            x = 48 + 8 * u + k; t = 84 + 2 * u
            E(f"v_lshlrev_b32 v{t}, 16, v{x}\nv_and_b32 v{t+1}, 0xffff0000, v{x}")
            E(f"v_pk_mul_f32 v[{t}:{t+1}], v[{t}:{t+1}], v[{64+2*k}:{65+2*k}]\nv_cvt_pk_bf16_f32 v{x}, v{t}, v{t+1}")
            E(f"v_lshlrev_b32 v{t}, 16, v{x}\nv_and_b32 v{t+1}, 0xffff0000, v{x}")
            E(f"v_pk_add_f32 v[{80+2*u}:{81+2*u}], v[{80+2*u}:{81+2*u}], v[{t}:{t+1}]")
    E("v_add_f32 v80, v80, v81\nv_add_f32 v82, v82, v83\ns_nop 1")
    for sh in (8, 4, 2, 1):
        E(f"v_add_f32_dpp v80, v80, v80 row_ror:{sh} row_mask:0xf bank_mask:0xf\nv_add_f32_dpp v82, v82, v82 row_ror:{sh} row_mask:0xf bank_mask:0xf\ns_nop 1")
    for sw in (16, 32):
        E(f"v_mov_b32 v81, v80\nv_mov_b32 v83, v82\ns_nop 1\nv_permlane{sw}_swap_b32 v80, v81\nv_permlane{sw}_swap_b32 v82, v83\ns_nop 1")
        E("v_add_f32 v80, v80, v81\nv_add_f32 v82, v82, v83")
    E("v_cvt_pk_bf16_f32 v84, v80, v82\nv_lshlrev_b32 v80, 16, v84\nv_and_b32 v82, 0xffff0000, v84")
    E(f"v_mul_f32 v80, {hexf(-LOG2E)}, v80\nv_mul_f32 v82, {hexf(-LOG2E)}, v82\nv_exp_f32 v80, v80\nv_exp_f32 v82, v82\ns_nop 0")
    E("v_add_f32 v80, 1.0, v80\nv_add_f32 v82, 1.0, v82\nv_rcp_f32 v80, v80\nv_rcp_f32 v82, v82\ns_nop 0")
    E("v_cvt_pk_bf16_f32 v84, v80, v82\nv_lshlrev_b32 v80, 16, v84\nv_and_b32 v82, 0xffff0000, v84")
    E("v_sub_f32 v81, 1.0, v80\nv_sub_f32 v83, 1.0, v82\nv_cvt_pk_bf16_f32 v84, v81, v83\nv_lshlrev_b32 v81, 16, v84\nv_and_b32 v83, 0xffff0000, v84")
    E(f"s_lshl_b32 s70, s70, 3\ns_add_u32 s70, s70, {G_OFF}\nv_mov_b32 v25, 0\ns_mov_b64 exec, 1")
    E(f"buffer_store_dwordx4 v[80:83], v25, s[{RWS}:{RWS+3}], s70 offen\ns_mov_b64 exec, -1")
    E(f"s_lshl_b32 s70, s2, 5\ns_add_u32 s70, s70, {FLG_OFF}\nv_mov_b32 v84, 0\nv_mov_b32 v85, 0\nv_mov_b32 v86, 0\nv_mov_b32 v87, 0")
    E(f"v_lshlrev_b32 v25, 4, v0\ns_mov_b64 exec, 3\nbuffer_store_dwordx4 v[84:87], v25, s[{RWS}:{RWS+3}], s70 offen\ns_mov_b64 exec, -1\ns_nop 1")
    for r in range(32, 256): E(f"v_mov_b32 v{r}, 0")
    for r in range(64): E(f"v_accvgpr_write_b32 a{r}, 0")
    E("s_waitcnt vmcnt(19)\ns_barrier")
    gaps = [[] for _ in range(146)]
    for g in (0, 1):
        for s in (0, 1):
            for it in rd_w(0, g, g, s): E.ds(*it)
        for i in range(4 * g, 4 * g + 4):
            for s in (0, 1): E.ds(*rd_x(0, s, i))
    n = 0
    for g in range(7):
        w = [it for s in (0, 1) for it in rd_w(0, g + 2, (g + 2) % 3, s)]
        for k, it in enumerate(w): gaps[g*16 + 1 + 2*k].append(("ds",) + it)
    for g in range(7): n = mfma_group(E, 0, g, gaps, n)
    pro = list(E.L)
    E(f"s_mov_b32 s{S_CNT}, 7\n.p2align 3\nK1_loop:")
    l0 = len(E.L)
    segment(E, 0, True, cfg); segment(E, 1, True, cfg)
    E(f"s_sub_u32 s{S_CNT}, s{S_CNT}, 1\ns_cmp_lg_u32 s{S_CNT}, 0")
    body = E.L[l0:]
    E("s_cbranch_scc1 K1_loop")
    l1 = len(E.L)
    segment(E, 0, False, cfg)
    E.drain()
    gaps = [[] for _ in range(40)]
    n = mfma_group(E, 1, 7, gaps, 0); mfma_group(E, 1, 8, gaps, n)
    epilogue(E, cfg, st_aux)
    E("K1_end:\ns_endpgm")
    errs = check(pro + body + body + E.L[l1:], "k1")
    return E.text(), errs

def pkf(d, a, b, c, sel, nb=False):
    return (f"v_pk_fma_f32 {vr(d,2)}, {vr(a,2)}, {vr(b,2)}, {vr(c,2)} op_sel:[0,{sel},0] op_sel_hi:[1,{sel},1]"
            + (" neg_lo:[0,1,0] neg_hi:[0,1,0]" if nb else ""))
def pkm(d, a, b, sel, nb=False):
    return (f"v_pk_mul_f32 {vr(d,2)}, {vr(a,2)}, {vr(b,2)} op_sel:[0,{sel}] op_sel_hi:[1,{sel}]"
            + (" neg_lo:[0,1] neg_hi:[0,1]" if nb else ""))

def epilogue(E, cfg, aux):
    LAM, L16, SA = 2, 4, 10
    re = lambda n: 32 + 2 * n
    im = lambda n: 64 + 2 * n
    unstash(E, LAM, A_LAM); unstash(E, L16, A_L16)
    E("v_and_b32 v25, 15, v0\nv_lshrrev_b32 v26, 4, v0")
    hr, hi = re(0), im(0)
    for n in range(1, 16):
        nr, ni = (6, 8) if n & 1 else (12, 14)
        E(pkf(nr, hr, LAM, re(n), 0)); E(pkf(ni, hi, LAM, im(n), 0))
        E(pkf(nr, hi, LAM, nr, 1, True)); E(pkf(ni, hr, LAM, ni, 1))
        hr, hi = nr, ni
    E(f"v_mov_b32 v{SA}, v{hr}\nv_mov_b32 v{SA+1}, v{hi}")
    cfma(E, 12, 13, L16, L16 + 1, hr, hi, hr + 1, hi + 1)
    E(f"s_lshl_b32 s{T0}, s{S_WM}, 10\ns_lshl_b32 s{T1}, s{S_WN}, 7\ns_add_u32 s{T0}, s{T0}, s{T1}\ns_add_u32 s{T0}, s{T0}, {SCR}")
    E(f"v_lshlrev_b32 v27, 8, v26\nv_lshl_add_u32 v27, v25, 3, v27\nv_add_u32 v27, s{T0}, v27\nds_write_b64 v27, v[12:13]")
    E(f"s_lshl_b32 s{T0}, s{S_MT}, 12\ns_lshl_b32 s{T1}, s{S_WM}, 11\ns_add_u32 s70, s{T0}, s{T1}\ns_add_u32 s70, s70, {ACT_OFF}")
    E(f"s_mul_i32 s{T0}, s{S_NT}, 14\ns_mul_i32 s{T1}, s{S_WN}, 7\ns_add_u32 s{T0}, s{T0}, s{T1}\ns_add_u32 s{T0}, s{T0}, 256\ns_lshl_b32 s{T0}, s{T0}, 15\ns_add_u32 s71, s70, s{T0}")
    E("v_lshrrev_b32 v28, 1, v26\nv_and_b32 v29, 1, v26\nv_lshlrev_b32 v1, 15, v28\nv_lshl_add_u32 v1, v29, 8, v1\nv_lshl_add_u32 v1, v25, 4, v1\nv_add_u32 v16, s71, v1")
    E(f"v_lshl_add_u32 v1, v29, 1, v28\nv_lshlrev_b32 v1, 8, v1\nv_lshl_add_u32 v1, v25, 4, v1\nv_add_u32 v1, s71, v1\nv_add_u32 v17, {6*32768}, v1")
    E(f"s_lshl_b32 s{T0}, s{S_NT}, 2\ns_lshl_b32 s{T1}, s{S_WN}, 1\ns_add_u32 s{T0}, s{T0}, s{T1}\ns_lshl_b32 s{T0}, s{T0}, 15\ns_add_u32 s72, s70, s{T0}")
    E("v_lshl_add_u32 v1, v28, 7, v29\nv_lshlrev_b32 v1, 15, v1\nv_lshl_add_u32 v1, v25, 4, v1\nv_add_u32 v18, s72, v1")
    E(f"v_mov_b32 v30, {hexf(-2*0.7978845608028654*LOG2E)}\nv_mov_b32 v31, {hexf(-2*0.7978845608028654*LOG2E*0.044715)}")
    E("s_waitcnt lgkmcnt(0)\ns_barrier")
    E(f"s_cmp_eq_u32 s{S_MT}, 7\ns_cselect_b32 s73, 1, s{S_W}\ns_cmp_lg_u32 s73, 0\ns_cbranch_scc1 K1_nopub")
    E(f"v_and_b32 v1, 31, v0\nv_lshlrev_b32 v1, 3, v1\nv_add_u32 v27, {SCR}, v1")
    E("ds_read_b64 v[6:7], v27\nds_read_b64 v[12:13], v27 offset:256")
    unstash(E, 20, A_L32P)
    a, b = 6, 8
    for s in range(1, 8):
        E("s_waitcnt lgkmcnt(0)")
        cur = 12 if s & 1 else 14
        if s < 7: E(f"ds_read_b64 v[{26-cur}:{27-cur}], v27 offset:{256*(s+1)}")
        cfma(E, b, b + 1, 20, 21, a, a + 1, cur, cur + 1); a, b = b, a
    E(f"s_lshl_b32 s{T0}, s{S_MT}, 13\ns_lshl_b32 s{T1}, s{S_NT}, 8\ns_add_u32 s{T0}, s{T0}, s{T1}")
    E(f"s_mov_b64 exec, 0xffffffff\nbuffer_store_dwordx2 v[{a}:{a+1}], v1, s[{RAGG}:{RAGG+3}], s{T0} offen sc1\ns_mov_b64 exec, -1")
    E("K1_nopub:")
    def store_quad(R, voff, soff, imm):
        E(f"buffer_store_dwordx4 v[{R}:{R+3}], v{voff}, s[{RWS}:{RWS+3}], {soff} offen offset:{imm} {aux}")
    for j in range(3):
        G = 96 + 64 * j; U = G + 32
        if j == 2:
            U = 96
            for r in range(32): E(f"v_accvgpr_read_b32 v{U+r}, a{r}")
        E(f"s_mov_b32 s74, {2*j*32768}")
        for i in range(0, 8, 2):
            R = G + 4 * i
            gelu_quads(E, [(G + 4 * i + 2 * k, U + 4 * i + 2 * k) for k in range(4)])
            for k in range(4): E(f"v_cvt_pk_bf16_f32 v{R+k}, v{U+4*i+2*k}, v{U+4*i+2*k+1}")
            E(f"s_nop 1\nv_permlane16_swap_b32 v{R}, v{R+2}\nv_permlane16_swap_b32 v{R+1}, v{R+3}")
            store_quad(R, 16, "s74", i * 256)
        if j == 0:
            E(f"s_cmp_lg_u32 s73, 0\ns_cbranch_scc1 K1_noflag\ns_lshl_b32 s{T0}, 1, s{S_MT}\ns_lshl_b32 s{T1}, s{S_NT}, 2")
            E(f"v_mov_b32 v28, s{T0}\nv_mov_b32 v29, 0\ns_waitcnt vmcnt(4)\ns_mov_b64 exec, 1")
            E(f"buffer_atomic_or v28, v29, s[{RDBG}:{RDBG+3}], s{T1} offen sc1\ns_mov_b64 exec, -1\nK1_noflag:")
    M = 128
    for r in range(32): E(f"v_accvgpr_read_b32 v{M+r}, a{32+r}")
    E("s_nop 1")
    for i in range(0, 8, 2):
        for r in range(4): E(f"v_permlane32_swap_b32 v{M+4*i+r}, v{M+4*i+4+r}")
    for i in (0, 4):
        R = M + 4 * i
        q = [(M + 4 * ii + 2 * k, M + 4 * ii + 4 + 2 * k) for ii in (i, i + 2) for k in (0, 1)]
        gelu_quads(E, q)
        for k in range(4): E(f"v_cvt_pk_bf16_f32 v{R+k}, v{q[k][1]}, v{q[k][1]+1}")
        E(f"s_nop 1\nv_permlane16_swap_b32 v{R}, v{R+2}\nv_permlane16_swap_b32 v{R+1}, v{R+3}")
        store_quad(R, 17, "0", i * 256)
    E(f"s_cmp_lg_u32 s{S_W}, 0\ns_cbranch_scc1 K1_polled\ns_lshl_b32 s{T0}, 1, s{S_MT}\ns_sub_u32 s{T0}, s{T0}, 1\ns_lshl_b32 s{T1}, s{S_NT}, 2")
    E(f"s_cmp_eq_u32 s{T0}, 0\ns_cbranch_scc1 K1_polled\ns_mov_b32 s{T2}, 0x40000\nv_mov_b32 v29, 0")
    E(f"K1_poll:\nbuffer_load_dword v28, v29, s[{RDBG}:{RDBG+3}], s{T1} offen sc1\ns_waitcnt vmcnt(0)\nv_readfirstlane_b32 s{T3}, v28\ns_sub_u32 s{T2}, s{T2}, 1")
    E(f"s_and_b32 s{T3}, s{T3}, s{T0}\ns_cmp_eq_u32 s{T3}, s{T0}\ns_cbranch_scc1 K1_polled\ns_cmp_lg_u32 s{T2}, 0\ns_cbranch_scc1 K1_poll\nK1_polled:")
    E("s_barrier")
    AG = 96
    E(f"s_sub_u32 s{T0}, s{S_MT}, 7\ns_lshl_b32 s{T0}, s{T0}, 13\ns_lshl_b32 s{T1}, s{S_NT}, 8\ns_add_u32 s{T0}, s{T0}, s{T1}\ns_lshl_b32 s{T1}, s{S_WN}, 7\ns_add_u32 s{T0}, s{T0}, s{T1}")
    E(f"v_lshlrev_b32 v1, 3, v25\nv_add_u32 v1, s{T0}, v1")
    for k in range(7):
        E(f"buffer_load_dwordx2 v[{AG+2*k}:{AG+2*k+1}], v1, s[{RAGG}:{RAGG+3}], 0 offen sc1")
        if k < 6: E("v_add_u32 v1, 0x2000, v1")
    SG = 112
    E(f"s_lshl_b32 s{T1}, s{S_WN}, 7\ns_add_u32 s{T1}, s{T1}, {SCR}\nv_lshlrev_b32 v27, 3, v25\nv_add_u32 v27, s{T1}, v27")
    for s in range(7): E(f"ds_read_b64 v[{SG+2*s}:{SG+2*s+1}], v27 offset:{256*s}")
    unstash(E, 20, A_L256); unstash(E, 22, A_L32)
    E(f"s_lshl_b32 s{T1}, s{S_WM}, 2\nv_add_u32 v28, s{T1}, v26")
    E(f"s_lshl_b32 s{T1}, s{S_W}, 13\nv_lshlrev_b32 v27, 7, v26\nv_lshl_add_u32 v27, v25, 3, v27\nv_add_u32 v14, s{T1}, v27")
    E("v_lshrrev_b32 v27, 5, v0\nv_lshlrev_b32 v27, 9, v27\nv_and_b32 v29, 3, v0\nv_lshl_add_u32 v27, v29, 7, v27")
    E(f"v_and_b32 v29, 1, v26\nv_lshl_add_u32 v27, v29, 6, v27\nv_bfe_u32 v29, v0, 2, 2\nv_lshl_add_u32 v27, v29, 3, v27\nv_add_u32 v15, s{T1}, v27")
    E("s_waitcnt vmcnt(0) lgkmcnt(0)")
    a, b = AG, 6
    for k in range(1, 7):
        cfma(E, b, b + 1, 20, 21, a, a + 1, AG + 2 * k, AG + 2 * k + 1); a, b = b, (8 if b == 6 else 6)
    CR, CI = 128, 130
    E(f"v_mov_b32 v{CR}, v{a}\nv_mov_b32 v{CI}, v{a+1}")
    for s in range(7):
        E(f"v_cmp_lt_u32 vcc, {s}, v28")
        cfma(E, b, b + 1, 22, 23, a, a + 1, SG + 2 * s, SG + 2 * s + 1); a, b = b, a
        E(f"v_cndmask_b32 v{CR}, v{CR}, v{a}, vcc\nv_cndmask_b32 v{CI}, v{CI}, v{a+1}, vcc")
    cfma(E, CR + 1, CI + 1, L16, L16 + 1, CR, CI, SA, SA + 1)
    unstash(E, 20, A_C2)
    hr, hi = CR, CI
    for n in range(16):
        E(pkf(re(n), hr, LAM, re(n), 0)); E(pkf(im(n), hi, LAM, im(n), 0))
        E(pkf(re(n), hi, LAM, re(n), 1, True)); E(pkf(im(n), hr, LAM, im(n), 1))
        hr, hi = re(n), im(n)
    for i in range(8):
        T = 136 + 8 * (i & 1); R = 152 + 4 * i
        for k in (0, 1):
            n = 2 * i + k
            E(pkm(T + 4 * k, re(n), 20, 0)); E(pkm(T + 4 * k + 2, im(n), 20, 0, True))
            E(pkf(T + 4 * k, im(n), 20, T + 4 * k, 1, True)); E(pkf(T + 4 * k + 2, re(n), 20, T + 4 * k + 2, 1, True))
        for k in (0, 1):
            E(f"v_cvt_pk_bf16_f32 v{R+k}, v{T+4*k}, v{T+4*k+1}\nv_cvt_pk_bf16_f32 v{R+2+k}, v{T+4*k+2}, v{T+4*k+3}")
        E(f"ds_write_b64 v14, v[{R}:{R+1}] offset:{i*1024}\nds_write_b64 v14, v[{R+2}:{R+3}] offset:{i*1024+512}")
    E("s_waitcnt lgkmcnt(0)")
    def trd(i):
        R = 192 + 4 * i
        E(f"ds_read_b64_tr_b16 v[{R}:{R+1}], v15 offset:{i*1024}\nds_read_b64_tr_b16 v[{R+2}:{R+3}], v15 offset:{i*1024+32}")
    for i in range(4): trd(i)
    for i in range(8):
        if i < 4: trd(i + 4)
        E(f"s_waitcnt lgkmcnt({min(8, 14-2*i)})")
        store_quad(192 + 4 * i, 18, "0", i * 256)

if __name__ == "__main__":
    t, errs = gen()
    print("\n".join(errs[:40])); print(len(errs), "hazards;", t.count("\n"), "lines")
```

```python
from common import *
NAME = "out_mix_kernel"
WOFF = 98304; LDS = 147456
MF = "v_mfma_f32_16x16x32_bf16"
S_W, S_MT, S_NB, S_KQ, S_WM, S_WN, S_KX = 3, 4, 5, 6, 7, 32, 33
RWS, RWD, RC, RX, ROUT = 8, 12, 16, 24, 28
S_AC, S_AD, S_WC, S_WD, S_MA, S_MW, S_SA, S_SW = 34, 35, 64, 65, 66, 67, 68, 69
T0, T1, T2, T3 = 70, 71, 72, 73
S_SEND, S_RECV, S_FLG = 74, 77, 80
V_A, V_C, V_D, V_RA, V_RC, V_RD, V_G = 2, 6, 10, 14, 16, 18, 22
A_WF, A_AF, A_G, A_X, A_DS = 32, 96, 128, 144, 160
NC, NST = 8, 22
def accD(i, jt): return 32 + (i * 4 + jt) * 4
def accC(i, jt): return ("v", 160 + (i * 4 + jt) * 4) if i < 6 else ("a", ((i - 6) * 4 + jt) * 4)
def accs(st, i, jt):
    if st >= NC: return vr(accD(i, jt), 4)
    k, r = accC(i, jt); return vr(r, 4, k)
def wf(st, jt, s): return A_WF + (st & 1) * 32 + (jt * 2 + s) * 4
def af(i, s): return A_AF + (i & 3) * 8 + s * 4

def dma_ops(st):
    b = st % 3; ops = []
    if st < NC:
        setup = [f"s_add_u32 s{S_SA}, s{S_AC}, {((st&1)*128 + (st>>1)*8)*32768}", f"s_add_u32 s{S_SW}, s{S_WC}, {(st>>1)*128}"]
        R, V = RC + 4 * (st & 1), V_C
    else:
        d = st - NC
        setup = [f"s_add_u32 s{S_SA}, s{S_AD}, {d*8*32768}", f"s_add_u32 s{S_SW}, s{S_WD}, {d*64*2048}"]
        R, V = RWD, V_D
    for j in range(4):
        ops.append((f"s_add_u32 m0, s{S_MW}, {b*16384 + j*1024}", f"buffer_load_dwordx4 v{V+j}, s[{R}:{R+3}], s{S_SW} offen lds"))
    for j in range(8):
        ops.append((f"s_add_u32 m0, s{S_MA}, {b*32768 + (j>>2)*4096}" if j & 3 == 0 else None,
                    f"buffer_load_dwordx4 v{V_A + (j>>2)*2 + (j&1)}, s[{RWS}:{RWS+3}], s{S_SA} offen offset:{(j&3)*1024} lds"))
    return setup, ops
def rd_a(st, i):
    b = st % 3
    return [(f"ds_read_b128 {ar(af(i,s),4)}, v{V_RA + (b==2)} offset:{(b&1)*32768 + s*16384 + i*256}", ("a", i & 3, s)) for s in (0, 1)]
def rd_w(st):
    b = st % 3; out = []
    for jt in range(4):
        for s in (0, 1):
            r = wf(st, jt, s)
            if st < NC: out.append((f"ds_read_b128 {ar(r,4)}, v{V_RC+s} offset:{b*16384 + jt*2048}", ("w", st & 1, jt, s, 0)))
            else: out += [(f"ds_read_b64_tr_b16 {ar(r+2*h,2)}, v{V_RD+jt} offset:{b*16384 + s*8192 + h*1024}", ("w", st & 1, jt, s, h)) for h in (0, 1)]
    return out
def group(E, st, i, gaps, n):
    for jt in range(4):
        for s in (0, 1):
            E.need([("a", i & 3, s), ("w", st & 1, jt, s, 0), ("w", st & 1, jt, s, 1)])
            a = accs(st, i, jt)
            E(f"{MF} {a}, {ar(wf(st,jt,s),4)}, {ar(af(i,s),4)}, {a}")
            for it in gaps[n]:
                if it[0] == "ds": E.ds(it[1], it[2])
                else: E(it[1])
            n += 1
    return n

def gen(cfg=None):
    cfg = cfg or {}
    E = Em(); E.age = cfg.get("age", 6)
    E(kernel_head(NAME))
    E("s_cmp_ge_u32 s2, 256\ns_cbranch_scc1 K2_end")
    E("s_load_dwordx2 s[36:37], s[0:1], 0\ns_load_dwordx4 s[40:43], s[0:1], 40\ns_load_dwordx2 s[44:45], s[0:1], 64")
    E("s_load_dwordx2 s[46:47], s[0:1], 96\ns_load_dwordx2 s[48:49], s[0:1], 112\ns_load_dwordx2 s[50:51], s[0:1], 128")
    E(f"v_lshrrev_b32 v1, 6, v0\nv_and_b32 v0, 63, v0\nv_readfirstlane_b32 s{S_W}, v1")
    if cfg.get("map", 1) == 1:
        E(f"s_and_b32 s{S_KQ}, s2, 3\ns_and_b32 s{T0}, s2, 4\ns_bfe_u32 s{T1}, s2, 0x20003\ns_add_u32 s{S_MT}, s{T0}, s{T1}\ns_lshr_b32 s{S_NB}, s2, 5")
    else:
        E(f"s_bfe_u32 s{S_KQ}, s2, 0x20003\ns_and_b32 s{T0}, s2, 3\ns_lshl_b32 s{T0}, s{T0}, 1\ns_bfe_u32 s{T1}, s2, 0x10005\ns_add_u32 s{S_MT}, s{T0}, s{T1}")
        E(f"s_and_b32 s{T0}, s2, 4\ns_lshr_b32 s{T1}, s2, 6\ns_add_u32 s{S_NB}, s{T0}, s{T1}")
    E(f"s_lshr_b32 s{S_WM}, s{S_W}, 1\ns_and_b32 s{S_WN}, s{S_W}, 1\ns_xor_b32 s{S_KX}, s{S_KQ}, 3")
    E(f"s_lshl_b32 s{T0}, s{S_KX}, 1\ns_and_b32 s{T1}, s{T0}, 2\ns_and_b32 s{T2}, s{T0}, 4")
    E(f"v_lshrrev_b32 v30, 4, v0\nv_and_b32 v31, 15, v0\nv_xor_b32 v1, s{T1}, v30\nv_lshlrev_b32 v1, 8, v1\nv_lshl_add_u32 v1, v31, 4, v1")
    E(f"s_lshl_b32 s{T0}, s{S_W}, 16\ns_lshl_b32 s{T1}, s{S_MT}, 12\ns_add_u32 s{T0}, s{T0}, s{T1}\ns_add_u32 s{T0}, s{T0}, {ACT_OFF}\ns_lshl_b32 s{T2}, s{T2}, 8")
    E(f"s_add_u32 s{T1}, s{T0}, s{T2}\ns_sub_u32 s{T3}, s{T0}, s{T2}")
    E(f"v_add_u32 v{V_A}, s{T1}, v1\nv_add_u32 v{V_A+1}, s{T3}, v1\nv_add_u32 v{V_A+2}, 0x8000, v{V_A}\nv_add_u32 v{V_A+3}, 0x8000, v{V_A+1}")
    E("v_lshrrev_b32 v28, 3, v0\nv_and_b32 v29, 7, v0\nv_lshrrev_b32 v1, 1, v28\nv_xor_b32 v29, v29, v1\nv_lshlrev_b32 v29, 4, v29")
    E(f"s_lshl_b32 s{T0}, s{S_NB}, 7\ns_lshl_b32 s{T1}, s{S_W}, 5\ns_add_u32 s{T0}, s{T0}, s{T1}\nv_add_u32 v28, s{T0}, v28\nv_lshlrev_b32 v28, 11, v28")
    E(f"v_add_u32 v{V_C}, v28, v29\nv_xor_b32 v29, 64, v29\nv_add_u32 v{V_C+1}, v28, v29\nv_add_u32 v{V_C+1}, {8*2048}, v{V_C+1}")
    E(f"v_add_u32 v{V_C+2}, {16*2048}, v{V_C}\nv_add_u32 v{V_C+3}, {16*2048}, v{V_C+1}")
    E(f"v_lshlrev_b32 v1, 1, v30\nv_xor_b32 v1, v1, v31\nv_lshlrev_b32 v1, 4, v1\ns_lshl_b32 s{T0}, s{S_W}, 4\nv_add_u32 v28, s{T0}, v30\nv_lshlrev_b32 v28, 11, v28")
    E(f"s_lshl_b32 s{T0}, s{S_NB}, 8\nv_add_u32 v28, s{T0}, v28\nv_add_u32 v{V_D}, v28, v1\nv_add_u32 v{V_D+1}, {4*2048}, v{V_D}")
    E(f"v_xor_b32 v1, 128, v1\nv_add_u32 v{V_D+2}, v28, v1\nv_add_u32 v{V_D+2}, {8*2048}, v{V_D+2}\nv_add_u32 v{V_D+3}, {4*2048}, v{V_D+2}")
    E(f"s_lshl_b32 s{S_AC}, s{S_KQ}, 20\ns_mul_i32 s{S_AD}, s{S_KQ}, {112*32768}\ns_add_u32 s{S_AD}, s{S_AD}, {256*32768}")
    E(f"s_lshl_b32 s{S_WC}, s{S_KQ}, 9\ns_mul_i32 s{S_WD}, s{S_KQ}, {896*2048}")
    E(f"s_lshl_b32 s{S_MA}, s{S_W}, 13\ns_lshl_b32 s{S_MW}, s{S_W}, 12\ns_add_u32 s{S_MW}, s{S_MW}, {WOFF}")
    E("s_waitcnt lgkmcnt(0)")
    srd(E, RWS, 50, WS_SIZE); srd(E, RWD, 46, 3584 * 2048); srd(E, RC, 40, 1024 * 2048); srd(E, RC + 4, 42, 1024 * 2048)
    srd(E, RX, 36, 2048 * 2048); srd(E, ROUT, 48, 2048 * 4096)
    def issue_all(st):
        setup, ops = dma_ops(st)
        for x in setup: E(x)
        for m, d in ops:
            if m: E(m); E("s_nop 0")
            E(d)
    issue_all(0)
    E(f"s_lshl_b32 s{T0}, s{S_MT}, 11\ns_lshl_b32 s{T1}, s{S_WM}, 10\ns_add_u32 s{T0}, s{T0}, s{T1}\ns_add_u32 s{T0}, s{T0}, {G_OFF}\ns_lshl_b32 s{T1}, s{S_KX}, 8")
    E(f"v_lshlrev_b32 v1, 3, v31\nv_add_u32 v1, s{T0}, v1")
    for i in range(8):
        E(f"s_xor_b32 s{T2}, s{T1}, {i*128}\nbuffer_load_dwordx2 {ar(A_G+2*i,2)}, v1, s[{RWS}:{RWS+3}], s{T2} offen")
    E("v_lshrrev_b32 v1, 2, v31\nv_lshlrev_b32 v1, 5, v1\nv_and_b32 v28, 1, v31\nv_lshl_add_u32 v1, v28, 4, v1\nv_bfe_u32 v28, v31, 1, 1\nv_add_u32 v1, v1, v28")
    E(f"s_lshl_b32 s{T0}, s{S_MT}, 8\ns_lshl_b32 s{T1}, s{S_WM}, 7\ns_add_u32 s{T0}, s{T0}, s{T1}\ns_lshl_b32 s{T1}, s{S_KQ}, 2\ns_add_u32 s{T0}, s{T0}, s{T1}\nv_add_u32 v1, s{T0}, v1")
    E(f"s_lshl_b32 s{T0}, s{S_NB}, 7\ns_lshl_b32 s{T1}, s{S_WN}, 6\ns_add_u32 s{T0}, s{T0}, s{T1}\nv_lshl_add_u32 v28, v30, 2, s{T0}")
    E("v_lshlrev_b32 v29, 1, v28\nv_lshl_add_u32 v1, v1, 10, v28\nv_accvgpr_write_b32 a168, v1\nv_lshlrev_b32 v1, 1, v1")
    E(f"s_movk_i32 s{T0}, 0x1000")
    for ii in (0, 1):
        for jt in range(4): E(f"buffer_load_dwordx2 {ar(A_X+(ii*4+jt)*2,2)}, v1, s[{RX}:{RX+3}], {'s%d' % T0 if ii else '0'} offen offset:{jt*32}")
    for jt in range(4): E(f"global_load_dwordx2 {ar(A_DS+jt*2,2)}, v29, s[44:45] offset:{jt*32}")
    issue_all(1); issue_all(2)
    E(f"s_lshl_b32 s{T0}, s{S_WM}, 11\nv_lshlrev_b32 v1, 12, v30\nv_lshl_add_u32 v1, v31, 4, v1\nv_add_u32 v{V_RA}, s{T0}, v1\nv_add_u32 v{V_RA+1}, 0x10000, v{V_RA}")
    E(f"v_lshrrev_b32 v1, 1, v31\nv_xor_b32 v1, v1, v30\nv_lshlrev_b32 v1, 4, v1\nv_lshl_add_u32 v1, v31, 7, v1\ns_lshl_b32 s{T0}, s{S_WN}, 13\ns_add_u32 s{T0}, s{T0}, {WOFF}")
    E(f"v_add_u32 v{V_RC}, s{T0}, v1\nv_xor_b32 v{V_RC+1}, 64, v{V_RC}")
    E("v_bfe_u32 v1, v0, 2, 2\nv_lshl_add_u32 v28, v30, 3, v1\nv_lshlrev_b32 v28, 8, v28\nv_and_b32 v29, 1, v0\nv_lshl_add_u32 v28, v29, 3, v28")
    E(f"v_add_u32 v28, {WOFF}, v28\nv_and_b32 v29, 1, v30\nv_lshl_add_u32 v1, v29, 2, v1\nv_lshlrev_b32 v1, 1, v1")
    E(f"v_bfe_u32 v29, v0, 1, 1\ns_lshl_b32 s{T0}, s{S_WN}, 3\nv_add_u32 v29, s{T0}, v29\nv_xor_b32 v1, v1, v29")
    for jt in range(4): E(f"v_xor_b32 v29, {2*jt}, v1\nv_lshl_add_u32 v{V_RD+jt}, v29, 4, v28")
    E(f"s_lshl_b32 s{T0}, s{S_MT}, 3\ns_add_u32 s{T0}, s{T0}, s{S_NB}\ns_lshl_b32 s{S_FLG}, s{T0}, 7\ns_add_u32 s{S_FLG}, s{S_FLG}, {FLG_OFF}")
    E(f"s_lshl_b32 s{T0}, s{T0}, 19\ns_add_u32 s{T0}, s{T0}, {XCH_OFF}\ns_lshl_b32 s{T1}, s{S_W}, 13\ns_add_u32 s{T0}, s{T0}, s{T1}")
    for k in range(3):
        E(f"s_xor_b32 s{T1}, s{S_KX}, {k}\ns_lshl_b32 s{T1}, s{T1}, 2\ns_add_u32 s{T1}, s{T1}, s{S_KQ}\ns_lshl_b32 s{T1}, s{T1}, 15\ns_add_u32 s{S_SEND+k}, s{T0}, s{T1}")
        E(f"s_xor_b32 s{T1}, s{S_KQ}, {k+1}\ns_lshl_b32 s{T2}, s{S_KQ}, 2\ns_add_u32 s{T1}, s{T1}, s{T2}\ns_lshl_b32 s{T1}, s{T1}, 15\ns_add_u32 s{S_RECV+k}, s{T0}, s{T1}")
    for r in range(32, 256): E(f"v_mov_b32 v{r}, 0")
    for r in range(32): E(f"v_accvgpr_write_b32 a{r}, 0")
    E("s_waitcnt vmcnt(24)\ns_barrier")
    for i in range(8): E(f"v_accvgpr_read_b32 v{V_G+i}, a{A_G+2*i}")
    w = rd_w(0)
    for it in rd_a(0, 0) + w[:4] + rd_a(0, 1) + w[4:] + rd_a(0, 2): E.ds(*it)
    gaps = [[] for _ in range(66)]
    for i in range(5):
        for k, it in enumerate(rd_a(0, i + 3)): gaps[i*8 + 1 + 2*k].append(("ds",) + it)
    n = 0
    for i in range(5): n = group(E, 0, i, gaps, n)
    scale = []
    for i in range(8):
        for jt in range(4):
            k, r = accC(i, jt)
            for e in range(4):
                if k == "v": scale.append([f"v_mul_f32 v{r+e}, v{V_G+i}, v{r+e}"])
                else: scale.append([f"v_accvgpr_read_b32 v30, a{r+e}", f"v_mul_f32 v30, v{V_G+i}, v30", f"v_accvgpr_write_b32 a{r+e}, v30"])
    scale = [x for grp in scale for x in grp]
    for st in range(1, NST + 1):
        gaps = [[] for _ in range(68)]
        if st < NST:
            w = rd_w(st); per = len(w) // 2
            first = rd_a(st, 0) + w[:per]
            for k, it in enumerate(first): gaps[k].append(("ds",) + it)
            g = max(len(first), 9)
            second = rd_a(st, 1) + w[per:]
            for k, it in enumerate(second): gaps[g + k].append(("ds",) + it)
            g = max(g + len(second), 17)
            for k, it in enumerate(rd_a(st, 2)): gaps[g + k].append(("ds",) + it)
            for i in range(5):
                for k, it in enumerate(rd_a(st, i + 3)): gaps[24 + i*8 + 1 + 2*k].append(("ds",) + it)
            if st + 2 < NST:
                setup, ops = dma_ops(st + 2)
                gaps[0] = [("raw", setup[1])] + gaps[0]; gaps[2].append(("raw", setup[0]))
                g = cfg.get("dma_start", 1)
                for m, d in ops:
                    while len(gaps[g]) > 1 or len(gaps[g+1]) > 1: g += 1
                    if m: gaps[g].append(("raw", m))
                    gaps[g+1].append(("raw", d))
                    g += cfg.get("dma_every", 5)
            if st >= NC + 2:
                for g in range(24, 64):
                    if scale and len(gaps[g]) == 0: gaps[g].append(("raw", scale.pop(0)))
            E.drain(f"vmcnt({12 if st + 1 < NST else 0})")
            E("s_barrier")
        else:
            E.drain()
        n = 0
        for i in (5, 6, 7): n = group(E, st - 1, i, gaps, n)
        if st < NST:
            for i in range(5): n = group(E, st, i, gaps, n)
        assert not any(gaps[n:]), (st, gaps[n:])
    assert not scale, len(scale)
    epilogue(E, cfg)
    E("K2_end:\ns_endpgm")
    return E.text(), check(E.L, "k2")

def epilogue(E, cfg):
    P = lambda r: vr(r, 2)
    for i in range(8): E(f"v_accvgpr_read_b32 v{2+2*(i&3)+1+ (0 if i<4 else 8)}, a{A_G+2*i+1}")
    om = lambda i: 2 + 2 * i
    E("v_lshlrev_b32 v20, 4, v0\nv_add_u32 v21, 0x1000, v20")
    def mix(i, jt, c):
        d = accD(i, jt)
        for h in (0, 2): E(f"v_pk_fma_f32 {P(d+h)}, {P(d+h)}, {P(om(i))}, {P(c+h)} op_sel:[0,1,0] op_sel_hi:[1,1,1]")
    for i in range(6):
        if i == 5: E("s_nop 3")
        for jt in range(4): mix(i, jt, accC(i, jt)[1])
        for jt in range(4):
            E(f"buffer_store_dwordx4 {vr(accD(i,jt),4)}, v{20+(i&1)}, s[{RWS}:{RWS+3}], s{S_SEND+(i>>1)} offen offset:{jt*1024} sc1")
    for r in range(32): E(f"v_accvgpr_read_b32 v{160+r}, a{r}")
    for i in (6, 7):
        for jt in range(4): mix(i, jt, 160 + ((i - 6) * 4 + jt) * 4)
    for jt in range(4):
        E(f"v_accvgpr_read_b32 v30, a{A_DS+2*jt}\nv_accvgpr_read_b32 v31, a{A_DS+2*jt+1}")
        E("v_lshlrev_b32 v192, 16, v30\nv_and_b32 v193, 0xffff0000, v30\nv_lshlrev_b32 v194, 16, v31\nv_and_b32 v195, 0xffff0000, v31")
        for ii in (0, 1):
            x = A_X + (ii * 4 + jt) * 2; d = accD(6 + ii, jt)
            E(f"v_accvgpr_read_b32 v30, a{x}\nv_accvgpr_read_b32 v31, a{x+1}")
            E("v_lshlrev_b32 v196, 16, v30\nv_and_b32 v197, 0xffff0000, v30\nv_lshlrev_b32 v198, 16, v31\nv_and_b32 v199, 0xffff0000, v31")
            E("v_pk_mul_f32 v[196:197], v[196:197], v[192:193]\nv_pk_mul_f32 v[198:199], v[198:199], v[194:195]")
            E("v_cvt_pk_bf16_f32 v30, v196, v197\nv_cvt_pk_bf16_f32 v31, v198, v199")
            E("v_lshlrev_b32 v196, 16, v30\nv_and_b32 v197, 0xffff0000, v30\nv_lshlrev_b32 v198, 16, v31\nv_and_b32 v199, 0xffff0000, v31")
            for h in (0, 2): E(f"v_pk_fma_f32 {P(d+h)}, {P(196+h)}, v[28:29], {P(d+h)} op_sel:[0,{ii},0] op_sel_hi:[1,{ii},1]")
    E("v_accvgpr_read_b32 v19, a168\nv_lshlrev_b32 v19, 2, v19")
    E("s_waitcnt vmcnt(0)\ns_barrier")
    E(f"s_cmp_lg_u32 s{S_W}, 0\ns_cbranch_scc1 K2_polled")
    E(f"s_lshl_b32 s{T0}, s{S_KQ}, 2\ns_add_u32 s{T0}, s{T0}, s{S_FLG}\nv_mov_b32 v1, 0\nv_mov_b32 v30, 1\ns_mov_b64 exec, 1")
    E(f"buffer_store_dword v30, v1, s[{RWS}:{RWS+3}], s{T0} offen sc1\ns_mov_b32 s{T2}, 0x40000")
    E(f"K2_poll:\nbuffer_load_dwordx4 v[200:203], v1, s[{RWS}:{RWS+3}], s{S_FLG} offen sc1\ns_waitcnt vmcnt(0)")
    E(f"v_and_b32 v200, v200, v201\nv_and_b32 v202, v202, v203\nv_and_b32 v200, v200, v202\ns_sub_u32 s{T2}, s{T2}, 1\nv_readfirstlane_b32 s{T3}, v200\ns_nop 0")
    E(f"s_cmp_lg_u32 s{T3}, 0\ns_cbranch_scc1 K2_done\ns_cmp_lg_u32 s{T2}, 0\ns_cbranch_scc1 K2_poll\nK2_done:\ns_mov_b64 exec, -1\nK2_polled:\ns_barrier")
    for u in range(8):
        for k in range(3):
            E(f"buffer_load_dwordx4 {vr(160+(u*3+k)*4,4)}, v{20+(u>>2)}, s[{RWS}:{RWS+3}], s{S_RECV+k} offen offset:{(u&3)*1024} sc1")
    E(f"s_movk_i32 s{T0}, 0x2000")
    for u in range(8):
        d = accD(6 + (u >> 2), u & 3); b = 160 + u * 12
        E(f"s_waitcnt vmcnt({21 - 3*u + u})")
        for h in (0, 2): E(f"v_pk_add_f32 {P(b+h)}, {P(b+h)}, {P(b+4+h)}\nv_pk_add_f32 {P(d+h)}, {P(d+h)}, {P(b+8+h)}")
        for h in (0, 2): E(f"v_pk_add_f32 {P(d+h)}, {P(d+h)}, {P(b+h)}")
        E(f"buffer_store_dwordx4 {vr(d,4)}, v19, s[{ROUT}:{ROUT+3}], {'s%d' % T0 if u >> 2 else '0'} offen offset:{(u&3)*64}")

if __name__ == "__main__":
    t, errs = gen()
    print("\n".join(errs[:40])); print(len(errs), "hazards;", t.count("\n"), "lines")
```

```python
import sys, json
import k1, k2
from common import *
REF = open("gated_mix__ssm_conv_s5__glu_gated_geglu__prompt.s.ref").read().split("\n")
def build(c1=None, c2=None):
    t1, e1 = k1.gen(c1); t2, e2 = k2.gen(c2)
    assert not e1 and not e2, (e1 + e2)[:10]
    head = [l for l in REF if l.startswith(";") and "@launch" not in l and "Override" not in l and "grid=ceil" not in l]
    head = head[:18]
    s = "\n".join(head) + "\n"
    s += f"; @launch kernel={k1.NAME} grid=(256,1,1) block=(256,1,1) lds={k1.LDS}\n"
    s += f"; @launch kernel={k2.NAME} grid=(256,1,1) block=(256,1,1) lds={k2.LDS}\n"
    s += '.amdgcn_target "amdgcn-amd-amdhsa--gfx950"\n.text\n' + t1 + t2
    s += '.section .rodata,"a"\n.p2align 6\n' + kernel_desc(k1.NAME) + "\n.p2align 6\n" + kernel_desc(k2.NAME) + "\n"
    return s
if __name__ == "__main__":
    out = sys.argv[1] if len(sys.argv) > 1 else "gated_mix__ssm_conv_s5__glu_gated_geglu__prompt.s"
    c1 = json.loads(sys.argv[2]) if len(sys.argv) > 2 else None
    c2 = json.loads(sys.argv[3]) if len(sys.argv) > 3 else None
    open(out, "w").write(build(c1, c2)); print("wrote", out)
```

```python
import re

class Em:
    def __init__(self):
        self.L = []
        self.q = []
        self.t = 0
        self.age = 8
        self.vq = []
    def I(self, text):
        for ln in text.split("\n"):
            ln = ln.strip()
            if not ln: continue
            tag = None
            if " @" in ln: ln, tag = ln.split(" @")
            self.L.append(ln)
            if ln.startswith("v_mfma"): self.t += 1
            if ln.startswith(("buffer_", "global_")): self.vq.append(tag)
    __call__ = I
    def _wait(self, k):
        while k + 1 < len(self.q) and self.q[k + 1][1] <= self.t - self.age: k += 1
        self.L.append(f"s_waitcnt lgkmcnt({len(self.q)-1-k})"); self.q = self.q[k + 1:]
    def ds(self, text, tag=None):
        if len(self.q) >= 15: self._wait(0)
        self.L.append(text); self.q.append((tag, self.t))
    def need(self, tags):
        idx = [i for i, (t, _) in enumerate(self.q) if t in tags]
        if idx: self._wait(max(idx))
    def drain(self, extra=""):
        self.L.append(f"s_waitcnt lgkmcnt(0) {extra}".strip()); self.q = []
    def vm(self, tag):
        idx = [i for i, t in enumerate(self.vq) if t == tag]
        n = len(self.vq) - 1 - max(idx)
        assert n < 64
        return n
    def text(self): return "\n".join(self.L) + "\n"

def vr(base, n=1, k="v"):
    return f"{k}{base}" if n == 1 else f"{k}[{base}:{base+n-1}]"
def ar(base, n=1): return vr(base, n, "a")
def sr(base, n=1): return vr(base, n, "s")

_reg = re.compile(r"(?<![\w.])(-|abs\()?([vas])(?:(\d+)|\[(\d+):(\d+)\])")
def regs(op):
    out = set()
    for m in _reg.finditer(op):
        k = m.group(2)
        if m.group(3) is not None: out.add((k, int(m.group(3))))
        else: out.update((k, r) for r in range(int(m.group(4)), int(m.group(5)) + 1))
    if re.search(r"\bvcc\b", op): out.add(("s", "vcc"))
    if re.search(r"\bm0\b", op): out.add(("s", "m0"))
    if re.search(r"\bexec\b", op): out.add(("s", "exec"))
    return out
TRANS = ("v_exp_f32", "v_log_f32", "v_rcp_f32", "v_rsq_f32", "v_sqrt_f32", "v_sin_f32", "v_cos_f32")
def parse(ln):
    ln = ln.split(";")[0].strip()
    if not ln or ln.endswith(":") or ln.startswith("."): return None
    parts = ln.split(None, 1); mn = parts[0]; rest = parts[1] if len(parts) > 1 else ""
    ops = [o.strip() for o in re.split(r",(?![^\[]*\])", rest)] if rest else []
    d = dict(mn=mn, ln=ln, w=set(), r=set(), cls="other", ws=1, srcA=set(), srcC=set(), data=set())
    if mn == "s_nop": d["ws"] = int(ops[0], 0) + 1; d["cls"] = "nop"; return d
    if mn.startswith("v_mfma"):
        d["cls"] = "mfma"; d["w"] = regs(ops[0]); d["srcA"] = regs(ops[1]) | regs(ops[2]); d["srcC"] = regs(ops[3].split()[0])
        d["r"] = d["srcA"] | d["srcC"]; d["passes"] = 8 if "32x32" in mn else 4
    elif mn.startswith("v_"):
        d["cls"] = "valu"
        nd = 1
        if mn.startswith(("v_add_co", "v_sub_co", "v_addc_co", "v_subb_co")): nd = 2
        for o in ops[:nd]: d["w"] |= regs(o)
        for o in ops[nd:]: d["r"] |= regs(o)
        if mn.startswith(("v_fmac", "v_pk_fmac", "v_dot2c", "v_writelane")): d["r"] |= d["w"]
        if mn.startswith("v_permlane") and "swap" in mn:
            d["w"] = regs(ops[0]) | regs(ops[1]); d["r"] = set(d["w"]); d["perm"] = True
        if "_dpp" in mn or "row_" in rest or "quad_perm" in rest: d["dpp"] = True
        if mn.startswith(TRANS): d["trans"] = True
        if mn.startswith("v_cndmask") and len(ops) == 3: d["r"].add(("s", "vcc"))
    elif mn.startswith(("buffer_", "global_")):
        d["cls"] = "vmem"
        if mn in ("buffer_wbl2", "buffer_inv"): return d
        st = "store" in mn or "atomic" in mn
        lds = re.search(r"\blds\b", rest) is not None or "load_lds" in mn
        if lds:
            for o in ops: d["r"] |= regs(o)
            d["r"].add(("s", "m0")); d["ldsdma"] = True
        elif mn.startswith("buffer_"):
            if st:
                d["data"] = regs(ops[0])
                for o in ops: d["r"] |= regs(o)
                if "atomic" in mn and re.search(r"\bsc0\b", rest): d["w"] = regs(ops[0])
            else:
                d["w"] = regs(ops[0])
                for o in ops[1:]: d["r"] |= regs(o)
        else:
            if st and not ("atomic" in mn and re.search(r"\bsc0\b", rest)):
                d["data"] = regs(ops[1])
                for o in ops: d["r"] |= regs(o)
            else:
                d["w"] = regs(ops[0])
                for o in ops[1:]: d["r"] |= regs(o)
        d["wide"] = st and ("x4" in mn or "x3" in mn)
    elif mn.startswith("ds_"):
        d["cls"] = "ds"
        if "read" in mn or "permute" in mn or "swizzle" in mn:
            d["w"] = regs(ops[0])
            for o in ops[1:]: d["r"] |= regs(o)
        else:
            for o in ops: d["r"] |= regs(o)
    elif mn.startswith("s_"):
        d["cls"] = "salu"
        if mn.startswith(("s_cmp", "s_cbranch", "s_branch", "s_waitcnt", "s_barrier", "s_endpgm", "s_sleep", "s_setprio")):
            for o in ops: d["r"] |= regs(o)
        else:
            d["w"] = regs(ops[0]) if ops else set()
            for o in ops[1:]: d["r"] |= regs(o)
            if "saveexec" in mn: d["w"].add(("s", "exec"))
    return d

def check(lines, name=""):
    ins = [p for p in (parse(l) for l in lines) if p]
    errs = []
    for i, c in enumerate(ins):
        dist = 0
        for j in range(i - 1, max(-1, i - 24), -1):
            p = ins[j]
            need = 0; why = ""
            def ov(a, b): return a & b
            vg = lambda s: {x for x in s if x[0] in "va"}
            sg = lambda s: {x for x in s if x[0] == "s"}
            if p["cls"] == "valu":
                if c["cls"] == "mfma" and ov(vg(p["w"]), c["r"]): need, why = 2, "valu->mfma"
                if c["cls"] == "valu" and c.get("perm") and ov(vg(p["w"]), c["r"]): need, why = 2, "valu->permlane"
                if c["cls"] == "valu" and c.get("dpp") and ov(vg(p["w"]), c["r"]): need, why = 2, "valu->dpp"
                if c["cls"] == "valu" and c["mn"].startswith(("v_readlane", "v_readfirstlane")) and ov(vg(p["w"]), c["r"]): need, why = max(need, 1), "valu->readlane"
                if p.get("trans") and c["cls"] in ("valu",) and not c.get("trans") and ov(vg(p["w"]), c["r"]): need, why = max(need, 1), "trans->valu"
                if p.get("trans") and c["cls"] in ("vmem", "ds") and ov(vg(p["w"]), c["r"]): need, why = max(need, 1), "trans->mem"
                if c["cls"] == "vmem" and ov(sg(p["w"]), c["r"]): need, why = 5, "valu sgpr->vmem"
                if c["cls"] == "valu" and ov(sg(p["w"]), c["r"]): need, why = max(need, 4 if c["mn"].startswith(("v_readlane", "v_writelane")) else 2), "valu sgpr->valu"
                if c["cls"] == "salu" and ov(sg(p["w"]), c["r"]): need, why = max(need, 1), "valu sgpr->salu(pad)"
            if p["cls"] == "mfma":
                ps = p["passes"]; full = {4: 8, 8: 12}[ps]
                if c["cls"] == "mfma":
                    if ov(p["w"], c["srcA"]): need, why = full, "mfma D->mfma A/B"
                    elif ov(p["w"], c["srcC"]) and (p["w"] != c["srcC"] or c["passes"] != ps): need, why = {4: 6, 8: 10}[ps], "mfma D->overlapping C"
                elif c["cls"] in ("valu", "vmem", "ds") and ov(p["w"], c["r"] | c["w"]): need, why = full, "mfma D->" + c["cls"]
                if c["cls"] == "valu" and ov(p["srcC"], c["w"]): need, why = max(need, {4: 3, 8: 7}[ps]), why or "mfma C WAR"
            if p["cls"] == "vmem" and p.get("wide") and ov(p["data"], c["w"]):
                need, why = (2 if c["cls"] in ("valu", "mfma") else 1), "wide store WAR"
            if p["cls"] == "salu" and ("s", "m0") in p["w"] and c.get("ldsdma"): need, why = 1, "m0->ldsdma"
            if p["cls"] == "salu" and ("s", "exec") in p["w"] and False: pass
            if need > dist: errs.append(f"{name}: {why} needs {need} has {dist}: [{p['ln']}] -> [{c['ln']}]")
            dist += p["ws"]
            if dist >= 20: break
    return errs

_lit = re.compile(r"(?<![\w\[:])(0x[0-9a-fA-F]+|-?\d+\.\d+(?:e-?\d+)?|-?\d+)(?![\w\]:])")
```

```python
from asmlib import *
ACT_OFF = 4096
G_OFF   = 0x1700000
AGG_OFF = G_OFF + 0x4000
EPO_OFF = AGG_OFF + 0x20000
FLG_OFF = AGG_OFF + 0x21000
XCH_OFF = 0x1800000
WS_SIZE = 0x3800000
LOG2E = 1.4426950408889634
import struct
def f2u(x): return struct.unpack("<I", struct.pack("<f", x))[0]
def hexf(x): return f"0x{f2u(x):08x}"
def srd(E, d, lo, size):
    E(f"s_mov_b32 s{d}, s{lo}\ns_and_b32 s{d+1}, s{lo+1}, 0xffff\ns_mov_b32 s{d+2}, {size}\ns_mov_b32 s{d+3}, 0x20000")
def kernel_head(name):
    return f".globl {name}\n.p2align 8\n.type {name},@function\n{name}:"
def kernel_desc(name, vgpr=512, sgpr=100, acc=256):
    return (f".amdhsa_kernel {name}\n  .amdhsa_next_free_vgpr {vgpr}\n  .amdhsa_next_free_sgpr {sgpr}\n  .amdhsa_accum_offset {acc}\n"
            "  .amdhsa_group_segment_fixed_size 0\n  .amdhsa_kernarg_size 136\n  .amdhsa_user_sgpr_count 2\n"
            "  .amdhsa_user_sgpr_kernarg_segment_ptr 1\n  .amdhsa_system_sgpr_workgroup_id_x 1\n"
            "  .amdhsa_float_denorm_mode_32 3\n.end_amdhsa_kernel")
def place(gaps, start, items, step=1, room=1):
    g = start
    for it in items:
        while len(gaps[g]) > room: g += 1
        gaps[g].append(it); g += step
    return g

STAMP_OFF = 0x3900000
def stamp(E, cfg, k):
    if cfg.get("stamps"): E(f"s_memrealtime s[{82+2*(k%2)}:{83+2*(k%2)}]\ns_waitcnt lgkmcnt(0)\ns_mov_b32 s{86+k}, s{82+2*(k%2)}")
def stamp_flush(E, cfg, ptr, kern, wave):
    if not cfg.get("stamps"): return
    E(f"s_add_u32 s82, s{ptr}, {STAMP_OFF + kern*65536}\ns_addc_u32 s83, s{ptr+1}, 0")
    E(f"s_lshl_b32 s84, s2, 2\ns_add_u32 s84, s84, s{wave}\ns_lshl_b32 s84, s84, 5\nv_mov_b32 v1, s84")
    for k in range(8): E(f"v_mov_b32 v{2+k}, s{86+k}")
    E("s_mov_b64 exec, 1\nglobal_store_dwordx4 v1, v[2:5], s[82:83]\nglobal_store_dwordx4 v1, v[6:9], s[82:83] offset:16\ns_mov_b64 exec, -1")

def lines(text_list):
    out = []
    for t in text_list:
        out += [x.strip() for x in t.split("\n") if x.strip()]
    return out
class Rec:
    def __init__(self): self.L = []
    def __call__(self, t): self.L += [x.strip() for x in t.split("\n") if x.strip()]
def fill(gaps, items, lo, hi, cap=2):
    def cost(g): return sum(2 if it[1].startswith(("v_exp", "v_rcp", "v_sin", "v_cos", "v_permlane")) else 1 for it in g)
    items = [x for x in items if not x.startswith("s_nop")]
    g = lo
    for it in items:
        c = 2 if it.startswith(("v_exp", "v_rcp", "v_sin", "v_cos", "v_permlane")) else 1
        while cost(gaps[g]) + c > max(cap, c) or (c == 2 and cost(gaps[g]) + c > cap and gaps[g]): g += 1
        assert g < hi, (len(items), lo, hi)
        gaps[g].append(("raw", it))
    return g
def fix_hazards(L, name):
    import re
    for _ in range(200):
        errs = check(L, name)
        if not errs: return L
        m = re.match(r".*needs (\d+) has (\d+): \[(.*)\] -> \[(.*)\]", errs[0])
        need, has, a, b = int(m.group(1)), int(m.group(2)), m.group(3), m.group(4)
        for i in range(len(L)):
            if L[i].split(";")[0].strip() == b and any(L[j].split(";")[0].strip() == a for j in range(max(0, i - 24), i)):
                sub = check(L[max(0, i - 24):i + 1], name)
                if any(e.endswith(f"[{a}] -> [{b}]") for e in sub):
                    L.insert(i, f"s_nop {need - has - 1}"); break
        else: raise RuntimeError(errs[0])
    raise RuntimeError("hazard fixing did not converge")

SEG_OFF = 0x3700000
def segstamp_init(E, cfg, kern, wave):
    if cfg.get("segs"): E(f"s_lshl_b32 s94, s2, 2\ns_add_u32 s94, s94, s{wave}\ns_lshl_b32 s94, s94, 7\ns_add_u32 s94, s94, {SEG_OFF + kern*0x20000}")
def segstamp(E, cfg, rws):
    if cfg.get("segs"):
        E(f"{'s_memtime' if cfg['segs'] == 2 else 's_memrealtime'} s[82:83]\ns_waitcnt lgkmcnt(0)\nv_accvgpr_write_b32 a251, s82\ns_nop 1\nbuffer_store_dword a251, off, s[{rws}:{rws+3}], s94\ns_add_u32 s94, s94, 4")
```

```python
from common import *
NAME = "proj_scan_kernel"
GOFF = 65536; WBUF = 28688; UOFF = 14352; BOFF = GOFF + 2 * WBUF; SCR = 139520; LDS = SCR + 2048
MF = "v_mfma_f32_16x16x32_bf16"
S_W, S_MT, S_NT, S_WM, S_WN = 3, 4, 5, 6, 7
RX, RW, RB, RWS, RDBG, RAGG = 8, 12, 16, 20, 24, 28
S_KX, S_KW, S_MX, S_MW, S_MB, S_CNT = 32, 33, 34, 35, 64, 65
T0, T1, T2, T3 = 66, 67, 68, 69
V_X, V_W, V_B = 2, 10, 17
V_RX, V_RW, V_RM, V_RB = 19, 21, 22, 23
A_XF, A_WF = 64, 192
A_LAM, A_C2, A_L16, A_L32, A_L256, A_L32P = 216, 218, 220, 222, 224, 226
def acc(g, i):
    return ("v", 32 + g * 32 + 4 * i) if g < 7 else ("a", (g - 7) * 32 + 4 * i)
def accs(g, i): k, r = acc(g, i); return vr(r, 4, k)
def xf(b, s, i): return A_XF + b * 64 + (s * 8 + i) * 4
def wf(slot, s): return A_WF + slot * 8 + s * 4

def cmul(E, dr, di, ar_, ai, br, bi):
    E(f"v_mul_f32 v{dr}, v{ar_}, v{br}\nv_mul_f32 v{di}, v{ar_}, v{bi}")
    E(f"v_fma_f32 v{dr}, -v{ai}, v{bi}, v{dr}\nv_fma_f32 v{di}, v{ai}, v{br}, v{di}")
def cfma(E, dr, di, ar_, ai, br, bi, cr, ci):
    E(f"v_fma_f32 v{dr}, v{ar_}, v{br}, v{cr}\nv_fma_f32 v{di}, v{ar_}, v{bi}, v{ci}")
    E(f"v_fma_f32 v{dr}, -v{ai}, v{bi}, v{dr}\nv_fma_f32 v{di}, v{ai}, v{br}, v{di}")
def lam_of(E, lre, lim, ldt, o, t):
    E(f"v_lshlrev_b32 v{lre}, 16, v{lre}\nv_lshlrev_b32 v{lim}, 16, v{lim}\nv_lshlrev_b32 v{ldt}, 16, v{ldt}")
    E(f"v_mul_f32 v{ldt}, {hexf(LOG2E)}, v{ldt}\nv_exp_f32 v{ldt}, v{ldt}\ns_nop 0")
    E(f"v_cvt_pk_bf16_f32 v{ldt}, v{ldt}, v{ldt}\nv_lshlrev_b32 v{ldt}, 16, v{ldt}")
    E(f"v_mul_f32 v{t}, v{ldt}, v{lre}\nv_mul_f32 v{t+1}, v{ldt}, v{lim}")
    E(f"v_mul_f32 v{t}, {hexf(LOG2E)}, v{t}\nv_mul_f32 v{t+1}, 0.15915494309189535, v{t+1}")
    E(f"v_exp_f32 v{t}, v{t}\nv_rndne_f32 v{t+2}, v{t+1}\nv_sub_f32 v{t+1}, v{t+1}, v{t+2}")
    E(f"v_cos_f32 v{t+2}, v{t+1}\nv_sin_f32 v{t+3}, v{t+1}\ns_nop 0")
    E(f"v_mul_f32 v{o}, v{t}, v{t+2}\nv_mul_f32 v{o+1}, v{t}, v{t+3}")
def csq(E, d, a):
    E(f"v_mul_f32 v{d}, v{a}, v{a}\nv_mul_f32 v{d+1}, v{a}, v{a+1}")
    E(f"v_fma_f32 v{d}, -v{a+1}, v{a+1}, v{d}\nv_add_f32 v{d+1}, v{d+1}, v{d+1}")
def stash(E, a, v): E(f"v_accvgpr_write_b32 a{a}, v{v}\nv_accvgpr_write_b32 a{a+1}, v{v+1}")
def unstash(E, v, a): E(f"v_accvgpr_read_b32 v{v}, a{a}\nv_accvgpr_read_b32 v{v+1}, a{a+1}")

def dma_ops(buf):
    ops = []
    for j in range(7): ops.append((f"s_add_u32 m0, s{S_MW}, {buf*WBUF + j*1024}", f"buffer_load_dwordx4 v{V_W+j}, s[{RW}:{RW+3}], s{S_KW} offen lds", f"s_add_u32 s{S_KW}, s{S_KW}, {64*7168}" if j == 6 else None))
    for j in range(2): ops.append((f"s_add_u32 m0, s{S_MB}, {buf*8192 + j*1024}", f"buffer_load_dwordx4 v{V_B+j}, s[{RB}:{RB+3}], s{S_KX} offen lds", None))
    for j in range(8): ops.append((f"s_add_u32 m0, s{S_MX}, {buf*32768 + j*1024}", f"buffer_load_dwordx4 v{V_X+j}, s[{RX}:{RX+3}], s{S_KX} offen lds", f"s_add_u32 s{S_KX}, s{S_KX}, 128" if j == 7 else None))
    return ops
def rd_x(b, s, i):
    return (f"ds_read_b128 {ar(xf(b,s,i),4)}, v{V_RX+s} offset:{b*32768 + i*2048}", ("x", b, s, i))
def rd_w(b, g, slot, s):
    r = wf(slot, s)
    if g < 2: return [(f"ds_read_b128 {ar(r,4)}, v{V_RB+s} offset:{b*8192 + g*4096}", ("w", slot, s, 0))]
    if g < 8: base, off = V_RW, b * WBUF + ((g - 2) & 1) * UOFF + s * 7168 + ((g - 2) >> 1) * 32
    else: base, off = V_RM, b * WBUF + s * 7168
    return [(f"ds_read_b64_tr_b16 {ar(r+2*h,2)}, v{base} offset:{off + h*1792}", ("w", slot, s, h)) for h in (0, 1)]
def mfma_group(E, st, g, gaps, n, first=False):
    slot = (st * 9 + g) % 3
    for i in range(8):
        for s in (0, 1):
            E.need([("w", slot, s, 0), ("w", slot, s, 1), ("x", st, s, i)])
            a = accs(g, i); w_ = ar(wf(slot, s), 4); x_ = ar(xf(st, s, i), 4)
            c = "0" if first and s == 0 else a
            E(f"{MF} {a}, {x_}, {w_}, {c}" if g < 2 else f"{MF} {a}, {w_}, {x_}, {c}")
            for it in gaps[n]:
                if it[0] == "ds": E.ds(it[1], it[2])
                else: E(it[1])
            n += 1
    return n
def segment(E, prev, dma, cfg, vm=0, touch=False, extra=None, tail=None, spread=None):
    nxt = 1 - prev
    gaps = [[] for _ in range(146)]
    xq = [rd_x(nxt, s, i) for i in range(8) for s in (0, 1)]
    seq = [(prev, 7), (prev, 8)] + [(nxt, g) for g in range(7)]
    for p, (st, g) in enumerate(seq):
        gn = g + 2
        b, j = (st, gn) if gn < 9 else (nxt, gn - 9)
        w = [it for s in (0, 1) for it in rd_w(b, j, (st * 9 + g + 2) % 3, s)]
        if p < 2:
            for k, it in enumerate(xq[p*8:p*8+8] + w): gaps[p*16 + k].append(("ds",) + it)
        else:
            for k, it in enumerate(w): gaps[p*16 + 1 + 2*k].append(("ds",) + it)
    g = cfg.get("dma_start", 0)
    if dma:
        for m, d, adv in dma_ops(prev):
            while len(gaps[g]) > 1 or len(gaps[g+1]) > 1: g += 1
            gaps[g].append(("raw", m)); gaps[g+1].append(("raw", d))
            if adv: gaps[g+2].append(("raw", adv))
            g += cfg.get("dma_every", 5)
    if touch:
        gaps[g].append(("raw", TOUCH)); gaps[g+2].append(("raw", TOUCH_ADV))
    if tail:
        g += 4
        for it in tail:
            while len(gaps[g]) > 0: g += 1
            gaps[g].append(("raw", it)); g += 4
    if extra: fill(gaps, extra, 0, 144)
    if spread:
        g = 13
        for it in spread:
            while len(gaps[g]) > 0: g += 1
            gaps[g].append(("raw", it)); g += 6
    E.drain(f"vmcnt({vm})")
    E("s_barrier")
    segstamp(E, cfg, RWS)
    n = 0
    for st, g in seq: n = mfma_group(E, st, g, gaps, n)
    assert not any(gaps[n:])

TOUCH = "global_load_dword a254, v[26:27], off"
TOUCH_ADV = "v_lshl_add_u64 v[26:27], v[28:29], 0, v[26:27]"
def touch_setup(E):
    E(f"s_lshl_b32 s74, s2, 2\ns_add_u32 s74, s74, s{S_W}")
    E(f"s_lshl_b32 s75, s{S_MT}, 2\ns_and_b32 s76, s{S_NT}, 3\ns_add_u32 s76, s76, s75\ns_lshl_b32 s76, s76, 2\ns_add_u32 s76, s76, s{S_W}")
    E(f"s_add_u32 s75, s75, s{S_W}\ns_lshl_b32 s77, s{S_NT}, 5\ns_add_u32 s75, s75, s77\ns_lshl_b32 s75, s75, 11\ns_add_u32 s75, s75, 128")
    E(f"s_lshr_b32 s77, s76, 1\ns_add_u32 s77, s77, 64\ns_mul_i32 s77, s77, 7168\ns_lshr_b32 s78, s{S_NT}, 2\ns_mul_i32 s78, s78, 896\ns_add_u32 s77, s77, s78\ns_sub_u32 s77, s77, 512")
    E("s_and_b32 s76, s76, 1\ns_cmp_eq_u32 s76, 0\ns_cselect_b32 s78, s52, s54\ns_cselect_b32 s79, s53, s55")
    E("v_cmp_gt_u32 vcc, 26, v0\ns_lshl_b32 s76, s74, 12\ns_add_u32 s76, s76, 128\nv_cndmask_b32 v25, 0, v0, vcc")
    E("v_lshlrev_b32 v30, 11, v25\nv_add_u32 v30, s76, v30\nv_mov_b32 v26, s36\nv_mov_b32 v27, s37\nv_mov_b32 v28, 128\nv_mov_b32 v29, 0")
    def sel(first, lo, hi, off, step=None):
        E(f"v_cmp_le_u32 vcc, {first}, v25\n{off}\nv_mov_b32 v1, s{lo}")
        E(f"v_cndmask_b32 v30, v30, v31, vcc\nv_cndmask_b32 v26, v26, v1, vcc\nv_mov_b32 v1, s{hi}\nv_cndmask_b32 v27, v27, v1, vcc")
        if step is not None: E(f"v_mov_b32 v1, {step}\nv_cndmask_b32 v28, v28, v1, vcc")
    sel(2, 42, 43, "v_mov_b32 v31, s75")
    sel(3, 44, 45, "v_mov_b32 v31, s75")
    sel(4, 78, 79, "v_lshlrev_b32 v31, 7, v25\nv_add_u32 v31, s77, v31", 64 * 7168)
    E(f"s_mul_i32 s75, s74, {56*128}\ns_sub_u32 s75, s75, {11*11*128}\ns_lshl_b32 s76, s74, 11\ns_sub_u32 s77, s76, {16*512}\ns_sub_u32 s76, s76, {18*512}")
    sel(11, 56, 57, f"v_mul_u32_u24 v31, {11*128}, v25\nv_add_u32 v31, s75, v31", 128)
    sel(16, 46, 47, "v_lshlrev_b32 v31, 9, v25\nv_add_u32 v31, s77, v31")
    sel(18, 48, 49, "v_lshlrev_b32 v31, 9, v25\nv_add_u32 v31, s76, v31")
    sel(20, 58, 59, f"v_lshlrev_b32 v31, 9, v25\nv_subrev_u32 v31, {20*512}, v31")
    E(f"s_lshl_b32 s75, s{S_NT}, 6")
    sel(22, 38, 39, "v_mov_b32 v31, s75", "0")
    sel(23, 40, 41, "v_mov_b32 v31, s75")
    sel(24, 50, 51, "v_mov_b32 v31, s75")
    sel(25, 80, 81, "v_mov_b32 v31, 0", 128)
    E("v_mov_b32 v31, 0\nv_lshl_add_u64 v[26:27], v[30:31], 0, v[26:27]")

def gate_stream():
    E = Rec()
    a, b, c, d = 26, 27, 28, 29
    for k in range(8):
        E(f"v_accvgpr_read_b32 v1, a{216+k}\nv_lshlrev_b32 v{b}, 16, v1\nv_and_b32 v{d}, 0xffff0000, v1")
        for u, s_ in ((0, a), (1, c)):
            E(f"v_accvgpr_read_b32 v25, a{224+8*u+k}\nv_lshlrev_b32 v30, 16, v25\nv_and_b32 v31, 0xffff0000, v25")
            E(f"v_mul_f32 v30, v30, v{b}\nv_mul_f32 v31, v31, v{d}\nv_cvt_pk_bf16_f32 v25, v30, v31")
            E("v_lshlrev_b32 v30, 16, v25\nv_and_b32 v31, 0xffff0000, v25")
            if k == 0: E(f"v_add_f32 v{s_}, v30, v31")
            else: E(f"v_add_f32 v{s_}, v{s_}, v30\nv_add_f32 v{s_}, v{s_}, v31")
    t = 25
    for sh in (8, 4, 2, 1):
        E(f"v_add_f32_dpp v{a}, v{a}, v{a} row_ror:{sh} row_mask:0xf bank_mask:0xf\nv_add_f32_dpp v{c}, v{c}, v{c} row_ror:{sh} row_mask:0xf bank_mask:0xf")
    for sw in (16, 32):
        E(f"v_mov_b32 v{b}, v{a}\nv_mov_b32 v{d}, v{c}\nv_permlane{sw}_swap_b32 v{a}, v{b}\nv_permlane{sw}_swap_b32 v{c}, v{d}")
        E(f"v_add_f32 v{a}, v{a}, v{b}\nv_add_f32 v{c}, v{c}, v{d}")
    E(f"v_cvt_pk_bf16_f32 v{t}, v{a}, v{c}\nv_lshlrev_b32 v{a}, 16, v{t}\nv_and_b32 v{c}, 0xffff0000, v{t}")
    E(f"v_mul_f32 v{a}, {hexf(-LOG2E)}, v{a}\nv_mul_f32 v{c}, {hexf(-LOG2E)}, v{c}\nv_exp_f32 v{a}, v{a}\nv_exp_f32 v{c}, v{c}")
    E(f"v_add_f32 v{a}, 1.0, v{a}\nv_add_f32 v{c}, 1.0, v{c}\nv_rcp_f32 v{a}, v{a}\nv_rcp_f32 v{c}, v{c}")
    E(f"v_cvt_pk_bf16_f32 v{t}, v{a}, v{c}\nv_lshlrev_b32 v{a}, 16, v{t}\nv_and_b32 v{c}, 0xffff0000, v{t}")
    E(f"v_sub_f32 v{b}, 1.0, v{a}\nv_sub_f32 v{d}, 1.0, v{c}\nv_cvt_pk_bf16_f32 v{t}, v{b}, v{d}\nv_lshlrev_b32 v{b}, 16, v{t}\nv_and_b32 v{d}, 0xffff0000, v{t}")
    return E.L
def param_stream():
    E = Rec()
    for k in range(3): E(f"v_accvgpr_read_b32 v{2+k}, a{240+k}")
    lam_of(E, 2, 3, 4, 6, 10)
    stash(E, A_LAM, 6)
    E("v_add_f32 v10, -1.0, v6\nv_mul_f32 v11, v2, v2\nv_fma_f32 v11, v3, v3, v11\nv_rcp_f32 v11, v11")
    E("v_mul_f32 v12, v10, v2\nv_mul_f32 v13, v7, v2\nv_fma_f32 v12, v7, v3, v12\nv_fma_f32 v13, -v10, v3, v13")
    E("v_add_f32 v11, v11, v11\nv_mul_f32 v12, v12, v11\nv_mul_f32 v13, v13, v11")
    stash(E, A_C2, 12)
    a, b = 6, 8
    for k in range(1, 9):
        csq(E, b, a); a, b = b, a
        if k == 4: stash(E, A_L16, a)
        if k == 5: stash(E, A_L32, a)
        if k == 8: stash(E, A_L256, a)
    for k in range(3): E(f"v_accvgpr_read_b32 v{2+k}, a{243+k}")
    lam_of(E, 2, 3, 4, 6, 10)
    a, b = 6, 8
    for k in range(1, 6): csq(E, b, a); a, b = b, a
    stash(E, A_L32P, a)
    return E.L

def gelu_quads(E, quads, T=(6, 8, 12, 14)):
    K = "v[30:31]"
    P = lambda r: vr(r, 2)
    for (g, u), t in zip(quads, T): E(f"v_pk_mul_f32 {P(t)}, {P(g)}, {P(g)}")
    for (g, u), t in zip(quads, T): E(f"v_pk_fma_f32 {P(t)}, {P(t)}, {K}, {K} op_sel:[0,1,0] op_sel_hi:[1,1,0]")
    for (g, u), t in zip(quads, T): E(f"v_pk_mul_f32 {P(t)}, {P(t)}, {P(g)}")
    for (g, u), t in zip(quads, T): E(f"v_exp_f32_e64 v{t}, v{t}\nv_exp_f32_e64 v{t+1}, v{t+1}")
    for (g, u), t in zip(quads, T): E(f"v_pk_add_f32 {P(t)}, {P(t)}, 1.0 op_sel_hi:[1,0]")
    for (g, u), t in zip(quads, T): E(f"v_rcp_f32_e64 v{t}, v{t}\nv_rcp_f32_e64 v{t+1}, v{t+1}")
    for (g, u), t in zip(quads, T): E(f"v_pk_mul_f32 {P(u)}, {P(u)}, {P(g)}")
    for (g, u), t in zip(quads, T): E(f"v_pk_mul_f32 {P(u)}, {P(u)}, {P(t)}")

def gen(cfg=None):
    cfg = cfg or {}
    st_aux = cfg.get("st_aux", "")
    E = Em()
    E(kernel_head(NAME))
    E("s_cmp_ge_u32 s2, 256\ns_cbranch_scc1 K1_end")
    stamp(E, cfg, 0)
    E("s_load_dwordx16 s[36:51], s[0:1], 0\ns_load_dwordx8 s[52:59], s[0:1], 80\ns_load_dwordx4 s[60:63], s[0:1], 120\ns_load_dwordx2 s[80:81], s[0:1], 64")
    E(f"v_lshrrev_b32 v1, 6, v0\nv_and_b32 v0, 63, v0\nv_readfirstlane_b32 s{S_W}, v1")
    E(f"s_lshr_b32 s{S_MT}, s2, 5\ns_and_b32 s{T0}, s2, 7\ns_lshr_b32 s{T1}, s2, 3\ns_and_b32 s{T1}, s{T1}, 3")
    E(f"s_lshl_b32 s{S_NT}, s{T0}, 2\ns_add_u32 s{S_NT}, s{S_NT}, s{T1}")
    E(f"s_lshr_b32 s{S_WM}, s{S_W}, 1\ns_and_b32 s{S_WN}, s{S_W}, 1")
    E("v_lshrrev_b32 v25, 3, v0\nv_and_b32 v26, 7, v0")
    E("v_lshrrev_b32 v27, 2, v25\nv_lshlrev_b32 v27, 5, v27")
    E("v_and_b32 v28, 1, v25\nv_lshl_add_u32 v27, v28, 4, v27")
    E("v_lshrrev_b32 v28, 1, v25\nv_and_b32 v29, 1, v28\nv_add_u32 v27, v27, v29")
    E("v_xor_b32 v29, v26, v28\nv_lshlrev_b32 v29, 4, v29")
    E("v_xor_b32 v30, 64, v29")
    E(f"s_lshl_b32 s{T0}, s{S_MT}, 8\ns_lshl_b32 s{T1}, s{S_WM}, 7\ns_add_u32 s{T0}, s{T0}, s{T1}")
    E(f"s_lshl_b32 s{T1}, s{S_WN}, 3\ns_add_u32 s{T0}, s{T0}, s{T1}")
    E(f"v_add_u32 v27, s{T0}, v27\nv_lshlrev_b32 v27, 11, v27")
    E(f"v_add_u32 v{V_X}, v27, v29\nv_add_u32 v{V_X+1}, v27, v30\nv_add_u32 v{V_X+1}, {64*2048}, v{V_X+1}")
    for j in range(2, 8): E(f"v_add_u32 v{V_X+j}, {2*2048}, v{V_X+j-2}")
    E(f"s_lshl_b32 s{T0}, s{S_NT}, 5\ns_lshl_b32 s{T1}, s{S_WN}, 4\ns_add_u32 s{T0}, s{T0}, s{T1}")
    E(f"v_add_u32 v27, s{T0}, v25\nv_lshlrev_b32 v27, 11, v27")
    E(f"v_add_u32 v{V_B}, v27, v29\nv_add_u32 v{V_B+1}, v27, v30\nv_add_u32 v{V_B+1}, {8*2048}, v{V_B+1}")
    E(f"s_mul_i32 s{T1}, s{S_NT}, 224\ns_mul_i32 s{T2}, s{S_WN}, {32*7168}\ns_add_u32 s{T1}, s{T1}, s{T2}\ns_movk_i32 s{T2}, 7168")
    for j in range(7):
        E(f"v_add_u32 v25, {64*j}, v0\nv_mul_u32_u24 v26, 4682, v25\nv_lshrrev_b32 v26, 16, v26")
        E("v_mul_u32_u24 v27, 14, v26\nv_sub_u32 v27, v25, v27")
        E("v_and_b32 v28, 19, v26\nv_and_b32 v29, 4, v26\nv_lshl_or_b32 v28, v29, 1, v28")
        E("v_and_b32 v29, 8, v26\nv_lshrrev_b32 v29, 1, v29\nv_or_b32 v28, v28, v29")
        E(f"v_mul_u32_u24 v28, s{T2}, v28\nv_lshl_add_u32 v28, v27, 4, v28\nv_add_u32 v{V_W+j}, s{T1}, v28")
    E(f"s_lshl_b32 s{S_MX}, s{S_W}, 13")
    E(f"s_mul_i32 s{S_MW}, s{S_WM}, {UOFF}\ns_mul_i32 s{T1}, s{S_WN}, 7168\ns_add_u32 s{S_MW}, s{S_MW}, s{T1}\ns_add_u32 s{S_MW}, s{S_MW}, {GOFF}")
    E(f"s_lshl_b32 s{S_MB}, s{S_W}, 11\ns_add_u32 s{S_MB}, s{S_MB}, {BOFF}")
    E(f"s_mov_b32 s{S_KX}, 0\ns_mov_b32 s{S_KW}, 0")
    E("v_and_b32 v25, 15, v0\nv_lshrrev_b32 v26, 4, v0")
    E("v_lshrrev_b32 v27, 1, v25\nv_xor_b32 v27, v27, v26\nv_lshlrev_b32 v27, 4, v27\nv_lshl_add_u32 v27, v25, 7, v27")
    E(f"s_lshl_b32 s{T1}, s{S_WM}, 14\nv_add_u32 v{V_RX}, s{T1}, v27\nv_xor_b32 v{V_RX+1}, 64, v{V_RX}")
    E(f"s_lshl_b32 s{T1}, s{S_WN}, 11\ns_add_u32 s{T1}, s{T1}, {BOFF}\nv_xor_b32 v28, 64, v27\nv_add_u32 v{V_RB}, s{T1}, v27\nv_add_u32 v{V_RB+1}, s{T1}, v28")
    E("v_lshrrev_b32 v27, 5, v0\nv_lshlrev_b32 v27, 4, v27\nv_and_b32 v28, 1, v26\nv_lshl_add_u32 v27, v28, 2, v27")
    E("v_bfe_u32 v28, v0, 2, 2\nv_add_u32 v27, v27, v28\nv_mul_u32_u24 v27, 224, v27")
    E(f"s_mul_i32 s{T1}, s{S_WN}, 112\ns_add_u32 s{T1}, s{T1}, {GOFF}\nv_add_u32 v27, s{T1}, v27")
    E(f"v_and_b32 v28, 3, v0\nv_lshl_add_u32 v{V_RW}, v28, 3, v27")
    E(f"v_and_b32 v28, 1, v0\nv_lshl_add_u32 v27, v28, 3, v27\nv_bfe_u32 v28, v0, 1, 1\nv_mul_u32_u24 v28, {UOFF}, v28")
    E(f"v_add_u32 v27, 96, v27\nv_add_u32 v{V_RM}, v27, v28")
    E("s_waitcnt lgkmcnt(0)")
    srd(E, RX, 36, 2048 * 2048)
    E(f"s_cmp_eq_u32 s{S_WM}, 0\ns_cselect_b32 s{T2}, s52, s54\ns_cselect_b32 s{T3}, s53, s55")
    srd(E, RW, T2, 1024 * 7168)
    E(f"s_cmp_eq_u32 s{S_WM}, 0\ns_cselect_b32 s{T2}, s42, s44\ns_cselect_b32 s{T3}, s43, s45")
    srd(E, RB, T2, 1024 * 2048)
    srd(E, RWS, 62, WS_SIZE)
    srd(E, RDBG, 60, 256)
    E(f"s_add_u32 s{T2}, s62, {AGG_OFF}\ns_addc_u32 s{T3}, s63, 0")
    srd(E, RAGG, T2, 131072)
    stamp(E, cfg, 1)
    ops = dma_ops(0)
    for m, d, adv in ops[7:] + ops[:7]:
        E(m); E("s_nop 0"); E(d + (" @w0" if "s[%d:" % RW in d else " @x0"))
        if adv: E(adv)
    touch_setup(E)
    npre = cfg.get("npre", 3)
    T1ST = f"s_mov_b64 exec, 0x7ff\n{TOUCH}\n{TOUCH_ADV}\ns_mov_b64 exec, -1"
    for _ in range(npre): E(T1ST)
    E(f"s_mov_b32 s77, {EPO_OFF}\ns_lshl_b32 s78, s2, 2\ns_add_u32 s78, s78, s{S_W}\nbuffer_load_dword a250, off, s[{RWS}:{RWS+3}], s77 sc1")
    E(f"s_getpc_b64 s[74:75]\nK1_pc0:\ns_lshl_b32 s76, s{S_W}, 13\nv_lshlrev_b32 v1, 7, v0\nv_add_u32 v1, s76, v1")
    E("global_load_dword a255, v1, s[74:75]\ns_add_u32 s74, s74, 0x8000\ns_addc_u32 s75, s75, 0\nv_min_u32 v1, K2_end-K1_pc0-0x8000, v1")
    E(f"s_lshl_b32 s70, s{S_MT}, 8\ns_lshl_b32 s{T1}, s{S_NT}, 3\ns_add_u32 s70, s70, s{T1}\ns_lshl_b32 s{T1}, s{S_W}, 1\ns_add_u32 s70, s70, s{T1}")
    E(f"s_and_b32 s73, s70, 0xff80\ns_bfe_u32 s{T1}, s70, 0x30004\ns_lshl_b32 s{T1}, s{T1}, 1\ns_add_u32 s73, s73, s{T1}")
    E(f"s_bfe_u32 s{T1}, s70, 0x20002\ns_lshl_b32 s{T1}, s{T1}, 5\ns_add_u32 s73, s73, s{T1}")
    E(f"s_bfe_u32 s{T1}, s70, 0x10001\ns_add_u32 s73, s73, s{T1}\ns_lshl_b32 s73, s73, 11\ns_add_u32 s72, s73, {16*2048}")
    E(f"s_lshl_b32 s70, s70, 3\ns_add_u32 s70, s70, {G_OFF}\ns_lshl_b32 s71, s2, 5\ns_add_u32 s71, s71, {FLG_OFF}")
    small = lines(["global_load_ushort a240, v25, s[38:39]\nglobal_load_ushort a241, v25, s[40:41]\nglobal_load_ushort a242, v25, s[50:51]",
        "global_load_ushort a243, v30, s[38:39]\nglobal_load_ushort a244, v30, s[40:41]\nglobal_load_ushort a245, v30, s[50:51]",
        "global_load_dwordx4 a[216:219], v31, s[58:59]\nglobal_load_dwordx4 a[220:223], v31, s[58:59] offset:1024",
        f"buffer_load_dwordx4 a[224:227], v31, s[{RX}:{RX+3}], s73 offen\nbuffer_load_dwordx4 a[228:231], v31, s[{RX}:{RX+3}], s73 offen offset:1024",
        f"buffer_load_dwordx4 a[232:235], v31, s[{RX}:{RX+3}], s72 offen\nbuffer_load_dwordx4 a[236:239], v31, s[{RX}:{RX+3}], s72 offen offset:1024",
        ])
    for r in range(64): E(f"v_accvgpr_write_b32 a{r}, 0")
    E(f"s_waitcnt vmcnt({E.vm('x0')}) lgkmcnt(0)\ns_barrier")
    stamp(E, cfg, 2)
    segstamp_init(E, cfg, 0, S_W)
    gaps = [[] for _ in range(146)]
    for g in (0, 1):
        for s in (0, 1):
            for it in rd_w(0, g, g, s): E.ds(*it)
        for i in range(4 * g, 4 * g + 4):
            for s in (0, 1): E.ds(*rd_x(0, s, i))
    n = 0
    for g in range(7):
        w = [it for s in (0, 1) for it in rd_w(0, g + 2, (g + 2) % 3, s)]
        for k, it in enumerate(w): gaps[(17 + k) if g == 0 else (21 + k) if g == 1 else (g*16 + 1 + 2*k)].append(("ds",) + it)
    nd = 3 - npre
    for k in range(nd): gaps[2*k].append(("raw", T1ST))
    g = 2 * nd
    for m, d, adv in dma_ops(1):
        while len(gaps[g]) > 1 or len(gaps[g+1]) > 1 or g in (14, 15, 16): g += 1
        gaps[g].append(("raw", m)); gaps[g+1].append(("raw", d))
        if g + 1 < 16: nd += 1
        if adv: gaps[g+2].append(("raw", adv))
        g += 4
    R_ = Rec(); segstamp(R_, cfg, RWS); segstamp(R_, cfg, RWS) if False else None
    gaps[15].append(("raw", f"s_waitcnt vmcnt({E.vm('w0') + nd})\ns_barrier\n" + "\n".join(R_.L)))
    late = ["global_load_dword a255, v1, s[74:75]"]
    for it in late:
        while gaps[g]: g += 1
        gaps[g].append(("raw", it)); g += 2
    for g in range(7): n = mfma_group(E, 0, g, gaps, n, first=True)
    assert not any(gaps[n:])
    E.L = fix_hazards(E.L, "k1pro")
    pro = list(E.L)
    tagger = [f"s_cmp_lg_u32 s78, 0\ns_cbranch_scc1 K1_notag\nv_accvgpr_read_b32 v30, a250\ns_mov_b32 s78, 0x9e3779b1\nv_mul_lo_u32 v30, v30, s78\nv_mov_b32 v31, 1\nv_add_u32 v30, 0x7f4a7c15, v30\n"
              f"buffer_store_dword v30, off, s[{RWS}:{RWS+3}], s77 sc1\nbuffer_store_dwordx2 v[30:31], off, s[{RDBG}:{RDBG+3}], 0 sc1\nK1_notag:"]
    E(f"s_mov_b32 s{S_CNT}, 6\n.p2align 3\nK1_loop:")
    l0 = len(E.L)
    segment(E, 0, True, cfg, 1, True); segment(E, 1, True, cfg, 1, True, extra=tagger)
    E(f"s_sub_u32 s{S_CNT}, s{S_CNT}, 1\ns_cmp_lg_u32 s{S_CNT}, 0")
    body = E.L[l0:]
    E("s_cbranch_scc1 K1_loop")
    l1 = len(E.L)
    gs = gate_stream(); h = 175
    addr = lines([f"s_lshl_b32 s{T1}, s{S_NT}, 5\ns_lshl_b32 s{T0}, s{S_WN}, 4\ns_add_u32 s{T0}, s{T0}, s{T1}",
        f"v_and_b32 v25, 15, v0\nv_add_u32 v25, s{T0}, v25\nv_lshlrev_b32 v25, 1, v25",
        f"v_and_b32 v30, 31, v0\nv_add_u32 v30, s{T1}, v30\nv_lshlrev_b32 v30, 1, v30\nv_lshlrev_b32 v31, 4, v0"])
    fin = ["v_mov_b32 v25, 0", f"buffer_store_dwordx4 v[26:29], v25, s[{RWS}:{RWS+3}], s70 offen",
           "v_and_b32 v25, 7, v0", "v_lshlrev_b32 v25, 2, v25", "v_mov_b32 v30, 0", f"buffer_store_dword v30, v25, s[{RWS}:{RWS+3}], s71 offen"]
    segment(E, 0, True, cfg, 1, extra=addr, spread=small[6:] + small[:6] + [f"buffer_load_dwordx2 a[252:253], off, s[{RDBG}:{RDBG+3}], 0 sc1"])
    segment(E, 1, True, cfg, 0, extra=gs[:h])
    segment(E, 0, False, cfg, 0, extra=gs[h:] + fin + param_stream())
    E.drain()
    gaps = [[] for _ in range(40)]
    n = mfma_group(E, 1, 7, gaps, 0); mfma_group(E, 1, 8, gaps, n)
    E.L[l1:] = fix_hazards(E.L[l1:], "k1tail")
    stamp(E, cfg, 3)
    epilogue(E, cfg, st_aux)
    stamp(E, cfg, 6)
    if cfg.get("stamps"): E("s_waitcnt vmcnt(0)")
    stamp(E, cfg, 7)
    stamp_flush(E, cfg, 62, 0, S_W)
    E("K1_end:\ns_endpgm")
    errs = check(pro + body + body + E.L[l1:], "k1")
    return E.text(), errs

def pkf(d, a, b, c, sel, nb=False):
    return (f"v_pk_fma_f32 {vr(d,2)}, {vr(a,2)}, {vr(b,2)}, {vr(c,2)} op_sel:[0,{sel},0] op_sel_hi:[1,{sel},1]"
            + (" neg_lo:[0,1,0] neg_hi:[0,1,0]" if nb else ""))
def pkm(d, a, b, sel, nb=False):
    return (f"v_pk_mul_f32 {vr(d,2)}, {vr(a,2)}, {vr(b,2)} op_sel:[0,{sel}] op_sel_hi:[1,{sel}]"
            + (" neg_lo:[0,1] neg_hi:[0,1]" if nb else ""))

def epilogue(E, cfg, aux):
    LAM, L16, SA = 2, 4, 10
    re = lambda n: 32 + 2 * n
    im = lambda n: 64 + 2 * n
    unstash(E, LAM, A_LAM); unstash(E, L16, A_L16)
    E("v_and_b32 v25, 15, v0\nv_lshrrev_b32 v26, 4, v0")
    hr, hi = re(0), im(0)
    for n in range(1, 16):
        nr, ni = (6, 8) if n & 1 else (12, 14)
        E(pkf(nr, hr, LAM, re(n), 0)); E(pkf(ni, hi, LAM, im(n), 0))
        E(pkf(nr, hi, LAM, nr, 1, True)); E(pkf(ni, hr, LAM, ni, 1))
        hr, hi = nr, ni
    E(f"v_mov_b32 v{SA}, v{hr}\nv_mov_b32 v{SA+1}, v{hi}")
    cfma(E, 12, 13, L16, L16 + 1, hr, hi, hr + 1, hi + 1)
    E(f"s_lshl_b32 s{T0}, s{S_WM}, 10\ns_lshl_b32 s{T1}, s{S_WN}, 7\ns_add_u32 s{T0}, s{T0}, s{T1}\ns_add_u32 s{T0}, s{T0}, {SCR}")
    E(f"v_lshlrev_b32 v27, 8, v26\nv_lshl_add_u32 v27, v25, 3, v27\nv_add_u32 v27, s{T0}, v27\nds_write_b64 v27, v[12:13]")
    E(f"s_lshl_b32 s{T0}, s{S_MT}, 12\ns_lshl_b32 s{T1}, s{S_WM}, 11\ns_add_u32 s70, s{T0}, s{T1}\ns_add_u32 s70, s70, {ACT_OFF}")
    E(f"s_mul_i32 s{T0}, s{S_NT}, 14\ns_mul_i32 s{T1}, s{S_WN}, 7\ns_add_u32 s{T0}, s{T0}, s{T1}\ns_add_u32 s{T0}, s{T0}, 256\ns_lshl_b32 s{T0}, s{T0}, 15\ns_add_u32 s71, s70, s{T0}")
    E("v_lshrrev_b32 v28, 1, v26\nv_and_b32 v29, 1, v26\nv_lshlrev_b32 v1, 15, v28\nv_lshl_add_u32 v1, v29, 8, v1\nv_lshl_add_u32 v1, v25, 4, v1\nv_add_u32 v16, s71, v1")
    E(f"v_lshl_add_u32 v1, v29, 1, v28\nv_lshlrev_b32 v1, 8, v1\nv_lshl_add_u32 v1, v25, 4, v1\nv_add_u32 v1, s71, v1\nv_add_u32 v17, {6*32768}, v1")
    E(f"s_lshl_b32 s{T0}, s{S_NT}, 2\ns_lshl_b32 s{T1}, s{S_WN}, 1\ns_add_u32 s{T0}, s{T0}, s{T1}\ns_lshl_b32 s{T0}, s{T0}, 15\ns_add_u32 s72, s70, s{T0}")
    E("v_lshl_add_u32 v1, v28, 7, v29\nv_lshlrev_b32 v1, 15, v1\nv_lshl_add_u32 v1, v25, 4, v1\nv_add_u32 v18, s72, v1")
    E(f"v_mov_b32 v30, {hexf(-2*0.7978845608028654*LOG2E)}\nv_mov_b32 v31, {hexf(-2*0.7978845608028654*LOG2E*0.044715)}")
    E(f"v_accvgpr_read_b32 v28, a252\nv_accvgpr_read_b32 v29, a253\ns_mov_b32 s{T2}, 0x100000\nK1_tagchk:\nv_readfirstlane_b32 s75, v28\nv_readfirstlane_b32 s76, v29\ns_sub_u32 s{T2}, s{T2}, 1")
    E(f"s_cmp_lg_u32 s76, 0\ns_cbranch_scc1 K1_tagok\ns_cmp_eq_u32 s{T2}, 0\ns_cbranch_scc1 K1_tagok\ns_sleep 8\nbuffer_load_dwordx2 v[28:29], off, s[{RDBG}:{RDBG+3}], 0 sc1\ns_waitcnt vmcnt(0)\ns_branch K1_tagchk\nK1_tagok:")
    E("s_waitcnt lgkmcnt(0)\ns_barrier")
    E(f"s_cmp_eq_u32 s{S_MT}, 7\ns_cselect_b32 s73, 1, s{S_W}\ns_cmp_lg_u32 s73, 0\ns_cbranch_scc1 K1_nopub")
    E(f"v_and_b32 v1, 31, v0\nv_lshlrev_b32 v1, 3, v1\nv_add_u32 v27, {SCR}, v1")
    slot = [12, 14, 20, 22]
    E("ds_read_b64 v[6:7], v27")
    for s in range(1, 5): E(f"ds_read_b64 {vr(slot[s-1],2)}, v27 offset:{256*s}")
    unstash(E, 28, A_L32P)
    a, b = 6, 8
    for s in range(1, 8):
        E(f"s_waitcnt lgkmcnt({min(3, 7-s)})")
        cur = slot[(s - 1) & 3]
        cfma(E, b, b + 1, 28, 29, a, a + 1, cur, cur + 1); a, b = b, a
        if s + 4 < 8: E(f"ds_read_b64 {vr(cur,2)}, v27 offset:{256*(s+4)}")
    E(f"s_lshl_b32 s{T0}, s{S_MT}, 14\ns_lshl_b32 s{T1}, s{S_NT}, 9\ns_add_u32 s{T0}, s{T0}, s{T1}")
    E(f"v_mov_b32 v12, v{a}\nv_mov_b32 v13, s75\nv_mov_b32 v14, v{a+1}\nv_mov_b32 v15, s75\nv_lshlrev_b32 v1, 1, v1")
    E(f"buffer_store_dwordx4 v[12:15], v1, s[{RAGG}:{RAGG+3}], s{T0} offen sc1\ns_nop 1")
    E("K1_nopub:")
    def store_quad(R, voff, soff, imm):
        E(f"buffer_store_dwordx4 v[{R}:{R+3}], v{voff}, s[{RWS}:{RWS+3}], {soff} offen offset:{imm} {aux}")
    for j in range(3):
        G = 96 + 64 * j; U = G + 32
        if j == 2:
            U = 96
            for r in range(32): E(f"v_accvgpr_read_b32 v{U+r}, a{r}")
        E(f"s_mov_b32 s74, {2*j*32768}")
        for i in range(0, 8, 2):
            R = G + 4 * i
            gelu_quads(E, [(G + 4 * i + 2 * k, U + 4 * i + 2 * k) for k in range(4)])
            for k in range(4): E(f"v_cvt_pk_bf16_f32 v{R+k}, v{U+4*i+2*k}, v{U+4*i+2*k+1}")
            E(f"s_nop 1\nv_permlane16_swap_b32 v{R}, v{R+2}\nv_permlane16_swap_b32 v{R+1}, v{R+3}")
            store_quad(R, 16, "s74", i * 256)
    AG = 192
    E(f"s_sub_u32 s{T0}, s{S_MT}, 7\ns_lshl_b32 s{T0}, s{T0}, 14\ns_lshl_b32 s{T1}, s{S_NT}, 9\ns_add_u32 s{T0}, s{T0}, s{T1}\ns_lshl_b32 s{T1}, s{S_WN}, 8\ns_add_u32 s{T0}, s{T0}, s{T1}")
    E(f"v_lshlrev_b32 v96, 4, v25\nv_add_u32 v96, s{T0}, v96")
    for k in range(1, 7): E(f"v_add_u32 v{96+k}, {0x4000*k}, v96")
    def agg_loads():
        for k in range(7): E(f"buffer_load_dwordx4 v[{AG+4*k}:{AG+4*k+3}], v{96+k}, s[{RAGG}:{RAGG+3}], 0 offen sc1")
    agg_loads()
    stamp(E, cfg, 4)
    M = 128
    for r in range(32): E(f"v_accvgpr_read_b32 v{M+r}, a{32+r}")
    E("s_nop 1")
    for i in range(0, 8, 2):
        for r in range(4): E(f"v_permlane32_swap_b32 v{M+4*i+r}, v{M+4*i+4+r}")
    for i in (0, 4):
        R = M + 4 * i
        q = [(M + 4 * ii + 2 * k, M + 4 * ii + 4 + 2 * k) for ii in (i, i + 2) for k in (0, 1)]
        gelu_quads(E, q)
        for k in range(4): E(f"v_cvt_pk_bf16_f32 v{R+k}, v{q[k][1]}, v{q[k][1]+1}")
        E(f"s_nop 1\nv_permlane16_swap_b32 v{R}, v{R+2}\nv_permlane16_swap_b32 v{R+1}, v{R+3}")
        store_quad(R, 17, "0", i * 256)
    stamp(E, cfg, 5)
    SG = 112
    E(f"s_lshl_b32 s{T1}, s{S_WN}, 7\ns_add_u32 s{T1}, s{T1}, {SCR}\nv_lshlrev_b32 v27, 3, v25\nv_add_u32 v27, s{T1}, v27")
    for s in range(7): E(f"ds_read_b64 v[{SG+2*s}:{SG+2*s+1}], v27 offset:{256*s}")
    unstash(E, 20, A_L256); unstash(E, 22, A_L32)
    E(f"s_lshl_b32 s{T1}, s{S_WM}, 2\nv_add_u32 v28, s{T1}, v26")
    E(f"s_lshl_b32 s{T1}, s{S_W}, 13\nv_lshlrev_b32 v27, 7, v26\nv_lshl_add_u32 v27, v25, 3, v27\nv_add_u32 v14, s{T1}, v27")
    E("v_lshrrev_b32 v27, 5, v0\nv_lshlrev_b32 v27, 9, v27\nv_and_b32 v29, 3, v0\nv_lshl_add_u32 v27, v29, 7, v27")
    E(f"v_and_b32 v29, 1, v26\nv_lshl_add_u32 v27, v29, 6, v27\nv_bfe_u32 v29, v0, 2, 2\nv_lshl_add_u32 v27, v29, 3, v27\nv_add_u32 v15, s{T1}, v27")
    E(f"s_mov_b32 s{T2}, 0x100000\ns_waitcnt vmcnt(2)\nK1_chk:\nv_mov_b32 v104, 0")
    for k in range(7):
        E(f"s_cmp_gt_u32 s{S_MT}, {6-k}\ns_cselect_b32 s{T3}, -1, 0\nv_xor_b32 v105, s75, v{AG+4*k+1}\nv_xor_b32 v106, s75, v{AG+4*k+3}\nv_or_b32 v105, v105, v106\nv_and_or_b32 v104, v105, s{T3}, v104")
    E(f"v_cmp_ne_u32 vcc, 0, v104\ns_sub_u32 s{T2}, s{T2}, 1\ns_nop 3\ns_cbranch_vccz K1_got\ns_cmp_eq_u32 s{T2}, 0\ns_cbranch_scc1 K1_got\ns_sleep 6")
    agg_loads()
    E("s_waitcnt vmcnt(0)\ns_branch K1_chk\nK1_got:\ns_waitcnt lgkmcnt(0)")
    E(f"v_mov_b32 v8, v{AG}\nv_mov_b32 v9, v{AG+2}")
    a, b = 8, 6
    for k in range(1, 7):
        cfma(E, b, b + 1, 20, 21, a, a + 1, AG + 4 * k, AG + 4 * k + 2); a, b = b, a
    CR, CI = 160, 162
    E(f"v_mov_b32 v{CR}, v{a}\nv_mov_b32 v{CI}, v{a+1}")
    for s in range(7):
        E(f"v_cmp_lt_u32 vcc, {s}, v28")
        cfma(E, b, b + 1, 22, 23, a, a + 1, SG + 2 * s, SG + 2 * s + 1); a, b = b, a
        E(f"v_cndmask_b32 v{CR}, v{CR}, v{a}, vcc\nv_cndmask_b32 v{CI}, v{CI}, v{a+1}, vcc")
    cfma(E, CR + 1, CI + 1, L16, L16 + 1, CR, CI, SA, SA + 1)
    unstash(E, 20, A_C2)
    hr, hi = CR, CI
    for n in range(16):
        E(pkf(re(n), hr, LAM, re(n), 0)); E(pkf(im(n), hi, LAM, im(n), 0))
        E(pkf(re(n), hi, LAM, re(n), 1, True)); E(pkf(im(n), hr, LAM, im(n), 1))
        hr, hi = re(n), im(n)
    for i in range(8):
        T = 96 + 8 * (i & 1); R = 112 + 4 * i
        for k in (0, 1):
            n = 2 * i + k
            E(pkm(T + 4 * k, re(n), 20, 0)); E(pkm(T + 4 * k + 2, im(n), 20, 0, True))
            E(pkf(T + 4 * k, im(n), 20, T + 4 * k, 1, True)); E(pkf(T + 4 * k + 2, re(n), 20, T + 4 * k + 2, 1, True))
        for k in (0, 1):
            E(f"v_cvt_pk_bf16_f32 v{R+k}, v{T+4*k}, v{T+4*k+1}\nv_cvt_pk_bf16_f32 v{R+2+k}, v{T+4*k+2}, v{T+4*k+3}")
        E(f"ds_write_b64 v14, v[{R}:{R+1}] offset:{i*1024}\nds_write_b64 v14, v[{R+2}:{R+3}] offset:{i*1024+512}")
    E("s_waitcnt lgkmcnt(0)")
    def trd(i):
        R = 192 + 4 * i
        E(f"ds_read_b64_tr_b16 v[{R}:{R+1}], v15 offset:{i*1024}\nds_read_b64_tr_b16 v[{R+2}:{R+3}], v15 offset:{i*1024+32}")
    for i in range(4): trd(i)
    for i in range(8):
        if i < 4: trd(i + 4)
        E(f"s_waitcnt lgkmcnt({min(8, 14-2*i)})")
        store_quad(192 + 4 * i, 18, "0", i * 256)

if __name__ == "__main__":
    t, errs = gen()
    print("\n".join(errs[:40])); print(len(errs), "hazards;", t.count("\n"), "lines")
```

```python
from common import *
import re
NAME = "out_mix_kernel"
WOFF = 98304; GLDS = 147456; LDS = GLDS + 2048
MF = "v_mfma_f32_16x16x32_bf16"
S_W, S_MT, S_NB, S_KQ, S_WM, S_WN, S_KX = 3, 4, 5, 6, 7, 32, 33
RWS, RWD, RC, RX, ROUT = 8, 12, 16, 24, 28
S_AC, S_AD, S_WC, S_WD, S_MA, S_MW, S_SA, S_SW = 34, 35, 64, 65, 66, 67, 68, 69
T0, T1, T2, T3 = 70, 71, 72, 73
S_SEND, S_RECV, S_FLG = 74, 77, 80
V_A, V_C, V_D, V_RA, V_RC, V_RD, V_G = 2, 6, 10, 14, 16, 18, 22
A_WF, A_AF, A_G, A_X, A_DS = 32, 96, 128, 144, 160
NC, NST = 8, 22
def accD(i, jt): return 32 + (i * 4 + jt) * 4
def accC(i, jt): return ("v", 160 + (i * 4 + jt) * 4) if i < 6 else ("a", ((i - 6) * 4 + jt) * 4)
def accs(st, i, jt):
    if st >= NC: return vr(accD(i, jt), 4)
    k, r = accC(i, jt); return vr(r, 4, k)
def wf(st, jt, s): return A_WF + (st & 1) * 32 + (jt * 2 + s) * 4
def af(i, s): return A_AF + (i & 3) * 8 + s * 4

def dma_ops(st):
    b = st % 3; ops = []
    if st < NC:
        setup = [f"s_add_u32 s{S_SA}, s{S_AC}, {((st&1)*128 + (st>>1)*8)*32768}", f"s_add_u32 s{S_SW}, s{S_WC}, {(st>>1)*128}"]
        R, V = RC + 4 * (st & 1), V_C
    else:
        d = st - NC
        setup = [f"s_add_u32 s{S_SA}, s{S_AD}, {d*8*32768}", f"s_add_u32 s{S_SW}, s{S_WD}, {d*64*2048}"]
        R, V = RWD, V_D
    for j in range(4):
        ops.append((f"s_add_u32 m0, s{S_MW}, {b*16384 + j*1024}", f"buffer_load_dwordx4 v{V+j}, s[{R}:{R+3}], s{S_SW} offen lds @st{st}"))
    for j in range(8):
        ops.append((f"s_add_u32 m0, s{S_MA}, {b*32768 + (j>>2)*4096}" if j & 3 == 0 else None,
                    f"buffer_load_dwordx4 v{V_A + (j>>2)*2 + (j&1)}, s[{RWS}:{RWS+3}], s{S_SA} offen offset:{(j&3)*1024} lds @st{st}"))
    return setup, ops
def rd_a(st, i):
    b = st % 3
    return [(f"ds_read_b128 {ar(af(i,s),4)}, v{V_RA + (b==2)} offset:{(b&1)*32768 + s*16384 + i*256}", ("a", i & 3, s)) for s in (0, 1)]
def rd_w(st):
    b = st % 3; out = []
    for jt in range(4):
        for s in (0, 1):
            r = wf(st, jt, s)
            if st < NC: out.append((f"ds_read_b128 {ar(r,4)}, v{V_RC+s} offset:{b*16384 + jt*2048}", ("w", st & 1, jt, s, 0)))
            else: out += [(f"ds_read_b64_tr_b16 {ar(r+2*h,2)}, v{V_RD+jt} offset:{b*16384 + s*8192 + h*1024}", ("w", st & 1, jt, s, h)) for h in (0, 1)]
    return out
def group(E, st, i, gaps, n):
    first = st in (0, NC)
    for jt in range(4):
        for s in (0, 1):
            E.need([("a", i & 3, s), ("w", st & 1, jt, s, 0), ("w", st & 1, jt, s, 1)])
            a = accs(st, i, jt)
            E(f"{MF} {a}, {ar(wf(st,jt,s),4)}, {ar(af(i,s),4)}, {'0' if first and s == 0 else a}")
            for it in gaps[n]:
                if it[0] == "ds": E.ds(it[1], it[2])
                else: E(it[1])
            n += 1
    return n

def gen(cfg=None):
    cfg = cfg or {}
    E = Em(); E.age = cfg.get("age", 6)
    E(kernel_head(NAME))
    E("s_cmp_ge_u32 s2, 256\ns_cbranch_scc1 K2_end")
    stamp(E, cfg, 0)
    E("s_load_dwordx2 s[36:37], s[0:1], 0\ns_load_dwordx4 s[40:43], s[0:1], 40\ns_load_dwordx2 s[44:45], s[0:1], 64")
    E("s_load_dwordx2 s[46:47], s[0:1], 96\ns_load_dwordx2 s[48:49], s[0:1], 112\ns_load_dwordx2 s[50:51], s[0:1], 128")
    E(f"v_lshrrev_b32 v1, 6, v0\nv_and_b32 v0, 63, v0\nv_readfirstlane_b32 s{S_W}, v1")
    if cfg.get("map", 1) == 1:
        E(f"s_and_b32 s{S_KQ}, s2, 3\ns_and_b32 s{T0}, s2, 4\ns_bfe_u32 s{T1}, s2, 0x20003\ns_add_u32 s{S_MT}, s{T0}, s{T1}\ns_lshr_b32 s{S_NB}, s2, 5")
    else:
        E(f"s_bfe_u32 s{S_KQ}, s2, 0x20003\ns_and_b32 s{T0}, s2, 3\ns_lshl_b32 s{T0}, s{T0}, 1\ns_bfe_u32 s{T1}, s2, 0x10005\ns_add_u32 s{S_MT}, s{T0}, s{T1}")
        E(f"s_and_b32 s{T0}, s2, 4\ns_lshr_b32 s{T1}, s2, 6\ns_add_u32 s{S_NB}, s{T0}, s{T1}")
    E(f"s_lshr_b32 s{S_WM}, s{S_W}, 1\ns_and_b32 s{S_WN}, s{S_W}, 1\ns_xor_b32 s{S_KX}, s{S_KQ}, 3")
    E(f"s_lshl_b32 s{T0}, s{S_KX}, 1\ns_and_b32 s{T1}, s{T0}, 2\ns_and_b32 s{T2}, s{T0}, 4")
    E(f"v_lshrrev_b32 v30, 4, v0\nv_and_b32 v31, 15, v0\nv_xor_b32 v1, s{T1}, v30\nv_lshlrev_b32 v1, 8, v1\nv_lshl_add_u32 v1, v31, 4, v1")
    E(f"s_lshl_b32 s{T0}, s{S_W}, 16\ns_lshl_b32 s{T1}, s{S_MT}, 12\ns_add_u32 s{T0}, s{T0}, s{T1}\ns_add_u32 s{T0}, s{T0}, {ACT_OFF}\ns_lshl_b32 s{T2}, s{T2}, 8")
    E(f"s_add_u32 s{T1}, s{T0}, s{T2}\ns_sub_u32 s{T3}, s{T0}, s{T2}")
    E(f"v_add_u32 v{V_A}, s{T1}, v1\nv_add_u32 v{V_A+1}, s{T3}, v1\nv_add_u32 v{V_A+2}, 0x8000, v{V_A}\nv_add_u32 v{V_A+3}, 0x8000, v{V_A+1}")
    E("v_lshrrev_b32 v28, 3, v0\nv_and_b32 v29, 7, v0\nv_lshrrev_b32 v1, 1, v28\nv_xor_b32 v29, v29, v1\nv_lshlrev_b32 v29, 4, v29")
    E(f"s_lshl_b32 s{T0}, s{S_NB}, 7\ns_lshl_b32 s{T1}, s{S_W}, 5\ns_add_u32 s{T0}, s{T0}, s{T1}\nv_add_u32 v28, s{T0}, v28\nv_lshlrev_b32 v28, 11, v28")
    E(f"v_add_u32 v{V_C}, v28, v29\nv_xor_b32 v29, 64, v29\nv_add_u32 v{V_C+1}, v28, v29\nv_add_u32 v{V_C+1}, {8*2048}, v{V_C+1}")
    E(f"v_add_u32 v{V_C+2}, {16*2048}, v{V_C}\nv_add_u32 v{V_C+3}, {16*2048}, v{V_C+1}")
    E(f"v_lshlrev_b32 v1, 1, v30\nv_xor_b32 v1, v1, v31\nv_lshlrev_b32 v1, 4, v1\ns_lshl_b32 s{T0}, s{S_W}, 4\nv_add_u32 v28, s{T0}, v30\nv_lshlrev_b32 v28, 11, v28")
    E(f"s_lshl_b32 s{T0}, s{S_NB}, 8\nv_add_u32 v28, s{T0}, v28\nv_add_u32 v{V_D}, v28, v1\nv_add_u32 v{V_D+1}, {4*2048}, v{V_D}")
    E(f"v_xor_b32 v1, 128, v1\nv_add_u32 v{V_D+2}, v28, v1\nv_add_u32 v{V_D+2}, {8*2048}, v{V_D+2}\nv_add_u32 v{V_D+3}, {4*2048}, v{V_D+2}")
    E(f"s_lshl_b32 s{S_AC}, s{S_KQ}, 20\ns_mul_i32 s{S_AD}, s{S_KQ}, {112*32768}\ns_add_u32 s{S_AD}, s{S_AD}, {256*32768}")
    E(f"s_lshl_b32 s{S_WC}, s{S_KQ}, 9\ns_mul_i32 s{S_WD}, s{S_KQ}, {896*2048}")
    E(f"s_lshl_b32 s{S_MA}, s{S_W}, 13\ns_lshl_b32 s{S_MW}, s{S_W}, 12\ns_add_u32 s{S_MW}, s{S_MW}, {WOFF}")
    E(f"s_lshl_b32 s{T0}, s{S_WM}, 11\nv_lshlrev_b32 v1, 12, v30\nv_lshl_add_u32 v1, v31, 4, v1\nv_add_u32 v{V_RA}, s{T0}, v1\nv_add_u32 v{V_RA+1}, 0x10000, v{V_RA}")
    E(f"v_lshrrev_b32 v1, 1, v31\nv_xor_b32 v1, v1, v30\nv_lshlrev_b32 v1, 4, v1\nv_lshl_add_u32 v1, v31, 7, v1\ns_lshl_b32 s{T0}, s{S_WN}, 13\ns_add_u32 s{T0}, s{T0}, {WOFF}")
    E(f"v_add_u32 v{V_RC}, s{T0}, v1\nv_xor_b32 v{V_RC+1}, 64, v{V_RC}")
    E("v_bfe_u32 v1, v0, 2, 2\nv_lshl_add_u32 v28, v30, 3, v1\nv_lshlrev_b32 v28, 8, v28\nv_and_b32 v29, 1, v0\nv_lshl_add_u32 v28, v29, 3, v28")
    E(f"v_add_u32 v28, {WOFF}, v28\nv_and_b32 v29, 1, v30\nv_lshl_add_u32 v1, v29, 2, v1\nv_lshlrev_b32 v1, 1, v1")
    E(f"v_bfe_u32 v29, v0, 1, 1\ns_lshl_b32 s{T0}, s{S_WN}, 3\nv_add_u32 v29, s{T0}, v29\nv_xor_b32 v1, v1, v29")
    for jt in range(4): E(f"v_xor_b32 v29, {2*jt}, v1\nv_lshl_add_u32 v{V_RD+jt}, v29, 4, v28")
    E(f"s_lshl_b32 s{T0}, s{S_MT}, 3\ns_add_u32 s{T0}, s{T0}, s{S_NB}\ns_lshl_b32 s{S_FLG}, s{T0}, 7\ns_add_u32 s{S_FLG}, s{S_FLG}, {FLG_OFF}")
    E(f"s_lshl_b32 s{T0}, s{T0}, 18\ns_add_u32 s{T0}, s{T0}, {XCH_OFF}\ns_lshl_b32 s{T1}, s{S_W}, 12\ns_add_u32 s{T0}, s{T0}, s{T1}")
    for k in range(3):
        E(f"s_xor_b32 s{T1}, s{S_KX}, {k}\ns_lshl_b32 s{T1}, s{T1}, 2\ns_add_u32 s{T1}, s{T1}, s{S_KQ}\ns_lshl_b32 s{T1}, s{T1}, 14\ns_add_u32 s{S_SEND+k}, s{T0}, s{T1}")
        E(f"s_xor_b32 s{T1}, s{S_KQ}, {k+1}\ns_lshl_b32 s{T2}, s{S_KQ}, 2\ns_add_u32 s{T1}, s{T1}, s{T2}\ns_lshl_b32 s{T1}, s{T1}, 14\ns_add_u32 s{S_RECV+k}, s{T0}, s{T1}")
    E("s_waitcnt lgkmcnt(0)")
    srd(E, RWS, 50, WS_SIZE); srd(E, RWD, 46, 3584 * 2048); srd(E, RC, 40, 1024 * 2048); srd(E, RC + 4, 42, 1024 * 2048)
    srd(E, RX, 36, 2048 * 2048); srd(E, ROUT, 48, 2048 * 4096)
    def issue_all(st):
        setup, ops = dma_ops(st)
        for x in setup: E(x)
        for m, d in ops:
            if m: E(m); E("s_nop 0")
            E(d)
    stamp(E, cfg, 1)
    issue_all(0)
    E(f"s_getpc_b64 s[{T2}:{T3}]\nK2_pc0:\ns_lshl_b32 s{T0}, s{S_W}, 13\nv_lshlrev_b32 v1, 7, v0\nv_add_u32 v1, s{T0}, v1\nv_min_u32 v1, K2_end-K2_pc0, v1\nglobal_load_dword a170, v1, s[{T2}:{T3}]")
    issue_all(1)
    E("v_lshrrev_b32 v1, 2, v31\nv_lshlrev_b32 v1, 5, v1\nv_and_b32 v28, 1, v31\nv_lshl_add_u32 v1, v28, 4, v1\nv_bfe_u32 v28, v31, 1, 1\nv_add_u32 v1, v1, v28")
    E(f"s_lshl_b32 s{T0}, s{S_MT}, 8\ns_lshl_b32 s{T1}, s{S_WM}, 7\ns_add_u32 s{T0}, s{T0}, s{T1}\ns_lshl_b32 s{T1}, s{S_KQ}, 2\ns_add_u32 s{T0}, s{T0}, s{T1}\nv_add_u32 v1, s{T0}, v1")
    E(f"s_lshl_b32 s{T0}, s{S_NB}, 7\ns_lshl_b32 s{T1}, s{S_WN}, 6\ns_add_u32 s{T0}, s{T0}, s{T1}\nv_lshl_add_u32 v28, v30, 2, s{T0}")
    E("v_accvgpr_write_b32 a169, v28\nv_lshl_add_u32 v1, v1, 10, v28\nv_accvgpr_write_b32 a168, v1")
    E(f"s_lshl_b32 s{T0}, s{S_WM}, 10\ns_add_u32 s{T0}, s{T0}, {GLDS}\nv_lshlrev_b32 v23, 3, v31\nv_add_u32 v23, s{T0}, v23\ns_lshl_b32 s{T1}, s{S_KX}, 8\nv_xor_b32 v23, s{T1}, v23")
    E(f"s_lshl_b32 s81, s{S_MT}, 11\ns_lshl_b32 s{T1}, s{S_WN}, 10\ns_add_u32 s81, s81, s{T1}\ns_add_u32 s81, s81, {G_OFF}\ns_add_u32 s{T0}, s{T1}, {GLDS}\nv_lshlrev_b32 v22, 4, v0")
    gdma = [f"s_mov_b32 m0, s82", f"buffer_load_dwordx4 v22, s[{RWS}:{RWS+3}], s81 offen lds"]
    E(f"s_mov_b32 s96, s{T0}")
    gdma[0] = "s_mov_b32 m0, s96"
    E(f"s_waitcnt vmcnt({E.vm('st0')})\ns_barrier")
    stamp(E, cfg, 2)
    segstamp_init(E, cfg, 1, S_W)
    def put_dma(gaps, st, start, every):
        setup, ops = dma_ops(st)
        gaps[start - 1] = [("raw", setup[1])] + gaps[start - 1]; gaps[start + 1].append(("raw", setup[0]))
        g = start
        for m, d in ops:
            while len(gaps[g]) > 1 or len(gaps[g+1]) > 1: g += 1
            if m: gaps[g].append(("raw", m))
            gaps[g+1].append(("raw", d))
            g += every
        return g
    w = rd_w(0)
    for it in rd_a(0, 0) + w[:4] + rd_a(0, 1) + w[4:] + rd_a(0, 2): E.ds(*it)
    gaps = [[] for _ in range(66)]
    for i in range(5):
        for k, it in enumerate(rd_a(0, i + 3)): gaps[i*8 + 1 + 2*k].append(("ds",) + it)
    put_dma(gaps, 2, 1, 3)
    n = 0
    for i in range(5): n = group(E, 0, i, gaps, n)
    assert not any(gaps[n:])
    scale = [f"v_accvgpr_read_b32 v{V_G+i}, a{A_G+2*i}" for i in range(8)]
    for i in range(8):
        for jt in range(4):
            k, r = accC(i, jt)
            for e in range(4):
                if k == "v": scale.append(f"v_mul_f32 v{r+e}, v{V_G+i}, v{r+e}")
                else: scale += [f"v_accvgpr_read_b32 v30, a{r+e}", f"v_mul_f32 v30, v{V_G+i}, v30", f"v_accvgpr_write_b32 a{r+e}, v30"]
    l0 = len(E.L)
    for st in range(1, NST + 1):
        gaps = [[] for _ in range(68)]
        if st < NST:
            w = rd_w(st); per = len(w) // 2
            first = rd_a(st, 0) + w[:per]
            for k, it in enumerate(first): gaps[k].append(("ds",) + it)
            g = max(len(first), 9)
            second = rd_a(st, 1) + w[per:]
            for k, it in enumerate(second): gaps[g + k].append(("ds",) + it)
            g = max(g + len(second), 17)
            for k, it in enumerate(rd_a(st, 2)): gaps[g + k].append(("ds",) + it)
            for i in range(5):
                for k, it in enumerate(rd_a(st, i + 3)): gaps[24 + i*8 + 1 + 2*k].append(("ds",) + it)
            if st + 2 < NST: put_dma(gaps, st + 2, cfg.get("dma_start", 1), cfg.get("dma_every", 5))
            if st == 4: gaps[62].append(("raw", gdma[0])); gaps[63].append(("raw", gdma[1]))
            if st == NC:
                for i in range(8): gaps[30 + 4*i].append(("ds", f"ds_read_b64 {ar(A_G+2*i,2)}, v{23 + (i>>1)} offset:{(i&1)*128}", ("g", i)))
            if st == NC - 1:
                for k in range(1, 4): gaps[30 + 4*k].append(("raw", f"v_xor_b32 v{23+k}, {256*k}, v23"))
            if st >= NC + 2:
                for g in range(24, 64):
                    if scale and len(gaps[g]) == 0: gaps[g].append(("raw", scale.pop(0)))
            if st == NST - 1:
                pre = [f"v_accvgpr_read_b32 v{2+i}, a{A_G+2*i+1}" for i in range(8)] + ["v_lshlrev_b32 v10, 4, v0"]
                fill(gaps, pre, 20, 30)
            E.drain(f"vmcnt({E.vm('st%d' % st)})")
            E("s_barrier")
            segstamp(E, cfg, RWS)
        else:
            E.drain()
        if st == NST - 1: sends = send_stream()
        if st >= NST - 1:
            base = 0 if st == NST - 1 else 64; hi = 64 if st == NST - 1 else 24; g = 0
            while sends:
                g = max(g, sends[0][0] - base)
                while g < hi and len(gaps[g]) >= 2: g += 1
                if g >= hi: break
                gaps[g].append(("raw", sends.pop(0)[1]))
        n = 0
        for i in (5, 6, 7): n = group(E, st - 1, i, gaps, n)
        if st < NST:
            for i in range(5): n = group(E, st, i, gaps, n)
        assert not any(gaps[n:]), (st, gaps[n:])
    assert not scale, len(scale)
    rest = [x for _, x in sends]
    k = 0
    while k < len(rest):
        m = re.match(r"v_fma_f32 v(\d+), v\d+, v(\d+), v(\d+)", rest[k])
        if m and int(m.group(1)) % 2 == 0 and k + 1 < len(rest) and rest[k+1].startswith(f"v_fma_f32 v{int(m.group(1))+1},"):
            d, o, c = map(int, m.groups())
            E(f"v_pk_fma_f32 {vr(d,2)}, {vr(d,2)}, {vr(o & ~1,2)}, {vr(c,2)} op_sel:[0,{o&1},0] op_sel_hi:[1,{o&1},1]"); k += 2
        else: E(rest[k]); k += 1
    stamp(E, cfg, 3)
    epilogue(E, cfg)
    stamp(E, cfg, 6)
    if cfg.get("stamps"): E("s_waitcnt vmcnt(0)")
    stamp(E, cfg, 7)
    stamp_flush(E, cfg, 50, 1, S_W)
    if cfg.get("dbgout"):
        E(f"s_lshl_b32 s84, s2, 2\ns_add_u32 s84, s84, s{S_W}\ns_cmp_lg_u32 s84, {cfg['dbgout']-1}\ns_cbranch_scc1 K2_end\ns_load_dwordx2 s[36:37], s[0:1], 120")
        E(f"s_add_u32 s82, s50, {STAMP_OFF + (cfg['dbgout']-1)*32}\ns_addc_u32 s83, s51, 0\nv_mov_b32 v1, 0\nglobal_load_dwordx4 v[10:13], v1, s[82:83]\nglobal_load_dwordx4 v[14:17], v1, s[82:83] offset:16\ns_waitcnt vmcnt(0) lgkmcnt(0)")
        for k in range(7, -1, -1): E(f"v_sub_u32 v{2+k}, v{2+k}, v10\nv_sub_u32 v{10+k}, v{10+k}, v10")
        E("global_store_dwordx4 v1, v[10:13], s[36:37]\nglobal_store_dwordx4 v1, v[14:17], s[36:37] offset:16\nglobal_store_dwordx4 v1, v[2:5], s[36:37] offset:32\nglobal_store_dwordx4 v1, v[6:9], s[36:37] offset:48")
    E("K2_end:\ns_endpgm")
    E.L = fix_hazards(E.L, "k2")
    return E.text(), check(E.L, "k2")

def send_stream():
    out = []
    for i in range(6):
        for a in (0, 1):
            R = accC(i, 2 * a)[1]; t = 24 + 8 * i + 4 * a + 6
            for jt in (2 * a, 2 * a + 1):
                d = accD(i, jt); c = accC(i, jt)[1]
                out += [(t, f"v_fma_f32 v{d+e}, v{d+e}, v{2+i}, v{c+e}") for e in range(4)]
            for k in range(4):
                d = accD(i, 2 * a + (k >> 1)) + 2 * (k & 1)
                out.append((t, f"v_cvt_pk_bf16_f32 v{R+k}, v{d}, v{d+1}"))
            out.append((t, f"buffer_store_dwordx4 {vr(R,4)}, v10, s[{RWS}:{RWS+3}], s{S_SEND+(i>>1)} offen offset:{((i&1)*2+a)*1024} sc1"))
    return out

def epilogue(E, cfg):
    P = lambda r: vr(r, 2)
    E("v_accvgpr_read_b32 v19, a168\nv_accvgpr_read_b32 v13, a169\nv_lshlrev_b32 v11, 1, v19\nv_add_u32 v12, 0x1000, v11\nv_lshlrev_b32 v13, 1, v13\nv_lshlrev_b32 v19, 2, v19")
    for ii in (0, 1):
        for jt in range(4): E(f"buffer_load_dwordx2 {ar(A_X+(ii*4+jt)*2,2)}, v{11+ii}, s[{RX}:{RX+3}], 0 offen offset:{jt*32} @x")
    for jt in range(4): E(f"global_load_dwordx2 {ar(A_DS+jt*2,2)}, v13, s[44:45] offset:{jt*32} @x")
    for r in range(32): E(f"v_accvgpr_read_b32 v{32+r}, a{r}")
    for i in (6, 7):
        for jt in range(4):
            d = accD(i, jt); c = 32 + ((i - 6) * 4 + jt) * 4
            for h in (0, 2): E(f"v_pk_fma_f32 {P(d+h)}, {P(d+h)}, v[8:9], {P(c+h)} op_sel:[0,{i&1},0] op_sel_hi:[1,{i&1},1]")
    E("s_waitcnt vmcnt(12)\ns_barrier")
    stamp(E, cfg, 4)
    E(f"s_cmp_lg_u32 s{S_W}, 0\ns_cbranch_scc1 K2_noflag")
    E(f"s_lshl_b32 s{T0}, s{S_KQ}, 2\ns_add_u32 s{T0}, s{T0}, s{S_FLG}\nv_mov_b32 v30, 1\ns_mov_b64 exec, 1")
    E(f"buffer_store_dword v30, off, s[{RWS}:{RWS+3}], s{T0} sc1\ns_mov_b64 exec, -1\ns_waitcnt vmcnt(1)\ns_branch K2_go\nK2_noflag:\ns_waitcnt vmcnt(0)\nK2_go:")
    for jt in range(4):
        E(f"v_accvgpr_read_b32 v30, a{A_DS+2*jt}\nv_accvgpr_read_b32 v31, a{A_DS+2*jt+1}")
        E("v_lshlrev_b32 v64, 16, v30\nv_and_b32 v65, 0xffff0000, v30\nv_lshlrev_b32 v66, 16, v31\nv_and_b32 v67, 0xffff0000, v31")
        for ii in (0, 1):
            x = A_X + (ii * 4 + jt) * 2; d = accD(6 + ii, jt)
            E(f"v_accvgpr_read_b32 v30, a{x}\nv_accvgpr_read_b32 v31, a{x+1}")
            E("v_lshlrev_b32 v68, 16, v30\nv_and_b32 v69, 0xffff0000, v30\nv_lshlrev_b32 v70, 16, v31\nv_and_b32 v71, 0xffff0000, v31")
            E("v_pk_mul_f32 v[68:69], v[68:69], v[64:65]\nv_pk_mul_f32 v[70:71], v[70:71], v[66:67]")
            E("v_cvt_pk_bf16_f32 v30, v68, v69\nv_cvt_pk_bf16_f32 v31, v70, v71")
            E("v_lshlrev_b32 v68, 16, v30\nv_and_b32 v69, 0xffff0000, v30\nv_lshlrev_b32 v70, 16, v31\nv_and_b32 v71, 0xffff0000, v31")
            for h in (0, 2): E(f"v_pk_fma_f32 {P(d+h)}, {P(68+h)}, v[28:29], {P(d+h)} op_sel:[0,{ii},0] op_sel_hi:[1,{ii},1]")
    E(f"s_cmp_lg_u32 s{S_W}, 0\ns_cbranch_scc1 K2_polled\nv_mov_b32 v1, 0\ns_mov_b64 exec, 1\ns_mov_b32 s{T2}, 0x40000")
    E(f"K2_poll:\nbuffer_load_dwordx4 v[72:75], v1, s[{RWS}:{RWS+3}], s{S_FLG} offen sc1\ns_waitcnt vmcnt(0)")
    E(f"v_and_b32 v72, v72, v73\nv_and_b32 v74, v74, v75\nv_and_b32 v72, v72, v74\ns_sub_u32 s{T2}, s{T2}, 1\nv_readfirstlane_b32 s{T3}, v72\ns_nop 0")
    E(f"s_cmp_lg_u32 s{T3}, 0\ns_cbranch_scc1 K2_done\ns_cmp_lg_u32 s{T2}, 0\ns_cbranch_scc1 K2_poll\nK2_done:\ns_mov_b64 exec, -1\nK2_polled:\ns_barrier")
    stamp(E, cfg, 5)
    for u in range(4):
        for k in range(3):
            E(f"buffer_load_dwordx4 {vr(32+(u*3+k)*4,4)}, v10, s[{RWS}:{RWS+3}], s{S_RECV+k} offen offset:{u*1024} sc1 @r{u}")
    E(f"s_movk_i32 s{T0}, 0x2000")
    for u in range(4):
        E(f"s_waitcnt vmcnt({E.vm('r%d' % u)})")
        for j2 in (0, 1):
            jt = 2 * (u & 1) + j2; d = accD(6 + (u >> 1), jt)
            for k in range(3):
                for h in (0, 1):
                    r = 32 + (u * 3 + k) * 4 + 2 * j2 + h; t = 160 + 4 * k + 2 * h
                    E(f"v_lshlrev_b32 v{t}, 16, v{r}\nv_and_b32 v{t+1}, 0xffff0000, v{r}")
            for h in (0, 2): E(f"v_pk_add_f32 {P(160+h)}, {P(160+h)}, {P(164+h)}\nv_pk_add_f32 {P(d+h)}, {P(d+h)}, {P(168+h)}")
            for h in (0, 2): E(f"v_pk_add_f32 {P(d+h)}, {P(d+h)}, {P(160+h)}")
            E(f"buffer_store_dwordx4 {vr(d,4)}, v19, s[{ROUT}:{ROUT+3}], {'s%d' % T0 if u >> 1 else '0'} offen offset:{jt*64} {cfg.get('out_aux','')}")

if __name__ == "__main__":
    t, errs = gen()
    print("\n".join(errs[:40])); print(len(errs), "hazards;", t.count("\n"), "lines")
```

```python
from common import *
import re
NAME = "out_mix_kernel"
WOFF = 98304; GLDS = 147456; LDS = GLDS + 2048
MF = "v_mfma_f32_16x16x32_bf16"
S_W, S_MT, S_NB, S_KQ, S_WM, S_WN, S_KX = 3, 4, 5, 6, 7, 32, 33
RWS, RWD, RC, RX, ROUT = 8, 12, 16, 24, 28
S_AC, S_AD, S_WC, S_WD, S_MA, S_MW, S_SA, S_SW = 34, 35, 64, 65, 66, 67, 68, 69
T0, T1, T2, T3 = 70, 71, 72, 73
S_SEND, S_RECV, S_FLG = 74, 77, 80
V_A, V_C, V_D, V_RA, V_RC, V_RD, V_G = 2, 6, 10, 14, 16, 18, 22
A_WF, A_AF, A_G, A_X, A_DS = 32, 96, 128, 144, 160
NC, NST = 8, 22
def accD(i, jt): return 32 + (i * 4 + jt) * 4
def accC(i, jt): return ("v", 160 + (i * 4 + jt) * 4) if i < 6 else ("a", ((i - 6) * 4 + jt) * 4)
def accs(st, i, jt):
    if st >= NC: return vr(accD(i, jt), 4)
    k, r = accC(i, jt); return vr(r, 4, k)
def wf(st, jt, s): return A_WF + (st & 1) * 32 + (jt * 2 + s) * 4
def af(i, s): return A_AF + (i & 3) * 8 + s * 4

def dma_ops(st):
    b = st % 3; ops = []
    if st < NC:
        setup = [f"s_add_u32 s{S_SA}, s{S_AC}, {((st&1)*128 + (st>>1)*8)*32768}", f"s_add_u32 s{S_SW}, s{S_WC}, {(st>>1)*128}"]
        R, V = RC + 4 * (st & 1), V_C
    else:
        d = st - NC
        setup = [f"s_add_u32 s{S_SA}, s{S_AD}, {d*8*32768}", f"s_add_u32 s{S_SW}, s{S_WD}, {d*64*2048}"]
        R, V = RWD, V_D
    for j in range(4):
        ops.append((f"s_add_u32 m0, s{S_MW}, {b*16384 + j*1024}", f"buffer_load_dwordx4 v{V+j}, s[{R}:{R+3}], s{S_SW} offen lds @st{st}"))
    for j in range(8):
        ops.append((f"s_add_u32 m0, s{S_MA}, {b*32768 + (j>>2)*4096}" if j & 3 == 0 else None,
                    f"buffer_load_dwordx4 v{V_A + (j>>2)*2 + (j&1)}, s[{RWS}:{RWS+3}], s{S_SA} offen offset:{(j&3)*1024} lds @st{st}"))
    return setup, ops
def rd_a(st, i):
    b = st % 3
    return [(f"ds_read_b128 {ar(af(i,s),4)}, v{V_RA + (b==2)} offset:{(b&1)*32768 + s*16384 + i*256}", ("a", i & 3, s)) for s in (0, 1)]
def rd_w(st):
    b = st % 3; out = []
    for jt in range(4):
        for s in (0, 1):
            r = wf(st, jt, s)
            if st < NC: out.append((f"ds_read_b128 {ar(r,4)}, v{V_RC+s} offset:{b*16384 + jt*2048}", ("w", st & 1, jt, s, 0)))
            else: out += [(f"ds_read_b64_tr_b16 {ar(r+2*h,2)}, v{V_RD+jt} offset:{b*16384 + s*8192 + h*1024}", ("w", st & 1, jt, s, h)) for h in (0, 1)]
    return out
def group(E, st, i, gaps, n):
    first = st in (0, NC)
    for jt in range(4):
        for s in (0, 1):
            E.need([("a", i & 3, s), ("w", st & 1, jt, s, 0), ("w", st & 1, jt, s, 1)])
            a = accs(st, i, jt)
            E(f"{MF} {a}, {ar(wf(st,jt,s),4)}, {ar(af(i,s),4)}, {'0' if first and s == 0 else a}")
            for it in gaps[n]:
                if it[0] == "ds": E.ds(it[1], it[2])
                else: E(it[1])
            n += 1
    return n

def gen(cfg=None):
    cfg = cfg or {}
    E = Em(); E.age = cfg.get("age", 6)
    E(kernel_head(NAME))
    E("s_cmp_ge_u32 s2, 256\ns_cbranch_scc1 K2_end")
    stamp(E, cfg, 0)
    E("s_load_dwordx2 s[36:37], s[0:1], 0\ns_load_dwordx4 s[40:43], s[0:1], 40\ns_load_dwordx2 s[44:45], s[0:1], 64")
    E("s_load_dwordx2 s[46:47], s[0:1], 96\ns_load_dwordx2 s[48:49], s[0:1], 112\ns_load_dwordx2 s[50:51], s[0:1], 128")
    E(f"v_lshrrev_b32 v1, 6, v0\nv_and_b32 v0, 63, v0\nv_readfirstlane_b32 s{S_W}, v1")
    if cfg.get("map", 1) == 1:
        E(f"s_and_b32 s{S_KQ}, s2, 3\ns_and_b32 s{T0}, s2, 4\ns_bfe_u32 s{T1}, s2, 0x20003\ns_add_u32 s{S_MT}, s{T0}, s{T1}\ns_lshr_b32 s{S_NB}, s2, 5")
    else:
        E(f"s_bfe_u32 s{S_KQ}, s2, 0x20003\ns_and_b32 s{T0}, s2, 3\ns_lshl_b32 s{T0}, s{T0}, 1\ns_bfe_u32 s{T1}, s2, 0x10005\ns_add_u32 s{S_MT}, s{T0}, s{T1}")
        E(f"s_and_b32 s{T0}, s2, 4\ns_lshr_b32 s{T1}, s2, 6\ns_add_u32 s{S_NB}, s{T0}, s{T1}")
    E(f"s_lshr_b32 s{S_WM}, s{S_W}, 1\ns_and_b32 s{S_WN}, s{S_W}, 1\ns_xor_b32 s{S_KX}, s{S_KQ}, 3")
    E(f"s_lshl_b32 s{T0}, s{S_KX}, 1\ns_and_b32 s{T1}, s{T0}, 2\ns_and_b32 s{T2}, s{T0}, 4")
    E(f"v_lshrrev_b32 v30, 4, v0\nv_and_b32 v31, 15, v0\nv_xor_b32 v1, s{T1}, v30\nv_lshlrev_b32 v1, 8, v1\nv_lshl_add_u32 v1, v31, 4, v1")
    E(f"s_lshl_b32 s{T0}, s{S_W}, 16\ns_lshl_b32 s{T1}, s{S_MT}, 12\ns_add_u32 s{T0}, s{T0}, s{T1}\ns_add_u32 s{T0}, s{T0}, {ACT_OFF}\ns_lshl_b32 s{T2}, s{T2}, 8")
    E(f"s_add_u32 s{T1}, s{T0}, s{T2}\ns_sub_u32 s{T3}, s{T0}, s{T2}")
    E(f"v_add_u32 v{V_A}, s{T1}, v1\nv_add_u32 v{V_A+1}, s{T3}, v1\nv_add_u32 v{V_A+2}, 0x8000, v{V_A}\nv_add_u32 v{V_A+3}, 0x8000, v{V_A+1}")
    E("v_lshrrev_b32 v28, 3, v0\nv_and_b32 v29, 7, v0\nv_lshrrev_b32 v1, 1, v28\nv_xor_b32 v29, v29, v1\nv_lshlrev_b32 v29, 4, v29")
    E(f"s_lshl_b32 s{T0}, s{S_NB}, 7\ns_lshl_b32 s{T1}, s{S_W}, 5\ns_add_u32 s{T0}, s{T0}, s{T1}\nv_add_u32 v28, s{T0}, v28\nv_lshlrev_b32 v28, 11, v28")
    E(f"v_add_u32 v{V_C}, v28, v29\nv_xor_b32 v29, 64, v29\nv_add_u32 v{V_C+1}, v28, v29\nv_add_u32 v{V_C+1}, {8*2048}, v{V_C+1}")
    E(f"v_add_u32 v{V_C+2}, {16*2048}, v{V_C}\nv_add_u32 v{V_C+3}, {16*2048}, v{V_C+1}")
    E(f"v_lshlrev_b32 v1, 1, v30\nv_xor_b32 v1, v1, v31\nv_lshlrev_b32 v1, 4, v1\ns_lshl_b32 s{T0}, s{S_W}, 4\nv_add_u32 v28, s{T0}, v30\nv_lshlrev_b32 v28, 11, v28")
    E(f"s_lshl_b32 s{T0}, s{S_NB}, 8\nv_add_u32 v28, s{T0}, v28\nv_add_u32 v{V_D}, v28, v1\nv_add_u32 v{V_D+1}, {4*2048}, v{V_D}")
    E(f"v_xor_b32 v1, 128, v1\nv_add_u32 v{V_D+2}, v28, v1\nv_add_u32 v{V_D+2}, {8*2048}, v{V_D+2}\nv_add_u32 v{V_D+3}, {4*2048}, v{V_D+2}")
    E(f"s_lshl_b32 s{S_AC}, s{S_KQ}, 20\ns_mul_i32 s{S_AD}, s{S_KQ}, {112*32768}\ns_add_u32 s{S_AD}, s{S_AD}, {256*32768}")
    E(f"s_lshl_b32 s{S_WC}, s{S_KQ}, 9\ns_mul_i32 s{S_WD}, s{S_KQ}, {896*2048}")
    E(f"s_lshl_b32 s{S_MA}, s{S_W}, 13\ns_lshl_b32 s{S_MW}, s{S_W}, 12\ns_add_u32 s{S_MW}, s{S_MW}, {WOFF}")
    E(f"s_lshl_b32 s{T0}, s{S_WM}, 11\nv_lshlrev_b32 v1, 12, v30\nv_lshl_add_u32 v1, v31, 4, v1\nv_add_u32 v{V_RA}, s{T0}, v1\nv_add_u32 v{V_RA+1}, 0x10000, v{V_RA}")
    E(f"v_lshrrev_b32 v1, 1, v31\nv_xor_b32 v1, v1, v30\nv_lshlrev_b32 v1, 4, v1\nv_lshl_add_u32 v1, v31, 7, v1\ns_lshl_b32 s{T0}, s{S_WN}, 13\ns_add_u32 s{T0}, s{T0}, {WOFF}")
    E(f"v_add_u32 v{V_RC}, s{T0}, v1\nv_xor_b32 v{V_RC+1}, 64, v{V_RC}")
    E("v_bfe_u32 v1, v0, 2, 2\nv_lshl_add_u32 v28, v30, 3, v1\nv_lshlrev_b32 v28, 8, v28\nv_and_b32 v29, 1, v0\nv_lshl_add_u32 v28, v29, 3, v28")
    E(f"v_add_u32 v28, {WOFF}, v28\nv_and_b32 v29, 1, v30\nv_lshl_add_u32 v1, v29, 2, v1\nv_lshlrev_b32 v1, 1, v1")
    E(f"v_bfe_u32 v29, v0, 1, 1\ns_lshl_b32 s{T0}, s{S_WN}, 3\nv_add_u32 v29, s{T0}, v29\nv_xor_b32 v1, v1, v29")
    for jt in range(4): E(f"v_xor_b32 v29, {2*jt}, v1\nv_lshl_add_u32 v{V_RD+jt}, v29, 4, v28")
    E(f"s_lshl_b32 s{T0}, s{S_MT}, 3\ns_add_u32 s{T0}, s{T0}, s{S_NB}\ns_lshl_b32 s{S_FLG}, s{T0}, 7\ns_add_u32 s{S_FLG}, s{S_FLG}, {FLG_OFF}")
    E(f"s_lshl_b32 s{T0}, s{T0}, 18\ns_add_u32 s{T0}, s{T0}, {XCH_OFF}\ns_lshl_b32 s{T1}, s{S_W}, 12\ns_add_u32 s{T0}, s{T0}, s{T1}")
    for k in range(3):
        E(f"s_xor_b32 s{T1}, s{S_KX}, {k}\ns_lshl_b32 s{T1}, s{T1}, 2\ns_add_u32 s{T1}, s{T1}, s{S_KQ}\ns_lshl_b32 s{T1}, s{T1}, 14\ns_add_u32 s{S_SEND+k}, s{T0}, s{T1}")
        E(f"s_xor_b32 s{T1}, s{S_KQ}, {k+1}\ns_lshl_b32 s{T2}, s{S_KQ}, 2\ns_add_u32 s{T1}, s{T1}, s{T2}\ns_lshl_b32 s{T1}, s{T1}, 14\ns_add_u32 s{S_RECV+k}, s{T0}, s{T1}")
    E("s_waitcnt lgkmcnt(0)")
    srd(E, RWS, 50, WS_SIZE); srd(E, RWD, 46, 3584 * 2048); srd(E, RC, 40, 1024 * 2048); srd(E, RC + 4, 42, 1024 * 2048)
    srd(E, RX, 36, 2048 * 2048); srd(E, ROUT, 48, 2048 * 4096)
    def issue_all(st):
        setup, ops = dma_ops(st)
        for x in setup: E(x)
        for m, d in ops:
            if m: E(m); E("s_nop 0")
            E(d)
    stamp(E, cfg, 1)
    issue_all(0)
    E(f"s_getpc_b64 s[{T2}:{T3}]\nK2_pc0:\ns_lshl_b32 s{T0}, s{S_W}, 13\nv_lshlrev_b32 v1, 7, v0\nv_add_u32 v1, s{T0}, v1\nv_min_u32 v1, K2_end-K2_pc0, v1\nglobal_load_dword a170, v1, s[{T2}:{T3}]")
    issue_all(1)
    E("v_lshrrev_b32 v1, 2, v31\nv_lshlrev_b32 v1, 5, v1\nv_and_b32 v28, 1, v31\nv_lshl_add_u32 v1, v28, 4, v1\nv_bfe_u32 v28, v31, 1, 1\nv_add_u32 v1, v1, v28")
    E(f"s_lshl_b32 s{T0}, s{S_MT}, 8\ns_lshl_b32 s{T1}, s{S_WM}, 7\ns_add_u32 s{T0}, s{T0}, s{T1}\ns_lshl_b32 s{T1}, s{S_KQ}, 2\ns_add_u32 s{T0}, s{T0}, s{T1}\nv_add_u32 v1, s{T0}, v1")
    E(f"s_lshl_b32 s{T0}, s{S_NB}, 7\ns_lshl_b32 s{T1}, s{S_WN}, 6\ns_add_u32 s{T0}, s{T0}, s{T1}\nv_lshl_add_u32 v28, v30, 2, s{T0}")
    E("v_accvgpr_write_b32 a169, v28\nv_lshl_add_u32 v1, v1, 10, v28\nv_accvgpr_write_b32 a168, v1")
    E(f"s_lshl_b32 s{T0}, s{S_WM}, 10\ns_add_u32 s{T0}, s{T0}, {GLDS}\nv_lshlrev_b32 v23, 3, v31\nv_add_u32 v23, s{T0}, v23\ns_lshl_b32 s{T1}, s{S_KX}, 8\nv_xor_b32 v23, s{T1}, v23")
    E(f"s_lshl_b32 s81, s{S_MT}, 11\ns_lshl_b32 s{T1}, s{S_WN}, 10\ns_add_u32 s81, s81, s{T1}\ns_add_u32 s81, s81, {G_OFF}\ns_add_u32 s{T0}, s{T1}, {GLDS}\nv_lshlrev_b32 v22, 4, v0")
    gdma = [f"s_mov_b32 m0, s82", f"buffer_load_dwordx4 v22, s[{RWS}:{RWS+3}], s81 offen lds"]
    E(f"s_mov_b32 s96, s{T0}")
    gdma[0] = "s_mov_b32 m0, s96"
    E(f"s_waitcnt vmcnt({E.vm('st0')})\ns_barrier")
    stamp(E, cfg, 2)
    segstamp_init(E, cfg, 1, S_W)
    def put_dma(gaps, st, start, every):
        setup, ops = dma_ops(st)
        gaps[start - 1] = [("raw", setup[1])] + gaps[start - 1]; gaps[start + 1].append(("raw", setup[0]))
        g = start
        for m, d in ops:
            while len(gaps[g]) > 1 or len(gaps[g+1]) > 1: g += 1
            if m: gaps[g].append(("raw", m))
            gaps[g+1].append(("raw", d))
            g += every
        return g
    w = rd_w(0)
    for it in rd_a(0, 0) + w[:4] + rd_a(0, 1) + w[4:] + rd_a(0, 2): E.ds(*it)
    gaps = [[] for _ in range(66)]
    for i in range(5):
        for k, it in enumerate(rd_a(0, i + 3)): gaps[i*8 + 1 + 2*k].append(("ds",) + it)
    put_dma(gaps, 2, 1, 3)
    n = 0
    for i in range(5): n = group(E, 0, i, gaps, n)
    assert not any(gaps[n:])
    scale = [f"v_accvgpr_read_b32 v{V_G+i}, a{A_G+2*i}" for i in range(8)]
    for i in range(8):
        for jt in range(4):
            k, r = accC(i, jt)
            for e in range(4):
                if k == "v": scale.append(f"v_mul_f32 v{r+e}, v{V_G+i}, v{r+e}")
                else: scale += [f"v_accvgpr_read_b32 v30, a{r+e}", f"v_mul_f32 v30, v{V_G+i}, v30", f"v_accvgpr_write_b32 a{r+e}, v30"]
    l0 = len(E.L)
    for st in range(1, NST + 1):
        gaps = [[] for _ in range(68)]
        if st < NST:
            w = rd_w(st); per = len(w) // 2
            first = rd_a(st, 0) + w[:per]
            for k, it in enumerate(first): gaps[k].append(("ds",) + it)
            g = max(len(first), 9)
            second = rd_a(st, 1) + w[per:]
            for k, it in enumerate(second): gaps[g + k].append(("ds",) + it)
            g = max(g + len(second), 17)
            for k, it in enumerate(rd_a(st, 2)): gaps[g + k].append(("ds",) + it)
            for i in range(5):
                for k, it in enumerate(rd_a(st, i + 3)): gaps[24 + i*8 + 1 + 2*k].append(("ds",) + it)
            if st + 2 < NST: put_dma(gaps, st + 2, cfg.get("dma_start", 1), cfg.get("dma_every", 5))
            if st == 4: gaps[62].append(("raw", gdma[0])); gaps[63].append(("raw", gdma[1]))
            if st == NC:
                for i in range(8): gaps[30 + 4*i].append(("ds", f"ds_read_b64 {ar(A_G+2*i,2)}, v{23 + (i>>1)} offset:{(i&1)*128}", ("g", i)))
            if st == NC - 1:
                for k in range(1, 4): gaps[30 + 4*k].append(("raw", f"v_xor_b32 v{23+k}, {256*k}, v23"))
            if st >= NC + 2:
                for g in range(24, 64):
                    if scale and len(gaps[g]) == 0: gaps[g].append(("raw", scale.pop(0)))
            if st == NST - 1:
                pre = [f"v_accvgpr_read_b32 v{2+i}, a{A_G+2*i+1}" for i in range(8)] + ["v_lshlrev_b32 v10, 4, v0"]
                fill(gaps, pre, 20, 30)
            E.drain(f"vmcnt({E.vm('st%d' % st)})")
            E("s_barrier")
            segstamp(E, cfg, RWS)
        else:
            E.drain()
        if st == NST - 1: sends = send_stream()
        if st >= NST - 1:
            base = 0 if st == NST - 1 else 64; hi = 64 if st == NST - 1 else 24; g = 0
            while sends:
                g = max(g, sends[0][0] - base)
                while g < hi and len(gaps[g]) >= 2: g += 1
                if g >= hi: break
                gaps[g].append(("raw", sends.pop(0)[1]))
        n = 0
        for i in (5, 6, 7): n = group(E, st - 1, i, gaps, n)
        if st < NST:
            for i in range(5): n = group(E, st, i, gaps, n)
        assert not any(gaps[n:]), (st, gaps[n:])
    assert not scale, len(scale)
    rest = [x for _, x in sends]
    k = 0
    while k < len(rest):
        m = re.match(r"v_fma_f32 v(\d+), v\d+, v(\d+), v(\d+)", rest[k])
        if m and int(m.group(1)) % 2 == 0 and k + 1 < len(rest) and rest[k+1].startswith(f"v_fma_f32 v{int(m.group(1))+1},"):
            d, o, c = map(int, m.groups())
            E(f"v_pk_fma_f32 {vr(d,2)}, {vr(d,2)}, {vr(o & ~1,2)}, {vr(c,2)} op_sel:[0,{o&1},0] op_sel_hi:[1,{o&1},1]"); k += 2
        else: E(rest[k]); k += 1
    stamp(E, cfg, 3)
    epilogue(E, cfg)
    stamp(E, cfg, 6)
    if cfg.get("stamps"): E("s_waitcnt vmcnt(0)")
    stamp(E, cfg, 7)
    stamp_flush(E, cfg, 50, 1, S_W)
    if cfg.get("dbgout"):
        E(f"s_lshl_b32 s84, s2, 2\ns_add_u32 s84, s84, s{S_W}\ns_cmp_lg_u32 s84, {cfg['dbgout']-1}\ns_cbranch_scc1 K2_end\ns_load_dwordx2 s[36:37], s[0:1], 120")
        E(f"s_add_u32 s82, s50, {STAMP_OFF + (cfg['dbgout']-1)*32}\ns_addc_u32 s83, s51, 0\nv_mov_b32 v1, 0\nglobal_load_dwordx4 v[10:13], v1, s[82:83]\nglobal_load_dwordx4 v[14:17], v1, s[82:83] offset:16\ns_waitcnt vmcnt(0) lgkmcnt(0)")
        for k in range(7, -1, -1): E(f"v_sub_u32 v{2+k}, v{2+k}, v10\nv_sub_u32 v{10+k}, v{10+k}, v10")
        E("global_store_dwordx4 v1, v[10:13], s[36:37]\nglobal_store_dwordx4 v1, v[14:17], s[36:37] offset:16\nglobal_store_dwordx4 v1, v[2:5], s[36:37] offset:32\nglobal_store_dwordx4 v1, v[6:9], s[36:37] offset:48")
        if cfg.get("spin"):
            a_, b_, mult = cfg["spin"]; rg = lambda k: 10 + k if k < 8 else 2 + k - 8
            E(f"v_sub_u32 v1, v{rg(b_)}, v{rg(a_)}\ns_nop 1\nv_readfirstlane_b32 s40, v1\ns_memrealtime s[42:43]\ns_mul_i32 s40, s40, {mult}\ns_min_u32 s40, s40, 100000\ns_waitcnt lgkmcnt(0)")
            E("K2_spin:\ns_memrealtime s[44:45]\ns_waitcnt lgkmcnt(0)\ns_sub_u32 s44, s44, s42\ns_cmp_lt_u32 s44, s40\ns_cbranch_scc1 K2_spin")
    E("K2_end:\ns_endpgm")
    E.L = fix_hazards(E.L, "k2")
    return E.text(), check(E.L, "k2")

def send_stream():
    out = []
    for i in range(6):
        for a in (0, 1):
            R = accC(i, 2 * a)[1]; t = 24 + 8 * i + 4 * a + 6
            for jt in (2 * a, 2 * a + 1):
                d = accD(i, jt); c = accC(i, jt)[1]
                out += [(t, f"v_fma_f32 v{d+e}, v{d+e}, v{2+i}, v{c+e}") for e in range(4)]
            for k in range(4):
                d = accD(i, 2 * a + (k >> 1)) + 2 * (k & 1)
                out.append((t, f"v_cvt_pk_bf16_f32 v{R+k}, v{d}, v{d+1}"))
            out.append((t, f"buffer_store_dwordx4 {vr(R,4)}, v10, s[{RWS}:{RWS+3}], s{S_SEND+(i>>1)} offen offset:{((i&1)*2+a)*1024} sc1"))
    return out

def epilogue(E, cfg):
    P = lambda r: vr(r, 2)
    E("v_accvgpr_read_b32 v19, a168\nv_accvgpr_read_b32 v13, a169\nv_lshlrev_b32 v11, 1, v19\nv_add_u32 v12, 0x1000, v11\nv_lshlrev_b32 v13, 1, v13\nv_lshlrev_b32 v19, 2, v19")
    for ii in (0, 1):
        for jt in range(4): E(f"buffer_load_dwordx2 {ar(A_X+(ii*4+jt)*2,2)}, v{11+ii}, s[{RX}:{RX+3}], 0 offen offset:{jt*32} @x")
    for jt in range(4): E(f"global_load_dwordx2 {ar(A_DS+jt*2,2)}, v13, s[44:45] offset:{jt*32} @x")
    for r in range(32): E(f"v_accvgpr_read_b32 v{32+r}, a{r}")
    for i in (6, 7):
        for jt in range(4):
            d = accD(i, jt); c = 32 + ((i - 6) * 4 + jt) * 4
            for h in (0, 2): E(f"v_pk_fma_f32 {P(d+h)}, {P(d+h)}, v[8:9], {P(c+h)} op_sel:[0,{i&1},0] op_sel_hi:[1,{i&1},1]")
    E("s_waitcnt vmcnt(12)\ns_barrier")
    stamp(E, cfg, 4)
    E(f"s_cmp_lg_u32 s{S_W}, 0\ns_cbranch_scc1 K2_noflag")
    E(f"s_lshl_b32 s{T0}, s{S_KQ}, 2\ns_add_u32 s{T0}, s{T0}, s{S_FLG}\nv_mov_b32 v30, 1\ns_mov_b64 exec, 1")
    E(f"buffer_store_dword v30, off, s[{RWS}:{RWS+3}], s{T0} sc1\ns_mov_b64 exec, -1\ns_waitcnt vmcnt(1)\ns_branch K2_go\nK2_noflag:\ns_waitcnt vmcnt(0)\nK2_go:")
    for jt in range(4):
        E(f"v_accvgpr_read_b32 v30, a{A_DS+2*jt}\nv_accvgpr_read_b32 v31, a{A_DS+2*jt+1}")
        E("v_lshlrev_b32 v64, 16, v30\nv_and_b32 v65, 0xffff0000, v30\nv_lshlrev_b32 v66, 16, v31\nv_and_b32 v67, 0xffff0000, v31")
        for ii in (0, 1):
            x = A_X + (ii * 4 + jt) * 2; d = accD(6 + ii, jt)
            E(f"v_accvgpr_read_b32 v30, a{x}\nv_accvgpr_read_b32 v31, a{x+1}")
            E("v_lshlrev_b32 v68, 16, v30\nv_and_b32 v69, 0xffff0000, v30\nv_lshlrev_b32 v70, 16, v31\nv_and_b32 v71, 0xffff0000, v31")
            E("v_pk_mul_f32 v[68:69], v[68:69], v[64:65]\nv_pk_mul_f32 v[70:71], v[70:71], v[66:67]")
            E("v_cvt_pk_bf16_f32 v30, v68, v69\nv_cvt_pk_bf16_f32 v31, v70, v71")
            E("v_lshlrev_b32 v68, 16, v30\nv_and_b32 v69, 0xffff0000, v30\nv_lshlrev_b32 v70, 16, v31\nv_and_b32 v71, 0xffff0000, v31")
            for h in (0, 2): E(f"v_pk_fma_f32 {P(d+h)}, {P(68+h)}, v[28:29], {P(d+h)} op_sel:[0,{ii},0] op_sel_hi:[1,{ii},1]")
    E(f"s_cmp_lg_u32 s{S_W}, 0\ns_cbranch_scc1 K2_polled\nv_mov_b32 v1, 0\ns_mov_b64 exec, 1\ns_mov_b32 s{T2}, 0x40000")
    E(f"K2_poll:\nbuffer_load_dwordx4 v[72:75], v1, s[{RWS}:{RWS+3}], s{S_FLG} offen sc1\ns_waitcnt vmcnt(0)")
    E(f"v_and_b32 v72, v72, v73\nv_and_b32 v74, v74, v75\nv_and_b32 v72, v72, v74\ns_sub_u32 s{T2}, s{T2}, 1\nv_readfirstlane_b32 s{T3}, v72\ns_nop 0")
    E(f"s_cmp_lg_u32 s{T3}, 0\ns_cbranch_scc1 K2_done\ns_cmp_lg_u32 s{T2}, 0\ns_cbranch_scc1 K2_poll\nK2_done:\ns_mov_b64 exec, -1\nK2_polled:\ns_barrier")
    stamp(E, cfg, 5)
    for u in range(4):
        for k in range(3):
            E(f"buffer_load_dwordx4 {vr(32+(u*3+k)*4,4)}, v10, s[{RWS}:{RWS+3}], s{S_RECV+k} offen offset:{u*1024} sc1 @r{u}")
    E(f"s_movk_i32 s{T0}, 0x2000")
    for u in range(4):
        E(f"s_waitcnt vmcnt({E.vm('r%d' % u)})")
        for j2 in (0, 1):
            jt = 2 * (u & 1) + j2; d = accD(6 + (u >> 1), jt)
            for k in range(3):
                for h in (0, 1):
                    r = 32 + (u * 3 + k) * 4 + 2 * j2 + h; t = 160 + 4 * k + 2 * h
                    E(f"v_lshlrev_b32 v{t}, 16, v{r}\nv_and_b32 v{t+1}, 0xffff0000, v{r}")
            for h in (0, 2): E(f"v_pk_add_f32 {P(160+h)}, {P(160+h)}, {P(164+h)}\nv_pk_add_f32 {P(d+h)}, {P(d+h)}, {P(168+h)}")
            for h in (0, 2): E(f"v_pk_add_f32 {P(d+h)}, {P(d+h)}, {P(160+h)}")
            E(f"buffer_store_dwordx4 {vr(d,4)}, v19, s[{ROUT}:{ROUT+3}], {'s%d' % T0 if u >> 1 else '0'} offen offset:{jt*64} {cfg.get('out_aux','')}")

if __name__ == "__main__":
    t, errs = gen()
    print("\n".join(errs[:40])); print(len(errs), "hazards;", t.count("\n"), "lines")
```

```python
from common import *
import re
NAME = "out_mix_kernel"
WOFF = 98304; GLDS = 147456; LDS = GLDS + 2048
MF = "v_mfma_f32_16x16x32_bf16"
S_W, S_MT, S_NB, S_KQ, S_WM, S_WN, S_KX = 3, 4, 5, 6, 7, 32, 33
RWS, RWD, RC, RX, ROUT = 8, 12, 16, 24, 28
S_AC, S_AD, S_WC, S_WD, S_MA, S_MW, S_SA, S_SW = 34, 35, 64, 65, 66, 67, 68, 69
T0, T1, T2, T3 = 70, 71, 72, 73
S_SEND, S_RECV, S_FLG = 74, 77, 80
V_A, V_C, V_D, V_RA, V_RC, V_RD, V_G = 2, 6, 10, 14, 16, 18, 22
A_WF, A_AF, A_G, A_X, A_DS = 32, 96, 128, 144, 160
NC, NST = 8, 22
def accD(i, jt): return 32 + (i * 4 + jt) * 4
def accC(i, jt): return ("v", 160 + (i * 4 + jt) * 4) if i < 6 else ("a", ((i - 6) * 4 + jt) * 4)
def accs(st, i, jt):
    if st >= NC: return vr(accD(i, jt), 4)
    k, r = accC(i, jt); return vr(r, 4, k)
def wf(st, jt, s): return A_WF + (st & 1) * 32 + (jt * 2 + s) * 4
def af(i, s): return A_AF + (i & 3) * 8 + s * 4

def dma_ops(st):
    b = st % 3; ops = []
    if st < NC:
        setup = [f"s_add_u32 s{S_SA}, s{S_AC}, {((st&1)*128 + (st>>1)*8)*32768}", f"s_add_u32 s{S_SW}, s{S_WC}, {(st>>1)*128}"]
        R, V = RC + 4 * (st & 1), V_C
    else:
        d = st - NC
        setup = [f"s_add_u32 s{S_SA}, s{S_AD}, {d*8*32768}", f"s_add_u32 s{S_SW}, s{S_WD}, {d*64*2048}"]
        R, V = RWD, V_D
    for j in range(4):
        ops.append((f"s_add_u32 m0, s{S_MW}, {b*16384 + j*1024}", f"buffer_load_dwordx4 v{V+j}, s[{R}:{R+3}], s{S_SW} offen lds @st{st}"))
    for j in range(8):
        ops.append((f"s_add_u32 m0, s{S_MA}, {b*32768 + (j>>2)*4096}" if j & 3 == 0 else None,
                    f"buffer_load_dwordx4 v{V_A + (j>>2)*2 + (j&1)}, s[{RWS}:{RWS+3}], s{S_SA} offen offset:{(j&3)*1024} lds @st{st}"))
    return setup, ops
def rd_a(st, i):
    b = st % 3
    return [(f"ds_read_b128 {ar(af(i,s),4)}, v{V_RA + (b==2)} offset:{(b&1)*32768 + s*16384 + i*256}", ("a", i & 3, s)) for s in (0, 1)]
def rd_w(st):
    b = st % 3; out = []
    for jt in range(4):
        for s in (0, 1):
            r = wf(st, jt, s)
            if st < NC: out.append((f"ds_read_b128 {ar(r,4)}, v{V_RC+s} offset:{b*16384 + jt*2048}", ("w", st & 1, jt, s, 0)))
            else: out += [(f"ds_read_b64_tr_b16 {ar(r+2*h,2)}, v{V_RD+jt} offset:{b*16384 + s*8192 + h*1024}", ("w", st & 1, jt, s, h)) for h in (0, 1)]
    return out
def group(E, st, i, gaps, n):
    first = st in (0, NC)
    for jt in range(4):
        for s in (0, 1):
            E.need([("a", i & 3, s), ("w", st & 1, jt, s, 0), ("w", st & 1, jt, s, 1)])
            a = accs(st, i, jt)
            E(f"{MF} {a}, {ar(wf(st,jt,s),4)}, {ar(af(i,s),4)}, {'0' if first and s == 0 else a}")
            for it in gaps[n]:
                if it[0] == "ds": E.ds(it[1], it[2])
                else: E(it[1])
            n += 1
    return n

def gen(cfg=None):
    cfg = cfg or {}
    E = Em(); E.age = cfg.get("age", 6)
    E(kernel_head(NAME))
    E("s_cmp_ge_u32 s2, 256\ns_cbranch_scc1 K2_end")
    stamp(E, cfg, 0)
    E("s_load_dwordx2 s[36:37], s[0:1], 0\ns_load_dwordx4 s[40:43], s[0:1], 40\ns_load_dwordx2 s[44:45], s[0:1], 64")
    E("s_load_dwordx2 s[46:47], s[0:1], 96\ns_load_dwordx2 s[48:49], s[0:1], 112\ns_load_dwordx2 s[50:51], s[0:1], 128")
    E(f"v_lshrrev_b32 v1, 6, v0\nv_and_b32 v0, 63, v0\nv_readfirstlane_b32 s{S_W}, v1")
    if cfg.get("map", 1) == 1:
        E(f"s_and_b32 s{S_KQ}, s2, 3\ns_and_b32 s{T0}, s2, 4\ns_bfe_u32 s{T1}, s2, 0x20003\ns_add_u32 s{S_MT}, s{T0}, s{T1}\ns_lshr_b32 s{S_NB}, s2, 5")
    else:
        E(f"s_bfe_u32 s{S_KQ}, s2, 0x20003\ns_and_b32 s{T0}, s2, 3\ns_lshl_b32 s{T0}, s{T0}, 1\ns_bfe_u32 s{T1}, s2, 0x10005\ns_add_u32 s{S_MT}, s{T0}, s{T1}")
        E(f"s_and_b32 s{T0}, s2, 4\ns_lshr_b32 s{T1}, s2, 6\ns_add_u32 s{S_NB}, s{T0}, s{T1}")
    E(f"s_lshr_b32 s{S_WM}, s{S_W}, 1\ns_and_b32 s{S_WN}, s{S_W}, 1\ns_xor_b32 s{S_KX}, s{S_KQ}, 3")
    E(f"s_lshl_b32 s{T0}, s{S_KX}, 1\ns_and_b32 s{T1}, s{T0}, 2\ns_and_b32 s{T2}, s{T0}, 4")
    E(f"v_lshrrev_b32 v30, 4, v0\nv_and_b32 v31, 15, v0\nv_xor_b32 v1, s{T1}, v30\nv_lshlrev_b32 v1, 8, v1\nv_lshl_add_u32 v1, v31, 4, v1")
    E(f"s_lshl_b32 s{T0}, s{S_W}, 16\ns_lshl_b32 s{T1}, s{S_MT}, 12\ns_add_u32 s{T0}, s{T0}, s{T1}\ns_add_u32 s{T0}, s{T0}, {ACT_OFF}\ns_lshl_b32 s{T2}, s{T2}, 8")
    E(f"s_add_u32 s{T1}, s{T0}, s{T2}\ns_sub_u32 s{T3}, s{T0}, s{T2}")
    E(f"v_add_u32 v{V_A}, s{T1}, v1\nv_add_u32 v{V_A+1}, s{T3}, v1\nv_add_u32 v{V_A+2}, 0x8000, v{V_A}\nv_add_u32 v{V_A+3}, 0x8000, v{V_A+1}")
    E("v_lshrrev_b32 v28, 3, v0\nv_and_b32 v29, 7, v0\nv_lshrrev_b32 v1, 1, v28\nv_xor_b32 v29, v29, v1\nv_lshlrev_b32 v29, 4, v29")
    E(f"s_lshl_b32 s{T0}, s{S_NB}, 7\ns_lshl_b32 s{T1}, s{S_W}, 5\ns_add_u32 s{T0}, s{T0}, s{T1}\nv_add_u32 v28, s{T0}, v28\nv_lshlrev_b32 v28, 11, v28")
    E(f"v_add_u32 v{V_C}, v28, v29\nv_xor_b32 v29, 64, v29\nv_add_u32 v{V_C+1}, v28, v29\nv_add_u32 v{V_C+1}, {8*2048}, v{V_C+1}")
    E(f"v_add_u32 v{V_C+2}, {16*2048}, v{V_C}\nv_add_u32 v{V_C+3}, {16*2048}, v{V_C+1}")
    E(f"v_lshlrev_b32 v1, 1, v30\nv_xor_b32 v1, v1, v31\nv_lshlrev_b32 v1, 4, v1\ns_lshl_b32 s{T0}, s{S_W}, 4\nv_add_u32 v28, s{T0}, v30\nv_lshlrev_b32 v28, 11, v28")
    E(f"s_lshl_b32 s{T0}, s{S_NB}, 8\nv_add_u32 v28, s{T0}, v28\nv_add_u32 v{V_D}, v28, v1\nv_add_u32 v{V_D+1}, {4*2048}, v{V_D}")
    E(f"v_xor_b32 v1, 128, v1\nv_add_u32 v{V_D+2}, v28, v1\nv_add_u32 v{V_D+2}, {8*2048}, v{V_D+2}\nv_add_u32 v{V_D+3}, {4*2048}, v{V_D+2}")
    E(f"s_lshl_b32 s{S_AC}, s{S_KQ}, 20\ns_mul_i32 s{S_AD}, s{S_KQ}, {112*32768}\ns_add_u32 s{S_AD}, s{S_AD}, {256*32768}")
    E(f"s_lshl_b32 s{S_WC}, s{S_KQ}, 9\ns_mul_i32 s{S_WD}, s{S_KQ}, {896*2048}")
    E(f"s_lshl_b32 s{S_MA}, s{S_W}, 13\ns_lshl_b32 s{S_MW}, s{S_W}, 12\ns_add_u32 s{S_MW}, s{S_MW}, {WOFF}")
    E(f"s_lshl_b32 s{T0}, s{S_WM}, 11\nv_lshlrev_b32 v1, 12, v30\nv_lshl_add_u32 v1, v31, 4, v1\nv_add_u32 v{V_RA}, s{T0}, v1\nv_add_u32 v{V_RA+1}, 0x10000, v{V_RA}")
    E(f"v_lshrrev_b32 v1, 1, v31\nv_xor_b32 v1, v1, v30\nv_lshlrev_b32 v1, 4, v1\nv_lshl_add_u32 v1, v31, 7, v1\ns_lshl_b32 s{T0}, s{S_WN}, 13\ns_add_u32 s{T0}, s{T0}, {WOFF}")
    E(f"v_add_u32 v{V_RC}, s{T0}, v1\nv_xor_b32 v{V_RC+1}, 64, v{V_RC}")
    E("v_bfe_u32 v1, v0, 2, 2\nv_lshl_add_u32 v28, v30, 3, v1\nv_lshlrev_b32 v28, 8, v28\nv_and_b32 v29, 1, v0\nv_lshl_add_u32 v28, v29, 3, v28")
    E(f"v_add_u32 v28, {WOFF}, v28\nv_and_b32 v29, 1, v30\nv_lshl_add_u32 v1, v29, 2, v1\nv_lshlrev_b32 v1, 1, v1")
    E(f"v_bfe_u32 v29, v0, 1, 1\ns_lshl_b32 s{T0}, s{S_WN}, 3\nv_add_u32 v29, s{T0}, v29\nv_xor_b32 v1, v1, v29")
    for jt in range(4): E(f"v_xor_b32 v29, {2*jt}, v1\nv_lshl_add_u32 v{V_RD+jt}, v29, 4, v28")
    E(f"s_lshl_b32 s{T0}, s{S_MT}, 3\ns_add_u32 s{T0}, s{T0}, s{S_NB}\ns_lshl_b32 s{S_FLG}, s{T0}, 7\ns_add_u32 s{S_FLG}, s{S_FLG}, {FLG_OFF}")
    E(f"s_lshl_b32 s{T0}, s{T0}, 18\ns_add_u32 s{T0}, s{T0}, {XCH_OFF}\ns_lshl_b32 s{T1}, s{S_W}, 12\ns_add_u32 s{T0}, s{T0}, s{T1}")
    for k in range(3):
        E(f"s_xor_b32 s{T1}, s{S_KX}, {k}\ns_lshl_b32 s{T1}, s{T1}, 2\ns_add_u32 s{T1}, s{T1}, s{S_KQ}\ns_lshl_b32 s{T1}, s{T1}, 14\ns_add_u32 s{S_SEND+k}, s{T0}, s{T1}")
        E(f"s_xor_b32 s{T1}, s{S_KQ}, {k+1}\ns_lshl_b32 s{T2}, s{S_KQ}, 2\ns_add_u32 s{T1}, s{T1}, s{T2}\ns_lshl_b32 s{T1}, s{T1}, 14\ns_add_u32 s{S_RECV+k}, s{T0}, s{T1}")
    E("s_waitcnt lgkmcnt(0)")
    srd(E, RWS, 50, WS_SIZE); srd(E, RWD, 46, 3584 * 2048); srd(E, RC, 40, 1024 * 2048); srd(E, RC + 4, 42, 1024 * 2048)
    srd(E, RX, 36, 2048 * 2048); srd(E, ROUT, 48, 2048 * 4096)
    def issue_all(st):
        setup, ops = dma_ops(st)
        for x in setup: E(x)
        for m, d in ops:
            if m: E(m); E("s_nop 0")
            E(d)
    stamp(E, cfg, 1)
    issue_all(0)
    E(f"s_getpc_b64 s[{T2}:{T3}]\nK2_pc0:\ns_lshl_b32 s{T0}, s{S_W}, 13\nv_lshlrev_b32 v1, 7, v0\nv_add_u32 v1, s{T0}, v1\nv_min_u32 v1, K2_end-K2_pc0, v1\nglobal_load_dword a170, v1, s[{T2}:{T3}]")
    issue_all(1)
    E("v_lshrrev_b32 v1, 2, v31\nv_lshlrev_b32 v1, 5, v1\nv_and_b32 v28, 1, v31\nv_lshl_add_u32 v1, v28, 4, v1\nv_bfe_u32 v28, v31, 1, 1\nv_add_u32 v1, v1, v28")
    E(f"s_lshl_b32 s{T0}, s{S_MT}, 8\ns_lshl_b32 s{T1}, s{S_WM}, 7\ns_add_u32 s{T0}, s{T0}, s{T1}\ns_lshl_b32 s{T1}, s{S_KQ}, 2\ns_add_u32 s{T0}, s{T0}, s{T1}\nv_add_u32 v1, s{T0}, v1")
    E(f"s_lshl_b32 s{T0}, s{S_NB}, 7\ns_lshl_b32 s{T1}, s{S_WN}, 6\ns_add_u32 s{T0}, s{T0}, s{T1}\nv_lshl_add_u32 v28, v30, 2, s{T0}")
    E("v_accvgpr_write_b32 a169, v28\nv_lshl_add_u32 v1, v1, 10, v28\nv_accvgpr_write_b32 a168, v1")
    E(f"s_lshl_b32 s{T0}, s{S_WM}, 10\ns_add_u32 s{T0}, s{T0}, {GLDS}\nv_lshlrev_b32 v23, 3, v31\nv_add_u32 v23, s{T0}, v23\ns_lshl_b32 s{T1}, s{S_KX}, 8\nv_xor_b32 v23, s{T1}, v23")
    E(f"s_lshl_b32 s81, s{S_MT}, 11\ns_lshl_b32 s{T1}, s{S_WN}, 10\ns_add_u32 s81, s81, s{T1}\ns_add_u32 s81, s81, {G_OFF}\ns_add_u32 s{T0}, s{T1}, {GLDS}\nv_lshlrev_b32 v22, 4, v0")
    gdma = [f"s_mov_b32 m0, s82", f"buffer_load_dwordx4 v22, s[{RWS}:{RWS+3}], s81 offen lds"]
    E(f"s_mov_b32 s96, s{T0}")
    gdma[0] = "s_mov_b32 m0, s96"
    E(f"s_waitcnt vmcnt({E.vm('st0')})\ns_barrier")
    stamp(E, cfg, 2)
    segstamp_init(E, cfg, 1, S_W)
    def put_dma(gaps, st, start, every):
        setup, ops = dma_ops(st)
        gaps[start - 1] = [("raw", setup[1])] + gaps[start - 1]; gaps[start + 1].append(("raw", setup[0]))
        g = start
        for m, d in ops:
            while len(gaps[g]) > 1 or len(gaps[g+1]) > 1: g += 1
            if m: gaps[g].append(("raw", m))
            gaps[g+1].append(("raw", d))
            g += every
        return g
    w = rd_w(0)
    for it in rd_a(0, 0) + w[:4] + rd_a(0, 1) + w[4:] + rd_a(0, 2): E.ds(*it)
    gaps = [[] for _ in range(66)]
    for i in range(5):
        for k, it in enumerate(rd_a(0, i + 3)): gaps[i*8 + 1 + 2*k].append(("ds",) + it)
    put_dma(gaps, 2, 1, 3)
    n = 0
    for i in range(5): n = group(E, 0, i, gaps, n)
    assert not any(gaps[n:])
    scale = [f"v_accvgpr_read_b32 v{V_G+i}, a{A_G+2*i}" for i in range(8)]
    for i in range(8):
        for jt in range(4):
            k, r = accC(i, jt)
            for e in range(4):
                if k == "v": scale.append(f"v_mul_f32 v{r+e}, v{V_G+i}, v{r+e}")
                else: scale += [f"v_accvgpr_read_b32 v30, a{r+e}", f"v_mul_f32 v30, v{V_G+i}, v30", f"v_accvgpr_write_b32 a{r+e}, v30"]
    l0 = len(E.L)
    for st in range(1, NST + 1):
        gaps = [[] for _ in range(68)]
        if st < NST:
            w = rd_w(st); per = len(w) // 2
            first = rd_a(st, 0) + w[:per]
            for k, it in enumerate(first): gaps[k].append(("ds",) + it)
            g = max(len(first), 9)
            second = rd_a(st, 1) + w[per:]
            for k, it in enumerate(second): gaps[g + k].append(("ds",) + it)
            g = max(g + len(second), 17)
            for k, it in enumerate(rd_a(st, 2)): gaps[g + k].append(("ds",) + it)
            for i in range(5):
                for k, it in enumerate(rd_a(st, i + 3)): gaps[24 + i*8 + 1 + 2*k].append(("ds",) + it)
            if st + 2 < NST: put_dma(gaps, st + 2, cfg.get("dma_start", 1), cfg.get("dma_every", 5))
            if st == 4: gaps[62].append(("raw", gdma[0])); gaps[63].append(("raw", gdma[1]))
            if st == NC:
                for i in range(8): gaps[30 + 4*i].append(("ds", f"ds_read_b64 {ar(A_G+2*i,2)}, v{23 + (i>>1)} offset:{(i&1)*128}", ("g", i)))
            if st == NC - 1:
                for k in range(1, 4): gaps[30 + 4*k].append(("raw", f"v_xor_b32 v{23+k}, {256*k}, v23"))
            if st >= NC + 2:
                for g in range(24, 64):
                    if scale and len(gaps[g]) == 0: gaps[g].append(("raw", scale.pop(0)))
            if st == NST - 1:
                pre = [f"v_accvgpr_read_b32 v{2+i}, a{A_G+2*i+1}" for i in range(8)] + ["v_lshlrev_b32 v10, 4, v0"]
                fill(gaps, pre, 20, 30)
            E.drain(f"vmcnt({E.vm('st%d' % st)})")
            E("s_barrier")
            segstamp(E, cfg, RWS)
        else:
            E.drain()
        if st == NST - 1: sends = send_stream()
        if st >= NST - 1:
            base = 0 if st == NST - 1 else 64; hi = 64 if st == NST - 1 else 24; g = 0
            while sends:
                g = max(g, sends[0][0] - base)
                while g < hi and len(gaps[g]) >= 2: g += 1
                if g >= hi: break
                gaps[g].append(("raw", sends.pop(0)[1]))
        n = 0
        for i in (5, 6, 7): n = group(E, st - 1, i, gaps, n)
        if st < NST:
            for i in range(5): n = group(E, st, i, gaps, n)
        assert not any(gaps[n:]), (st, gaps[n:])
    assert not scale, len(scale)
    rest = [x for _, x in sends]
    k = 0
    while k < len(rest):
        m = re.match(r"v_fma_f32 v(\d+), v\d+, v(\d+), v(\d+)", rest[k])
        if m and int(m.group(1)) % 2 == 0 and k + 1 < len(rest) and rest[k+1].startswith(f"v_fma_f32 v{int(m.group(1))+1},"):
            d, o, c = map(int, m.groups())
            E(f"v_pk_fma_f32 {vr(d,2)}, {vr(d,2)}, {vr(o & ~1,2)}, {vr(c,2)} op_sel:[0,{o&1},0] op_sel_hi:[1,{o&1},1]"); k += 2
        else: E(rest[k]); k += 1
    stamp(E, cfg, 3)
    epilogue(E, cfg)
    stamp(E, cfg, 6)
    if cfg.get("stamps"): E("s_waitcnt vmcnt(0)")
    stamp(E, cfg, 7)
    stamp_flush(E, cfg, 50, 1, S_W)
    if cfg.get("dbgout"):
        E(f"s_lshl_b32 s84, s2, 2\ns_add_u32 s84, s84, s{S_W}\ns_cmp_lg_u32 s84, {cfg['dbgout']-1}\ns_cbranch_scc1 K2_end\ns_load_dwordx2 s[36:37], s[0:1], 120")
        E(f"s_add_u32 s82, s50, {STAMP_OFF + (cfg['dbgout']-1)*32}\ns_addc_u32 s83, s51, 0\nv_mov_b32 v1, 0\nglobal_load_dwordx4 v[10:13], v1, s[82:83]\nglobal_load_dwordx4 v[14:17], v1, s[82:83] offset:16\ns_waitcnt vmcnt(0) lgkmcnt(0)")
        for k in range(7, -1, -1): E(f"v_sub_u32 v{2+k}, v{2+k}, v10\nv_sub_u32 v{10+k}, v{10+k}, v10")
        E("global_store_dwordx4 v1, v[10:13], s[36:37]\nglobal_store_dwordx4 v1, v[14:17], s[36:37] offset:16\nglobal_store_dwordx4 v1, v[2:5], s[36:37] offset:32\nglobal_store_dwordx4 v1, v[6:9], s[36:37] offset:48")
        if cfg.get("segspin"):
            a_, b_, mult = cfg["segspin"]
            E(f"s_add_u32 s82, s50, {SEG_OFF + 0x20000}\ns_addc_u32 s83, s51, 0\nv_mov_b32 v1, 0\nglobal_load_dword v20, v1, s[82:83] offset:{4*a_} sc1\nglobal_load_dword v21, v1, s[82:83] offset:{4*b_} sc1\ns_waitcnt vmcnt(0)")
            E(f"v_sub_u32 v1, v21, v20\ns_nop 1\nv_readfirstlane_b32 s40, v1\ns_memrealtime s[42:43]\ns_mul_i32 s40, s40, {mult}\ns_min_u32 s40, s40, 100000\ns_waitcnt lgkmcnt(0)")
            E("K2_spin:\ns_memrealtime s[44:45]\ns_waitcnt lgkmcnt(0)\ns_sub_u32 s44, s44, s42\ns_cmp_lt_u32 s44, s40\ns_cbranch_scc1 K2_spin")
        if cfg.get("spin"):
            a_, b_, mult = cfg["spin"]; rg = lambda k: 10 + k if k < 8 else 2 + k - 8
            E(f"v_sub_u32 v1, v{rg(b_)}, v{rg(a_)}\ns_nop 1\nv_readfirstlane_b32 s40, v1\ns_memrealtime s[42:43]\ns_mul_i32 s40, s40, {mult}\ns_min_u32 s40, s40, 100000\ns_waitcnt lgkmcnt(0)")
            E("K2_spin:\ns_memrealtime s[44:45]\ns_waitcnt lgkmcnt(0)\ns_sub_u32 s44, s44, s42\ns_cmp_lt_u32 s44, s40\ns_cbranch_scc1 K2_spin")
    E("K2_end:\ns_endpgm")
    E.L = fix_hazards(E.L, "k2")
    return E.text(), check(E.L, "k2")

def send_stream():
    out = []
    for i in range(6):
        for a in (0, 1):
            R = accC(i, 2 * a)[1]; t = 24 + 8 * i + 4 * a + 6
            for jt in (2 * a, 2 * a + 1):
                d = accD(i, jt); c = accC(i, jt)[1]
                out += [(t, f"v_fma_f32 v{d+e}, v{d+e}, v{2+i}, v{c+e}") for e in range(4)]
            for k in range(4):
                d = accD(i, 2 * a + (k >> 1)) + 2 * (k & 1)
                out.append((t, f"v_cvt_pk_bf16_f32 v{R+k}, v{d}, v{d+1}"))
            out.append((t, f"buffer_store_dwordx4 {vr(R,4)}, v10, s[{RWS}:{RWS+3}], s{S_SEND+(i>>1)} offen offset:{((i&1)*2+a)*1024} sc1"))
    return out

def epilogue(E, cfg):
    P = lambda r: vr(r, 2)
    E("v_accvgpr_read_b32 v19, a168\nv_accvgpr_read_b32 v13, a169\nv_lshlrev_b32 v11, 1, v19\nv_add_u32 v12, 0x1000, v11\nv_lshlrev_b32 v13, 1, v13\nv_lshlrev_b32 v19, 2, v19")
    for ii in (0, 1):
        for jt in range(4): E(f"buffer_load_dwordx2 {ar(A_X+(ii*4+jt)*2,2)}, v{11+ii}, s[{RX}:{RX+3}], 0 offen offset:{jt*32} @x")
    for jt in range(4): E(f"global_load_dwordx2 {ar(A_DS+jt*2,2)}, v13, s[44:45] offset:{jt*32} @x")
    for r in range(32): E(f"v_accvgpr_read_b32 v{32+r}, a{r}")
    for i in (6, 7):
        for jt in range(4):
            d = accD(i, jt); c = 32 + ((i - 6) * 4 + jt) * 4
            for h in (0, 2): E(f"v_pk_fma_f32 {P(d+h)}, {P(d+h)}, v[8:9], {P(c+h)} op_sel:[0,{i&1},0] op_sel_hi:[1,{i&1},1]")
    E("s_waitcnt vmcnt(12)\ns_barrier")
    stamp(E, cfg, 4)
    E(f"s_cmp_lg_u32 s{S_W}, 0\ns_cbranch_scc1 K2_noflag")
    E(f"s_lshl_b32 s{T0}, s{S_KQ}, 2\ns_add_u32 s{T0}, s{T0}, s{S_FLG}\nv_mov_b32 v30, 1\ns_mov_b64 exec, 1")
    E(f"buffer_store_dword v30, off, s[{RWS}:{RWS+3}], s{T0} sc1\ns_mov_b64 exec, -1\ns_waitcnt vmcnt(1)\ns_branch K2_go\nK2_noflag:\ns_waitcnt vmcnt(0)\nK2_go:")
    for jt in range(4):
        E(f"v_accvgpr_read_b32 v30, a{A_DS+2*jt}\nv_accvgpr_read_b32 v31, a{A_DS+2*jt+1}")
        E("v_lshlrev_b32 v64, 16, v30\nv_and_b32 v65, 0xffff0000, v30\nv_lshlrev_b32 v66, 16, v31\nv_and_b32 v67, 0xffff0000, v31")
        for ii in (0, 1):
            x = A_X + (ii * 4 + jt) * 2; d = accD(6 + ii, jt)
            E(f"v_accvgpr_read_b32 v30, a{x}\nv_accvgpr_read_b32 v31, a{x+1}")
            E("v_lshlrev_b32 v68, 16, v30\nv_and_b32 v69, 0xffff0000, v30\nv_lshlrev_b32 v70, 16, v31\nv_and_b32 v71, 0xffff0000, v31")
            E("v_pk_mul_f32 v[68:69], v[68:69], v[64:65]\nv_pk_mul_f32 v[70:71], v[70:71], v[66:67]")
            E("v_cvt_pk_bf16_f32 v30, v68, v69\nv_cvt_pk_bf16_f32 v31, v70, v71")
            E("v_lshlrev_b32 v68, 16, v30\nv_and_b32 v69, 0xffff0000, v30\nv_lshlrev_b32 v70, 16, v31\nv_and_b32 v71, 0xffff0000, v31")
            for h in (0, 2): E(f"v_pk_fma_f32 {P(d+h)}, {P(68+h)}, v[28:29], {P(d+h)} op_sel:[0,{ii},0] op_sel_hi:[1,{ii},1]")
    E(f"s_cmp_lg_u32 s{S_W}, 0\ns_cbranch_scc1 K2_polled\nv_mov_b32 v1, 0\ns_mov_b64 exec, 1\ns_mov_b32 s{T2}, 0x40000")
    E(f"K2_poll:\nbuffer_load_dwordx4 v[72:75], v1, s[{RWS}:{RWS+3}], s{S_FLG} offen sc1\ns_waitcnt vmcnt(0)")
    E(f"v_and_b32 v72, v72, v73\nv_and_b32 v74, v74, v75\nv_and_b32 v72, v72, v74\ns_sub_u32 s{T2}, s{T2}, 1\nv_readfirstlane_b32 s{T3}, v72\ns_nop 0")
    E(f"s_cmp_lg_u32 s{T3}, 0\ns_cbranch_scc1 K2_done\ns_cmp_lg_u32 s{T2}, 0\ns_cbranch_scc1 K2_poll\nK2_done:\ns_mov_b64 exec, -1\nK2_polled:\ns_barrier")
    stamp(E, cfg, 5)
    for u in range(4):
        for k in range(3):
            E(f"buffer_load_dwordx4 {vr(32+(u*3+k)*4,4)}, v10, s[{RWS}:{RWS+3}], s{S_RECV+k} offen offset:{u*1024} sc1 @r{u}")
    E(f"s_movk_i32 s{T0}, 0x2000")
    for u in range(4):
        E(f"s_waitcnt vmcnt({E.vm('r%d' % u)})")
        for j2 in (0, 1):
            jt = 2 * (u & 1) + j2; d = accD(6 + (u >> 1), jt)
            for k in range(3):
                for h in (0, 1):
                    r = 32 + (u * 3 + k) * 4 + 2 * j2 + h; t = 160 + 4 * k + 2 * h
                    E(f"v_lshlrev_b32 v{t}, 16, v{r}\nv_and_b32 v{t+1}, 0xffff0000, v{r}")
            for h in (0, 2): E(f"v_pk_add_f32 {P(160+h)}, {P(160+h)}, {P(164+h)}\nv_pk_add_f32 {P(d+h)}, {P(d+h)}, {P(168+h)}")
            for h in (0, 2): E(f"v_pk_add_f32 {P(d+h)}, {P(d+h)}, {P(160+h)}")
            E(f"buffer_store_dwordx4 {vr(d,4)}, v19, s[{ROUT}:{ROUT+3}], {'s%d' % T0 if u >> 1 else '0'} offen offset:{jt*64} {cfg.get('out_aux','')}")

if __name__ == "__main__":
    t, errs = gen()
    print("\n".join(errs[:40])); print(len(errs), "hazards;", t.count("\n"), "lines")
```

```python
from common import *
import re
import k1
from k1 import (dma_ops as dma1, rd_x, rd_w as rd_w1, mfma_group, segment, gate_stream, param_stream, gelu_quads, pkf, pkm, cfma,
                stash, unstash, TOUCH, TOUCH_ADV, S_W, S_MT, S_NT, S_WM, S_WN, RX, RW, RB, RWS, RDBG, RAGG,
                S_KX, S_KW, S_MX, S_MW, S_MB, S_CNT, T0, T1, T2, T3, V_X, V_W, V_B, V_RX, V_RW, V_RM, V_RB,
                GOFF, WBUF, UOFF, BOFF, A_LAM, A_C2, A_L16, A_L32, A_L256, A_L32P, MF)
NAME = "gated_mix__ssm_conv_s5__glu_gated_geglu__prompt_kernel"
WOFF = 98304; GLDS = 147456; SCR = GLDS + 2048; TRS = SCR + 2048; LDS = TRS + 12288
assert LDS <= 163840
S_KQ, S_NB, S_KXR, S_FILL, S_TAG = 98, 99, 100, 101, 75
RWD, RC0, RC1, ROUT = RW, RB, RDBG, RAGG
S_AC, S_AD, S_WC, S_WD, S_MA, S_MW2, S_SA, S_SW = 38, 39, 40, 41, 42, 43, 44, 45
S_SEND, S_RECV, S_FOWN, S_FGRP, S_GSRC, S_GLDS = 50, 53, 54, 55, 58, 59
V_A, V_C, V_D, V_RA, V_RC, V_RD, V_G = 2, 6, 10, 14, 16, 18, 22
H_A, H_D = 224, 228
A_WF, A_AF, A_G, A_X, A_DS = 32, 96, 128, 144, 160
ND, NST = 14, 22
SPIN = 0x100000
def acc2(i, jt): return 32 + (i * 4 + jt) * 4
def acc1(i, jt): return ("v", 160 + (i * 4 + jt) * 4) if i < 6 else ("a", ((i - 6) * 4 + jt) * 4)
def accs(st, i, jt):
    if st >= ND: return vr(acc2(i, jt), 4)
    k, r = acc1(i, jt); return vr(r, 4, k)
def wf(st, jt, s): return A_WF + (st & 1) * 32 + (jt * 2 + s) * 4
def af(i, s): return A_AF + (i & 3) * 8 + s * 4
def dma2(st, va=V_A, vd=V_D):
    b = st % 3
    if st >= ND:
        c = st - ND
        sa, sw = f"s_add_u32 s{S_SA}, s{S_AC}, {((c&1)*128 + (c>>1)*8)*32768}", f"s_add_u32 s{S_SW}, s{S_WC}, {(c>>1)*128}"
        R, V = (RC1 if c & 1 else RC0), V_C
    else:
        sa, sw = f"s_add_u32 s{S_SA}, s{S_AD}, {st*8*32768}", f"s_add_u32 s{S_SW}, s{S_WD}, {st*64*2048}"
        R, V = RWD, vd
    w = [(f"s_add_u32 m0, s{S_MW2}, {b*16384 + j*1024}", f"buffer_load_dwordx4 v{V+j}, s[{R}:{R+3}], s{S_SW} offen lds @st{st}") for j in range(4)]
    a = [(f"s_add_u32 m0, s{S_MA}, {b*32768 + (j>>2)*4096}" if j & 3 == 0 else None,
          f"buffer_load_dwordx4 v{va + (j>>2)*2 + (j&1)}, s[{RWS}:{RWS+3}], s{S_SA} offen offset:{(j&3)*1024} lds @st{st}") for j in range(8)]
    return sa, sw, w, a
def rd_a(st, i):
    b = st % 3
    return [(f"ds_read_b128 {ar(af(i,s),4)}, v{V_RA + (b==2)} offset:{(b&1)*32768 + s*16384 + i*256}", ("a", i & 3, s)) for s in (0, 1)]
def rd_w(st):
    b = st % 3; out = []
    for jt in range(4):
        for s in (0, 1):
            r = wf(st, jt, s)
            if st >= ND: out.append((f"ds_read_b128 {ar(r,4)}, v{V_RC+s} offset:{b*16384 + jt*2048}", ("w", st & 1, jt, s, 0)))
            else: out += [(f"ds_read_b64_tr_b16 {ar(r+2*h,2)}, v{V_RD+jt} offset:{b*16384 + s*8192 + h*1024}", ("w", st & 1, jt, s, h)) for h in (0, 1)]
    return out
def group(E, st, i, gaps, n):
    first = st in (0, ND)
    for jt in range(4):
        for s in (0, 1):
            E.need([("a", i & 3, s), ("w", st & 1, jt, s, 0), ("w", st & 1, jt, s, 1)])
            a = accs(st, i, jt)
            E(f"{MF} {a}, {ar(wf(st,jt,s),4)}, {ar(af(i,s),4)}, {'0' if first and s == 0 else a}")
            for it in gaps[n]:
                if it[0] == "ds": E.ds(it[1], it[2])
                else: E(it[1])
            n += 1
    return n
def poll_block(name, val, reload, tmp=None):
    return (f"s_mov_b32 s{T2}, {SPIN}\n{name}_chk:\nv_cmp_ne_u32 vcc, s{S_TAG}, v{val}\ns_sub_u32 s{T2}, s{T2}, 1\ns_nop 3\ns_cbranch_vccz {name}_ok\n"
            f"s_cmp_eq_u32 s{T2}, 0\ns_cbranch_scc1 {name}_ok\ns_sleep 4\n{reload}\ns_waitcnt vmcnt(0)\ns_branch {name}_chk\n{name}_ok:")

PTS = "start,bar0,loop1,e1end,k2start,loop2,end,drained"
def pt(E, cfg, name):
    pts = cfg.get("pts", PTS).split(",")
    if name in pts: stamp(E, cfg, pts.index(name))
def touch_setup(E):
    E(f"s_lshl_b32 s74, s2, 2\ns_add_u32 s74, s74, s{S_W}")
    E(f"s_lshl_b32 s76, s{S_MT}, 3\ns_add_u32 s76, s76, s{S_NB}\ns_lshl_b32 s76, s76, 2\ns_add_u32 s76, s76, s{S_W}")
    E(f"s_lshl_b32 s75, s{S_MT}, 2\ns_add_u32 s75, s75, s{S_W}\ns_lshl_b32 s77, s{S_NT}, 5\ns_add_u32 s75, s75, s77\ns_lshl_b32 s75, s75, 11\ns_add_u32 s75, s75, 128")
    E(f"s_lshr_b32 s77, s76, 2\ns_add_u32 s77, s77, 64\ns_mul_i32 s77, s77, 7168\ns_lshl_b32 s78, s{S_KQ}, 1\ns_bfe_u32 s79, s76, 0x10001\ns_add_u32 s78, s78, s79")
    E("s_mul_i32 s78, s78, 896\ns_add_u32 s77, s77, s78\ns_sub_u32 s77, s77, 512")
    E("s_and_b32 s76, s76, 1\ns_cmp_eq_u32 s76, 0\ns_cselect_b32 s78, s52, s54\ns_cselect_b32 s79, s53, s55")
    E("v_cmp_gt_u32 vcc, 27, v0\ns_lshl_b32 s76, s74, 12\ns_add_u32 s76, s76, 128\nv_cndmask_b32 v25, 0, v0, vcc")
    E("v_lshlrev_b32 v30, 11, v25\nv_add_u32 v30, s76, v30\nv_mov_b32 v26, s36\nv_mov_b32 v27, s37\nv_mov_b32 v28, 128\nv_mov_b32 v29, 0")
    def sel(first, lo, hi, off, step=None):
        E(f"v_cmp_le_u32 vcc, {first}, v25\n{off}\nv_mov_b32 v1, s{lo}")
        E(f"v_cndmask_b32 v30, v30, v31, vcc\nv_cndmask_b32 v26, v26, v1, vcc\nv_mov_b32 v1, s{hi}\nv_cndmask_b32 v27, v27, v1, vcc")
        if step is not None: E(f"v_mov_b32 v1, {step}\nv_cndmask_b32 v28, v28, v1, vcc")
    sel(2, 42, 43, "v_mov_b32 v31, s75")
    sel(3, 44, 45, "v_mov_b32 v31, s75")
    sel(4, 78, 79, "v_lshlrev_b32 v31, 7, v25\nv_add_u32 v31, s77, v31", 64 * 7168)
    E(f"s_mul_i32 s75, s74, {56*128}\ns_sub_u32 s75, s75, {11*11*128}\ns_lshl_b32 s76, s74, 11\ns_sub_u32 s77, s76, {16*512}\ns_sub_u32 s76, s76, {18*512}")
    sel(11, 56, 57, f"v_mul_u32_u24 v31, {11*128}, v25\nv_add_u32 v31, s75, v31", 128)
    sel(16, 46, 47, "v_lshlrev_b32 v31, 9, v25\nv_add_u32 v31, s77, v31")
    sel(18, 48, 49, "v_lshlrev_b32 v31, 9, v25\nv_add_u32 v31, s76, v31")
    sel(20, 58, 59, f"v_lshlrev_b32 v31, 9, v25\nv_subrev_u32 v31, {20*512}, v31")
    E(f"s_lshl_b32 s75, s{S_NT}, 6\ns_lshl_b32 s76, s{S_MT}, 20")
    sel(22, 38, 39, "v_mov_b32 v31, s75", "0")
    sel(23, 40, 41, "v_mov_b32 v31, s75")
    sel(24, 50, 51, "v_mov_b32 v31, s75")
    sel(25, 96, 97, "v_mov_b32 v31, s76")
    sel(26, 80, 81, "v_mov_b32 v31, 0", 128)
    E("v_mov_b32 v31, 0\nv_lshl_add_u64 v[26:27], v[30:31], 0, v[26:27]")

def gen(cfg=None):
    cfg = cfg or {}
    k1.SCR = SCR
    E = Em()
    E(kernel_head(NAME))
    E("s_cmp_ge_u32 s2, 256\ns_cbranch_scc1 KF_end")
    pt(E, cfg, 'start')
    E("s_load_dwordx16 s[36:51], s[0:1], 0\ns_load_dwordx8 s[52:59], s[0:1], 80\ns_load_dwordx4 s[60:63], s[0:1], 120\ns_load_dwordx2 s[80:81], s[0:1], 64\ns_load_dwordx2 s[96:97], s[0:1], 112")
    E(f"v_lshrrev_b32 v1, 6, v0\nv_and_b32 v0, 63, v0\nv_readfirstlane_b32 s{S_W}, v1")
    E(f"s_and_b32 s{S_KQ}, s2, 3\ns_and_b32 s{T0}, s2, 4\ns_bfe_u32 s{T1}, s2, 0x20003\ns_add_u32 s{S_MT}, s{T0}, s{T1}\ns_lshr_b32 s{S_NB}, s2, 5")
    E(f"s_lshl_b32 s{S_NT}, s{S_KQ}, 3\ns_add_u32 s{S_NT}, s{S_NT}, s{S_NB}\ns_xor_b32 s{S_KXR}, s{S_KQ}, 3")
    E(f"s_lshr_b32 s{S_WM}, s{S_W}, 1\ns_and_b32 s{S_WN}, s{S_W}, 1")
    E("v_lshrrev_b32 v25, 3, v0\nv_and_b32 v26, 7, v0")
    E("v_lshrrev_b32 v27, 2, v25\nv_lshlrev_b32 v27, 5, v27")
    E("v_and_b32 v28, 1, v25\nv_lshl_add_u32 v27, v28, 4, v27")
    E("v_lshrrev_b32 v28, 1, v25\nv_and_b32 v29, 1, v28\nv_add_u32 v27, v27, v29")
    E("v_xor_b32 v29, v26, v28\nv_lshlrev_b32 v29, 4, v29")
    E("v_xor_b32 v30, 64, v29")
    E(f"s_lshl_b32 s{T0}, s{S_MT}, 8\ns_lshl_b32 s{T1}, s{S_WM}, 7\ns_add_u32 s{T0}, s{T0}, s{T1}")
    E(f"s_lshl_b32 s{T1}, s{S_WN}, 3\ns_add_u32 s{T0}, s{T0}, s{T1}")
    E(f"v_add_u32 v27, s{T0}, v27\nv_lshlrev_b32 v27, 11, v27")
    E(f"v_add_u32 v{V_X}, v27, v29\nv_add_u32 v{V_X+1}, v27, v30\nv_add_u32 v{V_X+1}, {64*2048}, v{V_X+1}")
    for j in range(2, 8): E(f"v_add_u32 v{V_X+j}, {2*2048}, v{V_X+j-2}")
    E(f"s_lshl_b32 s{T0}, s{S_NT}, 5\ns_lshl_b32 s{T1}, s{S_WN}, 4\ns_add_u32 s{T0}, s{T0}, s{T1}")
    E(f"v_add_u32 v27, s{T0}, v25\nv_lshlrev_b32 v27, 11, v27")
    E(f"v_add_u32 v{V_B}, v27, v29\nv_add_u32 v{V_B+1}, v27, v30\nv_add_u32 v{V_B+1}, {8*2048}, v{V_B+1}")
    E(f"s_mul_i32 s{T1}, s{S_NT}, 224\ns_mul_i32 s{T2}, s{S_WN}, {32*7168}\ns_add_u32 s{T1}, s{T1}, s{T2}\ns_movk_i32 s{T2}, 7168")
    for j in range(7):
        E(f"v_add_u32 v25, {64*j}, v0\nv_mul_u32_u24 v26, 4682, v25\nv_lshrrev_b32 v26, 16, v26")
        E("v_mul_u32_u24 v27, 14, v26\nv_sub_u32 v27, v25, v27")
        E("v_and_b32 v28, 19, v26\nv_and_b32 v29, 4, v26\nv_lshl_or_b32 v28, v29, 1, v28")
        E("v_and_b32 v29, 8, v26\nv_lshrrev_b32 v29, 1, v29\nv_or_b32 v28, v28, v29")
        E(f"v_mul_u32_u24 v28, s{T2}, v28\nv_lshl_add_u32 v28, v27, 4, v28\nv_add_u32 v{V_W+j}, s{T1}, v28")
    E(f"s_lshl_b32 s{S_MX}, s{S_W}, 13")
    E(f"s_mul_i32 s{S_MW}, s{S_WM}, {UOFF}\ns_mul_i32 s{T1}, s{S_WN}, 7168\ns_add_u32 s{S_MW}, s{S_MW}, s{T1}\ns_add_u32 s{S_MW}, s{S_MW}, {GOFF}")
    E(f"s_lshl_b32 s{S_MB}, s{S_W}, 11\ns_add_u32 s{S_MB}, s{S_MB}, {BOFF}")
    E(f"s_mov_b32 s{S_KX}, 0\ns_mov_b32 s{S_KW}, 0")
    E("v_and_b32 v25, 15, v0\nv_lshrrev_b32 v26, 4, v0")
    E("v_lshrrev_b32 v27, 1, v25\nv_xor_b32 v27, v27, v26\nv_lshlrev_b32 v27, 4, v27\nv_lshl_add_u32 v27, v25, 7, v27")
    E(f"s_lshl_b32 s{T1}, s{S_WM}, 14\nv_add_u32 v{V_RX}, s{T1}, v27\nv_xor_b32 v{V_RX+1}, 64, v{V_RX}")
    E(f"s_lshl_b32 s{T1}, s{S_WN}, 11\ns_add_u32 s{T1}, s{T1}, {BOFF}\nv_xor_b32 v28, 64, v27\nv_add_u32 v{V_RB}, s{T1}, v27\nv_add_u32 v{V_RB+1}, s{T1}, v28")
    E("v_lshrrev_b32 v27, 5, v0\nv_lshlrev_b32 v27, 4, v27\nv_and_b32 v28, 1, v26\nv_lshl_add_u32 v27, v28, 2, v27")
    E("v_bfe_u32 v28, v0, 2, 2\nv_add_u32 v27, v27, v28\nv_mul_u32_u24 v27, 224, v27")
    E(f"s_mul_i32 s{T1}, s{S_WN}, 112\ns_add_u32 s{T1}, s{T1}, {GOFF}\nv_add_u32 v27, s{T1}, v27")
    E(f"v_and_b32 v28, 3, v0\nv_lshl_add_u32 v{V_RW}, v28, 3, v27")
    E(f"v_and_b32 v28, 1, v0\nv_lshl_add_u32 v27, v28, 3, v27\nv_bfe_u32 v28, v0, 1, 1\nv_mul_u32_u24 v28, {UOFF}, v28")
    E(f"v_add_u32 v27, 96, v27\nv_add_u32 v{V_RM}, v27, v28")
    E("s_waitcnt lgkmcnt(0)")
    srd(E, RX, 36, 2048 * 2048)
    E(f"s_cmp_eq_u32 s{S_WM}, 0\ns_cselect_b32 s{T2}, s52, s54\ns_cselect_b32 s{T3}, s53, s55")
    srd(E, RW, T2, 1024 * 7168)
    E(f"s_cmp_eq_u32 s{S_WM}, 0\ns_cselect_b32 s{T2}, s42, s44\ns_cselect_b32 s{T3}, s43, s45")
    srd(E, RB, T2, 1024 * 2048)
    srd(E, RWS, 62, WS_SIZE)
    srd(E, RDBG, 60, 256)
    E(f"s_add_u32 s{T2}, s62, {AGG_OFF}\ns_addc_u32 s{T3}, s63, 0")
    srd(E, RAGG, T2, 131072)
    ops = dma1(0)
    for m, d, adv in ops[7:] + ops[:7]:
        E(m); E("s_nop 0"); E(d + (" @w0" if "s[%d:" % RW in d else " @x0"))
        if adv: E(adv)
    touch_setup(E)
    T1ST = f"s_mov_b64 exec, 0x7ff\n{TOUCH}\n{TOUCH_ADV}\ns_mov_b64 exec, -1"
    for _ in range(3): E(T1ST)
    E(f"s_mov_b32 s77, {EPO_OFF}\ns_lshl_b32 s78, s2, 2\ns_add_u32 s78, s78, s{S_W}\nbuffer_load_dword a250, off, s[{RWS}:{RWS+3}], s77 sc1")
    E(f"s_getpc_b64 s[74:75]\nKF_pc0:\ns_lshl_b32 s76, s{S_W}, 13\nv_lshlrev_b32 v1, 7, v0\nv_add_u32 v1, s76, v1")
    E("global_load_dword a255, v1, s[74:75]\ns_add_u32 s74, s74, 0x8000\ns_addc_u32 s75, s75, 0\nv_min_u32 v1, KF_end-KF_pc0-0x8000, v1")
    E(f"s_lshl_b32 s70, s{S_MT}, 8\ns_lshl_b32 s{T1}, s{S_NT}, 3\ns_add_u32 s70, s70, s{T1}\ns_lshl_b32 s{T1}, s{S_W}, 1\ns_add_u32 s70, s70, s{T1}")
    E(f"s_and_b32 s73, s70, 0xff80\ns_bfe_u32 s{T1}, s70, 0x30004\ns_lshl_b32 s{T1}, s{T1}, 1\ns_add_u32 s73, s73, s{T1}")
    E(f"s_bfe_u32 s{T1}, s70, 0x20002\ns_lshl_b32 s{T1}, s{T1}, 5\ns_add_u32 s73, s73, s{T1}")
    E(f"s_bfe_u32 s{T1}, s70, 0x10001\ns_add_u32 s73, s73, s{T1}\ns_lshl_b32 s73, s73, 11\ns_add_u32 s72, s73, {16*2048}")
    E(f"s_lshl_b32 s70, s70, 3\ns_add_u32 s70, s70, {G_OFF}")
    E(f"s_lshl_b32 s{T0}, s{S_MT}, 3\ns_add_u32 s{T0}, s{T0}, s{S_NB}\ns_lshl_b32 s{T0}, s{T0}, 2\ns_add_u32 s{T0}, s{T0}, s{S_KQ}\ns_lshl_b32 s{T0}, s{T0}, 2\ns_add_u32 s{T0}, s{T0}, s{S_W}")
    E(f"s_mul_i32 s{S_FILL}, s{T0}, 12288\ns_add_u32 s{S_FILL}, s{S_FILL}, {XCH_OFF}\nv_lshlrev_b32 v25, 4, v0")
    small = lines(["global_load_ushort a240, v25, s[38:39]\nglobal_load_ushort a241, v25, s[40:41]\nglobal_load_ushort a242, v25, s[50:51]",
        "global_load_ushort a243, v30, s[38:39]\nglobal_load_ushort a244, v30, s[40:41]\nglobal_load_ushort a245, v30, s[50:51]",
        "global_load_dwordx4 a[216:219], v31, s[58:59]\nglobal_load_dwordx4 a[220:223], v31, s[58:59] offset:1024",
        f"buffer_load_dwordx4 a[224:227], v31, s[{RX}:{RX+3}], s73 offen\nbuffer_load_dwordx4 a[228:231], v31, s[{RX}:{RX+3}], s73 offen offset:1024",
        f"buffer_load_dwordx4 a[232:235], v31, s[{RX}:{RX+3}], s72 offen\nbuffer_load_dwordx4 a[236:239], v31, s[{RX}:{RX+3}], s72 offen offset:1024"])
    for r in range(64): E(f"v_accvgpr_write_b32 a{r}, 0")
    for r in range(4): E(f"v_accvgpr_write_b32 a{246+r}, -1")
    E(f"s_waitcnt vmcnt({E.vm('x0')})\ns_barrier")
    pt(E, cfg, 'bar0')
    segstamp_init(E, cfg, 0, S_W)
    gaps = [[] for _ in range(146)]
    for g in (0, 1):
        for s in (0, 1):
            for it in rd_w1(0, g, g, s): E.ds(*it)
        for i in range(4 * g, 4 * g + 4):
            for s in (0, 1): E.ds(*rd_x(0, s, i))
    n = 0
    for g in range(7):
        w = [it for s in (0, 1) for it in rd_w1(0, g + 2, (g + 2) % 3, s)]
        for k, it in enumerate(w): gaps[(17 + k) if g == 0 else (21 + k) if g == 1 else (g*16 + 1 + 2*k)].append(("ds",) + it)
    nd = 0; g = 0
    for m, d, adv in dma1(1):
        while len(gaps[g]) > 1 or len(gaps[g+1]) > 1 or g in (14, 15, 16): g += 1
        gaps[g].append(("raw", m)); gaps[g+1].append(("raw", d))
        if g + 1 < 16: nd += 1
        if adv: gaps[g+2].append(("raw", adv))
        g += 4
    gaps[15].append(("raw", f"s_waitcnt vmcnt({E.vm('w0') + nd})\ns_barrier"))
    FILL = [f"buffer_store_dwordx4 a[246:249], v25, s[{RWS}:{RWS+3}], s{S_FILL} offen sc1", f"s_add_u32 s{S_FILL}, s{S_FILL}, 1024"]
    for it in ["global_load_dword a255, v1, s[74:75]", f"buffer_load_dword a255, off, s[{RWS}:{RWS+3}], s{S_FILL} sc1"]:
        while gaps[g]: g += 1
        gaps[g].append(("raw", it)); g += 2
    for g in range(7): n = mfma_group(E, 0, g, gaps, n, first=True)
    assert not any(gaps[n:])
    E.L = fix_hazards(E.L, "pro")
    pro = list(E.L)
    tagger = [f"s_cmp_lg_u32 s78, 0\ns_cbranch_scc1 KF_notag\nv_accvgpr_read_b32 v30, a250\ns_mov_b32 s78, 0x9e3779b1\nv_mul_lo_u32 v30, v30, s78\nv_mov_b32 v31, 1\nv_add_u32 v30, 0x7f4a7c15, v30\n"
              f"buffer_store_dword v30, off, s[{RWS}:{RWS+3}], s77 sc1\nbuffer_store_dwordx2 v[30:31], off, s[{RDBG}:{RDBG+3}], 0 sc1\nKF_notag:"]
    E(f"s_mov_b32 s{S_CNT}, 6\n.p2align 3\nKF_loop:")
    l0 = len(E.L)
    segment(E, 0, True, cfg, 2, True, tail=FILL); segment(E, 1, True, cfg, 2, True, extra=tagger, tail=FILL)
    E(f"s_sub_u32 s{S_CNT}, s{S_CNT}, 1\ns_cmp_lg_u32 s{S_CNT}, 0")
    body = E.L[l0:]
    E("s_cbranch_scc1 KF_loop")
    l1 = len(E.L)
    gs = gate_stream(); h = 175
    addr = lines([f"s_lshl_b32 s{T1}, s{S_NT}, 5\ns_lshl_b32 s{T0}, s{S_WN}, 4\ns_add_u32 s{T0}, s{T0}, s{T1}",
        f"v_and_b32 v25, 15, v0\nv_add_u32 v25, s{T0}, v25\nv_lshlrev_b32 v25, 1, v25",
        f"v_and_b32 v30, 31, v0\nv_add_u32 v30, s{T1}, v30\nv_lshlrev_b32 v30, 1, v30\nv_lshlrev_b32 v31, 4, v0"])
    tagchk = [f"v_accvgpr_read_b32 v2, a252\nv_accvgpr_read_b32 v3, a253\ns_mov_b32 s{T2}, {SPIN}\nKF_tagchk:\nv_readfirstlane_b32 s{S_TAG}, v2\nv_readfirstlane_b32 s76, v3\ns_sub_u32 s{T2}, s{T2}, 1\n"
              f"s_cmp_lg_u32 s76, 0\ns_cbranch_scc1 KF_tagok\ns_cmp_eq_u32 s{T2}, 0\ns_cbranch_scc1 KF_tagok\ns_sleep 8\nbuffer_load_dwordx2 v[2:3], off, s[{RDBG}:{RDBG+3}], 0 sc1\ns_waitcnt vmcnt(0)\ns_branch KF_tagchk\nKF_tagok:"]
    fin = ["v_lshrrev_b32 v26, 16, v26", "v_lshrrev_b32 v28, 16, v28", "v_or_b32 v26, v26, v27", "v_or_b32 v28, v28, v29",
           f"v_mov_b32 v27, s{S_TAG}", f"v_mov_b32 v29, s{S_TAG}", f"buffer_store_dwordx4 v[26:29], off, s[{RWS}:{RWS+3}], s70 sc1"]
    segment(E, 0, True, cfg, 2, extra=addr, spread=small[6:] + small[:6] + [f"buffer_load_dwordx2 a[252:253], off, s[{RDBG}:{RDBG+3}], 0 sc1"])
    segment(E, 1, True, cfg, 0, extra=gs[:h])
    segment(E, 0, False, cfg, 0, extra=tagchk + gs[h:] + fin + param_stream())
    E.drain()
    gaps = [[] for _ in range(40)]
    n = mfma_group(E, 1, 7, gaps, 0); mfma_group(E, 1, 8, gaps, n)
    pt(E, cfg, 'loop1')
    E.vq = []
    epilogue1(E, cfg)
    gemm2(E, cfg)
    pt(E, cfg, 'end')
    if cfg.get("stamps"): E("s_waitcnt vmcnt(0)")
    pt(E, cfg, 'drained')
    if cfg.get("gspin"): E("KF_hold:\ns_sleep 16\ns_memrealtime s[44:45]\ns_waitcnt lgkmcnt(0)\ns_sub_u32 s44, s44, s86\ns_cmp_lt_u32 s44, 9000\ns_cbranch_scc1 KF_hold")
    stamp_flush(E, cfg, 62, 0, S_W)
    if cfg.get("dbgout"):
        E(f"s_lshl_b32 s84, s2, 2\ns_add_u32 s84, s84, s{S_W}\ns_cmp_lg_u32 s84, {cfg['dbgout']-1}\ns_cbranch_scc1 KF_end\nv_mov_b32 v1, 0")
        for k in range(7, -1, -1): E(f"v_sub_u32 v{2+k}, v{2+k}, v2")
        E("global_store_dwordx4 v1, v[2:5], s[60:61] offset:16\nglobal_store_dwordx4 v1, v[6:9], s[60:61] offset:32")
        if cfg.get("spin"):
            a_, b_, mult = cfg["spin"]
            E(f"v_sub_u32 v1, v{2+b_}, v{2+a_}\ns_nop 1\nv_readfirstlane_b32 s40, v1\ns_memrealtime s[42:43]\ns_mul_i32 s40, s40, {mult}\ns_min_u32 s40, s40, 100000\ns_waitcnt lgkmcnt(0)")
            E("KF_spin:\ns_memrealtime s[44:45]\ns_waitcnt lgkmcnt(0)\ns_sub_u32 s44, s44, s42\ns_cmp_lt_u32 s44, s40\ns_cbranch_scc1 KF_spin")
    if cfg.get("gspin"):
        ia, opa, ib, opb, mult = cfg["gspin"]
        E("s_waitcnt vmcnt(0)\nbuffer_wbl2 sc1\ns_waitcnt vmcnt(0)\nv_mov_b32 v1, 0\nv_mov_b32 v10, 1\ns_mov_b64 exec, 1\nglobal_atomic_add v11, v1, v10, s[60:61] offset:60 sc0 sc1\ns_waitcnt vmcnt(0)\ns_mov_b64 exec, -1")
        E("v_readfirstlane_b32 s40, v11\ns_cmp_lg_u32 s40, 1023\ns_cbranch_scc1 KF_end\nv_lshlrev_b32 v1, 5, v0")
        for k in range(16):
            E(f"global_load_dword v{32+k}, v1, s[82:83] offset:{4*ia} sc1\nglobal_load_dword v{48+k}, v1, s[82:83] offset:{4*ib} sc1\nv_add_u32 v1, 2048, v1")
        E("s_waitcnt vmcnt(0)")
        for k in range(1, 16): E(f"v_{opa}_u32 v32, v32, v{32+k}\nv_{opb}_u32 v48, v48, v{48+k}")
        E("s_nop 1\nv_readlane_b32 s40, v32, 0\nv_readlane_b32 s41, v48, 0")
        for l in range(1, 64): E(f"v_readlane_b32 s42, v32, {l}\nv_readlane_b32 s43, v48, {l}\ns_nop 0\ns_{opa}_u32 s40, s40, s42\ns_{opb}_u32 s41, s41, s43")
        E(f"s_sub_u32 s40, s41, s40\nv_mov_b32 v1, 0\nv_mov_b32 v10, s40\nglobal_store_dword v1, v10, s[60:61] offset:56\ns_memrealtime s[42:43]\ns_mul_i32 s40, s40, {mult}\ns_min_u32 s40, s40, 100000\ns_waitcnt lgkmcnt(0)")
        E("KF_spin:\ns_memrealtime s[44:45]\ns_waitcnt lgkmcnt(0)\ns_sub_u32 s44, s44, s42\ns_cmp_lt_u32 s44, s40\ns_cbranch_scc1 KF_spin")
    E("KF_end:\ns_endpgm")
    E.L[l1:] = fix_hazards(E.L[l1:], "tail")
    return E.text(), check(pro + body + body + E.L[l1:], "kf")

def epilogue1(E, cfg):
    LAM, L16, SA = 2, 4, 10
    re_ = lambda n: 32 + 2 * n
    im_ = lambda n: 64 + 2 * n
    unstash(E, LAM, A_LAM); unstash(E, L16, A_L16)
    E("v_and_b32 v25, 15, v0\nv_lshrrev_b32 v26, 4, v0")
    hr, hi = re_(0), im_(0)
    for n in range(1, 16):
        nr, ni = (6, 8) if n & 1 else (12, 14)
        E(pkf(nr, hr, LAM, re_(n), 0)); E(pkf(ni, hi, LAM, im_(n), 0))
        E(pkf(nr, hi, LAM, nr, 1, True)); E(pkf(ni, hr, LAM, ni, 1))
        hr, hi = nr, ni
    E(f"v_mov_b32 v{SA}, v{hr}\nv_mov_b32 v{SA+1}, v{hi}")
    cfma(E, 12, 13, L16, L16 + 1, hr, hi, hr + 1, hi + 1)
    E(f"s_lshl_b32 s{T0}, s{S_WM}, 10\ns_lshl_b32 s{T1}, s{S_WN}, 7\ns_add_u32 s{T0}, s{T0}, s{T1}\ns_add_u32 s{T0}, s{T0}, {SCR}")
    E(f"v_lshlrev_b32 v27, 8, v26\nv_lshl_add_u32 v27, v25, 3, v27\nv_add_u32 v27, s{T0}, v27\nds_write_b64 v27, v[12:13]")
    E(f"s_lshl_b32 s{T0}, s{S_MT}, 12\ns_lshl_b32 s{T1}, s{S_WM}, 11\ns_add_u32 s70, s{T0}, s{T1}\ns_add_u32 s70, s70, {ACT_OFF}")
    E(f"s_mul_i32 s{T0}, s{S_NT}, 14\ns_mul_i32 s{T1}, s{S_WN}, 7\ns_add_u32 s{T0}, s{T0}, s{T1}\ns_add_u32 s{T0}, s{T0}, 256\ns_lshl_b32 s{T0}, s{T0}, 15\ns_add_u32 s71, s70, s{T0}")
    E("v_lshrrev_b32 v28, 1, v26\nv_and_b32 v29, 1, v26\nv_lshlrev_b32 v1, 15, v28\nv_lshl_add_u32 v1, v29, 8, v1\nv_lshl_add_u32 v1, v25, 4, v1\nv_add_u32 v16, s71, v1")
    E(f"v_lshl_add_u32 v1, v29, 1, v28\nv_lshlrev_b32 v1, 8, v1\nv_lshl_add_u32 v1, v25, 4, v1\nv_add_u32 v1, s71, v1\nv_add_u32 v17, {6*32768}, v1")
    E(f"s_lshl_b32 s{T0}, s{S_NT}, 2\ns_lshl_b32 s{T1}, s{S_WN}, 1\ns_add_u32 s{T0}, s{T0}, s{T1}\ns_lshl_b32 s{T0}, s{T0}, 15\ns_add_u32 s72, s70, s{T0}")
    E("v_lshl_add_u32 v1, v28, 7, v29\nv_lshlrev_b32 v1, 15, v1\nv_lshl_add_u32 v1, v25, 4, v1\nv_add_u32 v18, s72, v1")
    E(f"v_mov_b32 v30, {hexf(-2*0.7978845608028654*LOG2E)}\nv_mov_b32 v31, {hexf(-2*0.7978845608028654*LOG2E*0.044715)}")
    srd(E, RWD, 56, 3584 * 2048); srd(E, RC0, 46, 1024 * 2048); srd(E, RC1, 48, 1024 * 2048)
    E(f"s_lshl_b32 s{S_AC}, s{S_KQ}, 20\ns_mul_i32 s{S_AD}, s{S_KQ}, {112*32768}\ns_add_u32 s{S_AD}, s{S_AD}, {256*32768}")
    E(f"s_lshl_b32 s{S_WC}, s{S_KQ}, 9\ns_mul_i32 s{S_WD}, s{S_KQ}, {896*2048}")
    E(f"s_lshl_b32 s{S_MA}, s{S_W}, 13\ns_lshl_b32 s{S_MW2}, s{S_W}, 12\ns_add_u32 s{S_MW2}, s{S_MW2}, {WOFF}")
    E(f"s_sub_u32 s{S_RECV}, s{S_FILL}, 12288\ns_mul_i32 s{T1}, s{S_KQ}, 49152\ns_sub_u32 s{T0}, s{S_RECV}, s{T1}")
    for sp in range(3): E(f"s_xor_b32 s{T1}, s{S_KXR}, {sp}\ns_mul_i32 s{T1}, s{T1}, 49152\ns_add_u32 s{T1}, s{T1}, {(2-sp)*4096}\ns_add_u32 s{S_SEND+sp}, s{T0}, s{T1}")
    E(f"s_lshl_b32 s{T0}, s{S_MT}, 2\ns_add_u32 s{T0}, s{T0}, s{S_KQ}\ns_lshl_b32 s{T0}, s{T0}, 10\ns_add_u32 s{S_FGRP}, s{T0}, {FLG_OFF}")
    E(f"s_lshl_b32 s{T0}, s{S_NB}, 7\ns_lshl_b32 s{T1}, s{S_W}, 2\ns_add_u32 s{T0}, s{T0}, s{T1}\ns_add_u32 s{S_FOWN}, s{S_FGRP}, s{T0}")
    E(f"s_lshl_b32 s{S_GSRC}, s{S_MT}, 11\ns_lshl_b32 s{T1}, s{S_WN}, 10\ns_add_u32 s{S_GSRC}, s{S_GSRC}, s{T1}\ns_add_u32 s{S_GSRC}, s{S_GSRC}, {G_OFF}\ns_add_u32 s{S_GLDS}, s{T1}, {GLDS}")
    E("s_waitcnt lgkmcnt(0)\ns_barrier")
    E(f"s_cmp_eq_u32 s{S_MT}, 7\ns_cselect_b32 s73, 1, s{S_W}\ns_cmp_lg_u32 s73, 0\ns_cbranch_scc1 KF_nopub")
    E(f"v_and_b32 v1, 31, v0\nv_lshlrev_b32 v1, 3, v1\nv_add_u32 v27, {SCR}, v1")
    slot = [12, 14, 20, 22]
    E("ds_read_b64 v[6:7], v27")
    for s in range(1, 5): E(f"ds_read_b64 {vr(slot[s-1],2)}, v27 offset:{256*s}")
    unstash(E, 28, A_L32P)
    a, b = 6, 8
    for s in range(1, 8):
        E(f"s_waitcnt lgkmcnt({min(3, 7-s)})")
        cur = slot[(s - 1) & 3]
        cfma(E, b, b + 1, 28, 29, a, a + 1, cur, cur + 1); a, b = b, a
        if s + 4 < 8: E(f"ds_read_b64 {vr(cur,2)}, v27 offset:{256*(s+4)}")
    E(f"s_lshl_b32 s{T0}, s{S_MT}, 14\ns_lshl_b32 s{T1}, s{S_NT}, 9\ns_add_u32 s{T0}, s{T0}, s{T1}")
    E(f"v_mov_b32 v12, v{a}\nv_mov_b32 v13, s{S_TAG}\nv_mov_b32 v14, v{a+1}\nv_mov_b32 v15, s{S_TAG}\nv_lshlrev_b32 v1, 1, v1")
    E(f"buffer_store_dwordx4 v[12:15], v1, s[{RAGG}:{RAGG+3}], s{T0} offen sc1\ns_nop 1")
    E("KF_nopub:")
    pt(E, cfg, 'pub')
    def store_quad(R, voff, soff, imm, tag):
        E(f"buffer_store_dwordx4 v[{R}:{R+3}], v{voff}, s[{RWS}:{RWS+3}], {soff} offen offset:{imm} sc1 @{tag}")
    for j in range(3):
        G = 96 + 64 * j; U = G + 32
        if j == 2:
            U = 96
            for r in range(32): E(f"v_accvgpr_read_b32 v{U+r}, a{r}")
        E(f"s_mov_b32 s74, {2*j*32768}")
        for i in range(0, 8, 2):
            R = G + 4 * i
            gelu_quads(E, [(G + 4 * i + 2 * k, U + 4 * i + 2 * k) for k in range(4)])
            for k in range(4): E(f"v_cvt_pk_bf16_f32 v{R+k}, v{U+4*i+2*k}, v{U+4*i+2*k+1}")
            E(f"s_nop 1\nv_permlane16_swap_b32 v{R}, v{R+2}\nv_permlane16_swap_b32 v{R+1}, v{R+3}")
            store_quad(R, 16, "s74", i * 256, "glu")
    pt(E, cfg, 'glu')
    AG = 192
    E(f"s_sub_u32 s{T0}, s{S_MT}, 7\ns_lshl_b32 s{T0}, s{T0}, 14\ns_lshl_b32 s{T1}, s{S_NT}, 9\ns_add_u32 s{T0}, s{T0}, s{T1}\ns_lshl_b32 s{T1}, s{S_WN}, 8\ns_add_u32 s{T0}, s{T0}, s{T1}")
    E(f"v_lshlrev_b32 v96, 4, v25\nv_add_u32 v96, s{T0}, v96")
    for k in range(1, 7): E(f"v_add_u32 v{96+k}, {0x4000*k}, v96")
    agg = [f"buffer_load_dwordx4 v[{AG+4*k}:{AG+4*k+3}], v{96+k}, s[{RAGG}:{RAGG+3}], 0 offen sc1" for k in range(7)]
    for x in agg: E(x + " @agg")
    E(f"s_lshl_b32 s{T0}, s{S_KXR}, 1\ns_and_b32 s{T1}, s{T0}, 2\ns_and_b32 s{T2}, s{T0}, 4")
    E(f"v_xor_b32 v1, s{T1}, v26\nv_lshlrev_b32 v1, 8, v1\nv_lshl_add_u32 v1, v25, 4, v1")
    E(f"s_lshl_b32 s{T0}, s{S_W}, 16\ns_lshl_b32 s{T1}, s{S_MT}, 12\ns_add_u32 s{T0}, s{T0}, s{T1}\ns_add_u32 s{T0}, s{T0}, {ACT_OFF}\ns_lshl_b32 s{T2}, s{T2}, 8")
    E(f"s_add_u32 s{T1}, s{T0}, s{T2}\ns_sub_u32 s{T3}, s{T0}, s{T2}")
    E(f"v_add_u32 v{H_A}, s{T1}, v1\nv_add_u32 v{H_A+1}, s{T3}, v1\nv_add_u32 v{H_A+2}, 0x8000, v{H_A}\nv_add_u32 v{H_A+3}, 0x8000, v{H_A+1}")
    E(f"v_lshlrev_b32 v1, 1, v26\nv_xor_b32 v1, v1, v25\nv_lshlrev_b32 v1, 4, v1\ns_lshl_b32 s{T0}, s{S_W}, 4\nv_add_u32 v28, s{T0}, v26\nv_lshlrev_b32 v28, 11, v28")
    E(f"s_lshl_b32 s{T0}, s{S_NB}, 8\nv_add_u32 v28, s{T0}, v28\nv_add_u32 v{H_D}, v28, v1\nv_add_u32 v{H_D+1}, {4*2048}, v{H_D}")
    E(f"v_xor_b32 v1, 128, v1\nv_add_u32 v{H_D+2}, v28, v1\nv_add_u32 v{H_D+2}, {8*2048}, v{H_D+2}\nv_add_u32 v{H_D+3}, {4*2048}, v{H_D+2}")
    wq = []
    for st in range(3):
        sa, sw, w, a_ = dma2(st, H_A, H_D)
        wq += [(sw + "\n" if j == 0 else "") + m + "\ns_nop 0\n" + d for j, (m, d) in enumerate(w)]
    M = 128
    for r in range(32):
        E(f"v_accvgpr_read_b32 v{M+r}, a{32+r}")
        if r % 8 == 7: E(wq.pop(0))
    for i in range(0, 8, 2):
        for r in range(4): E(f"v_permlane32_swap_b32 v{M+4*i+r}, v{M+4*i+4+r}")
        E(wq.pop(0))
    for i in (0, 4):
        R = M + 4 * i
        q = [(M + 4 * ii + 2 * k, M + 4 * ii + 4 + 2 * k) for ii in (i, i + 2) for k in (0, 1)]
        gelu_quads(E, q)
        for k in range(4): E(f"v_cvt_pk_bf16_f32 v{R+k}, v{q[k][1]}, v{q[k][1]+1}")
        E(f"s_nop 1\nv_permlane16_swap_b32 v{R}, v{R+2}\nv_permlane16_swap_b32 v{R+1}, v{R+3}")
        store_quad(R, 17, "0", i * 256, "glu")
        E(wq.pop(0)); E(wq.pop(0))
    pt(E, cfg, 'mix')
    SG = 112
    E(f"s_lshl_b32 s{T1}, s{S_WN}, 7\ns_add_u32 s{T1}, s{T1}, {SCR}\nv_lshlrev_b32 v27, 3, v25\nv_add_u32 v27, s{T1}, v27")
    for s in range(7): E(f"ds_read_b64 v[{SG+2*s}:{SG+2*s+1}], v27 offset:{256*s}")
    unstash(E, 20, A_L256); unstash(E, 22, A_L32)
    E(f"s_lshl_b32 s{T1}, s{S_WM}, 2\nv_add_u32 v28, s{T1}, v26")
    E(f"s_mul_i32 s{T1}, s{S_W}, 3072\ns_add_u32 s{T1}, s{T1}, {TRS}\nv_lshlrev_b32 v27, 7, v26\nv_lshl_add_u32 v27, v25, 3, v27\nv_add_u32 v14, s{T1}, v27")
    E("v_lshrrev_b32 v27, 5, v0\nv_lshlrev_b32 v27, 9, v27\nv_and_b32 v29, 3, v0\nv_lshl_add_u32 v27, v29, 7, v27")
    E(f"v_and_b32 v29, 1, v26\nv_lshl_add_u32 v27, v29, 6, v27\nv_bfe_u32 v29, v0, 2, 2\nv_lshl_add_u32 v27, v29, 3, v27\nv_add_u32 v15, s{T1}, v27")
    E(f"s_mov_b32 s{T2}, {SPIN}\ns_waitcnt vmcnt({E.vm('agg')})\nKF_chk:\nv_mov_b32 v104, 0")
    for k in range(7):
        E(f"s_cmp_gt_u32 s{S_MT}, {6-k}\ns_cselect_b32 s{T3}, -1, 0\nv_xor_b32 v105, s{S_TAG}, v{AG+4*k+1}\nv_xor_b32 v106, s{S_TAG}, v{AG+4*k+3}\nv_or_b32 v105, v105, v106\nv_and_or_b32 v104, v105, s{T3}, v104")
    E(f"v_cmp_ne_u32 vcc, 0, v104\ns_sub_u32 s{T2}, s{T2}, 1\ns_nop 3\ns_cbranch_vccz KF_got\ns_cmp_eq_u32 s{T2}, 0\ns_cbranch_scc1 KF_got\ns_sleep 6")
    E.L += agg
    E("s_waitcnt vmcnt(0)\ns_branch KF_chk\nKF_got:\ns_waitcnt lgkmcnt(0)")
    pt(E, cfg, 'agg')
    srd(E, ROUT, 96, 2048 * 4096)
    E(f"v_mov_b32 v8, v{AG}\nv_mov_b32 v9, v{AG+2}")
    a, b = 8, 6
    for k in range(1, 7):
        cfma(E, b, b + 1, 20, 21, a, a + 1, AG + 4 * k, AG + 4 * k + 2); a, b = b, a
    CR, CI = 160, 162
    E(f"v_mov_b32 v{CR}, v{a}\nv_mov_b32 v{CI}, v{a+1}")
    for s in range(7):
        E(f"v_cmp_lt_u32 vcc, {s}, v28")
        cfma(E, b, b + 1, 22, 23, a, a + 1, SG + 2 * s, SG + 2 * s + 1); a, b = b, a
        E(f"v_cndmask_b32 v{CR}, v{CR}, v{a}, vcc\nv_cndmask_b32 v{CI}, v{CI}, v{a+1}, vcc")
    cfma(E, CR + 1, CI + 1, L16, L16 + 1, CR, CI, SA, SA + 1)
    unstash(E, 20, A_C2)
    E(f"v_mov_b32 v19, s{S_TAG}\ns_waitcnt vmcnt({E.vm('glu')})\nbuffer_store_dword v19, off, s[{RWS}:{RWS+3}], s{S_FOWN} sc1")
    E(f"v_lshrrev_b32 v27, 2, v0\nv_and_b32 v27, 7, v27\nv_and_b32 v29, 3, v0\nv_lshlrev_b32 v27, 7, v27\nv_lshl_add_u32 v164, v29, 2, v27")
    pt(E, cfg, 'f2')
    hr, hi = CR, CI
    for n in range(16):
        E(pkf(re_(n), hr, LAM, re_(n), 0)); E(pkf(im_(n), hi, LAM, im_(n), 0))
        E(pkf(re_(n), hi, LAM, re_(n), 1, True)); E(pkf(im_(n), hr, LAM, im_(n), 1))
        hr, hi = re_(n), im_(n)
    POLL = f"buffer_load_dword v165, v164, s[{RWS}:{RWS+3}], s{S_FGRP} offen sc1"
    def trd(i):
        R = 192 + 4 * i
        E(f"ds_read_b64_tr_b16 v[{R}:{R+1}], v15 offset:{(i%3)*1024}\nds_read_b64_tr_b16 v[{R+2}:{R+3}], v15 offset:{(i%3)*1024+32}")
    for i in range(10):
        if i < 8:
            T = 96 + 8 * (i & 1); R = 112 + 4 * i
            for k in (0, 1):
                n = 2 * i + k
                E(pkm(T + 4 * k, re_(n), 20, 0)); E(pkm(T + 4 * k + 2, im_(n), 20, 0, True))
                E(pkf(T + 4 * k, im_(n), 20, T + 4 * k, 1, True)); E(pkf(T + 4 * k + 2, re_(n), 20, T + 4 * k + 2, 1, True))
            for k in (0, 1):
                E(f"v_cvt_pk_bf16_f32 v{R+k}, v{T+4*k}, v{T+4*k+1}\nv_cvt_pk_bf16_f32 v{R+2+k}, v{T+4*k+2}, v{T+4*k+3}")
        if i == cfg.get("poll_at", 4): E(POLL + " @poll")
        if i >= 2:
            E(f"s_waitcnt lgkmcnt({4 if i < 9 else 0})" if i < 9 else "s_waitcnt lgkmcnt(0)")
            store_quad(192 + 4 * (i - 2), 18, "0", (i - 2) * 256, "h")
        if i < 8:
            E(f"ds_write_b64 v14, v[{R}:{R+1}] offset:{(i%3)*1024}\nds_write_b64 v14, v[{R+2}:{R+3}] offset:{(i%3)*1024+512}")
            trd(i)
    pt(E, cfg, 'e1end')
    E(f"s_waitcnt vmcnt({E.vm('poll')})")
    E.L += poll_block("KF_f2", 165, POLL).split("\n")
    pt(E, cfg, 'f2ok')
    for st in range(3):
        sa, sw, w, a_ = dma2(st, H_A, H_D)
        E(sa)
        for m, d in a_:
            if m: E(m); E("s_nop 0")
            E(d)

def gemm2(E, cfg):
    E.age = cfg.get("age", 6)
    for k in range(4): E(f"v_mov_b32 v{V_A+k}, v{H_A+k}\nv_mov_b32 v{V_D+k}, v{H_D+k}")
    E("v_mov_b32 v30, v26\nv_mov_b32 v31, v25\nv_mov_b32 v27, v164")
    E("v_lshrrev_b32 v28, 3, v0\nv_and_b32 v29, 7, v0\nv_lshrrev_b32 v1, 1, v28\nv_xor_b32 v29, v29, v1\nv_lshlrev_b32 v29, 4, v29")
    E(f"s_lshl_b32 s{T0}, s{S_NB}, 7\ns_lshl_b32 s{T1}, s{S_W}, 5\ns_add_u32 s{T0}, s{T0}, s{T1}\nv_add_u32 v28, s{T0}, v28\nv_lshlrev_b32 v28, 11, v28")
    E(f"v_add_u32 v{V_C}, v28, v29\nv_xor_b32 v29, 64, v29\nv_add_u32 v{V_C+1}, v28, v29\nv_add_u32 v{V_C+1}, {8*2048}, v{V_C+1}")
    E(f"v_add_u32 v{V_C+2}, {16*2048}, v{V_C}\nv_add_u32 v{V_C+3}, {16*2048}, v{V_C+1}")
    E(f"s_lshl_b32 s{T0}, s{S_WM}, 11\nv_lshlrev_b32 v1, 12, v30\nv_lshl_add_u32 v1, v31, 4, v1\nv_add_u32 v{V_RA}, s{T0}, v1\nv_add_u32 v{V_RA+1}, 0x10000, v{V_RA}")
    E(f"v_lshrrev_b32 v1, 1, v31\nv_xor_b32 v1, v1, v30\nv_lshlrev_b32 v1, 4, v1\nv_lshl_add_u32 v1, v31, 7, v1\ns_lshl_b32 s{T0}, s{S_WN}, 13\ns_add_u32 s{T0}, s{T0}, {WOFF}")
    E(f"v_add_u32 v{V_RC}, s{T0}, v1\nv_xor_b32 v{V_RC+1}, 64, v{V_RC}")
    E("v_bfe_u32 v1, v0, 2, 2\nv_lshl_add_u32 v28, v30, 3, v1\nv_lshlrev_b32 v28, 8, v28\nv_and_b32 v29, 1, v0\nv_lshl_add_u32 v28, v29, 3, v28")
    E(f"v_add_u32 v28, {WOFF}, v28\nv_and_b32 v29, 1, v30\nv_lshl_add_u32 v1, v29, 2, v1\nv_lshlrev_b32 v1, 1, v1")
    E(f"v_bfe_u32 v29, v0, 1, 1\ns_lshl_b32 s{T0}, s{S_WN}, 3\nv_add_u32 v29, s{T0}, v29\nv_xor_b32 v1, v1, v29")
    for jt in range(4): E(f"v_xor_b32 v29, {2*jt}, v1\nv_lshl_add_u32 v{V_RD+jt}, v29, 4, v28")
    E("v_lshrrev_b32 v1, 2, v31\nv_lshlrev_b32 v1, 5, v1\nv_and_b32 v28, 1, v31\nv_lshl_add_u32 v1, v28, 4, v1\nv_bfe_u32 v28, v31, 1, 1\nv_add_u32 v1, v1, v28")
    E(f"s_lshl_b32 s{T0}, s{S_MT}, 8\ns_lshl_b32 s{T1}, s{S_WM}, 7\ns_add_u32 s{T0}, s{T0}, s{T1}\ns_lshl_b32 s{T1}, s{S_KQ}, 2\ns_add_u32 s{T0}, s{T0}, s{T1}\nv_add_u32 v1, s{T0}, v1")
    E(f"s_lshl_b32 s{T0}, s{S_NB}, 7\ns_lshl_b32 s{T1}, s{S_WN}, 6\ns_add_u32 s{T0}, s{T0}, s{T1}\nv_lshl_add_u32 v28, v30, 2, s{T0}")
    E("v_accvgpr_write_b32 a169, v28\nv_lshl_add_u32 v1, v1, 10, v28\nv_accvgpr_write_b32 a168, v1")
    E(f"s_lshl_b32 s{T0}, s{S_WM}, 10\ns_add_u32 s{T0}, s{T0}, {GLDS}\nv_lshlrev_b32 v23, 3, v31\nv_add_u32 v23, s{T0}, v23\ns_lshl_b32 s{T1}, s{S_KXR}, 8\nv_xor_b32 v23, s{T1}, v23")
    for k in range(1, 4): E(f"v_xor_b32 v{23+k}, {256*k}, v23")
    E("v_lshlrev_b32 v22, 4, v0")
    E(f"v_add_u32 v27, 16, v27\nv_bfe_u32 v28, v0, 2, 2\nv_min_u32 v28, 2, v28\nv_add_u32 v28, 1, v28\nv_xor_b32 v28, s{S_KQ}, v28\nv_subrev_u32 v28, s{S_KQ}, v28")
    E(f"v_lshlrev_b32 v28, 10, v28\ns_lshl_b32 s{T0}, s{S_NB}, 7\nv_add_u32 v28, s{T0}, v28\nv_and_b32 v29, 3, v0\nv_lshl_add_u32 v28, v29, 2, v28\nv_cmp_gt_u32 vcc, 32, v0")
    E(f"s_nop 1\nv_cndmask_b32 v27, v28, v27, vcc\nv_add_u32 v27, s{S_FGRP}, v27\nv_mov_b32 v29, s{S_TAG}")
    E(f"s_waitcnt vmcnt({E.vm('st0')})\ns_barrier")
    pt(E, cfg, 'k2start')
    segstamp_init(E, cfg, 1, S_W)
    def put_dma(gaps, st, start, every):
        sa, sw, w, a_ = dma2(st)
        gaps[start - 1] = [("raw", sw)] + gaps[start - 1]; gaps[start + 1].append(("raw", sa))
        g = start
        for m, d in w + a_:
            while len(gaps[g]) > 1 or len(gaps[g+1]) > 1: g += 1
            if m: gaps[g].append(("raw", m))
            gaps[g+1].append(("raw", d))
            g += every
        return g
    w = rd_w(0)
    for it in rd_a(0, 0) + w[:8] + rd_a(0, 1) + w[8:] + rd_a(0, 2): E.ds(*it)
    gaps = [[] for _ in range(66)]
    for i in range(5):
        for k, it in enumerate(rd_a(0, i + 3)): gaps[i*8 + 1 + 2*k].append(("ds",) + it)
    n = 0
    for i in range(5): n = group(E, 0, i, gaps, n)
    scale = []
    for i in range(8): scale += [f"v_accvgpr_read_b32 v{V_G+i}, a{A_G+2*i}", f"v_and_b32 v{V_G+i}, 0xffff0000, v{V_G+i}"]
    for i in range(8):
        for jt in range(4):
            k, r = acc1(i, jt)
            for e in range(4):
                if k == "v": scale.append(f"v_mul_f32 v{r+e}, v{V_G+i}, v{r+e}")
                else: scale += [f"v_accvgpr_read_b32 v30, a{r+e}", f"v_mul_f32 v30, v{V_G+i}, v30", f"v_accvgpr_write_b32 a{r+e}, v30"]
    F3POLL = f"buffer_load_dword v28, v27, s[{RWS}:{RWS+3}], 0 offen sc1"
    greload = "\n".join(f"buffer_load_dwordx2 {ar(A_G+2*i,2)}, v{23+(i>>1)}, s[{RWS}:{RWS+3}], s{T3} offen offset:{(i&1)*128} sc1" for i in range(8))
    gchk = (f"s_mov_b32 s{T2}, {SPIN}\ns_lshl_b32 s{T3}, s{S_MT}, 11\ns_add_u32 s{T3}, s{T3}, {G_OFF - GLDS}\nKF_g_chk:\nv_mov_b32 v1, 0\n"
            + "\n".join(f"v_accvgpr_read_b32 v30, a{A_G+2*i+1}\nv_xor_b32 v30, s{S_TAG}, v30\nv_or_b32 v1, v1, v30" for i in range(8))
            + f"\nv_cmp_ne_u32 vcc, 0, v1\ns_sub_u32 s{T2}, s{T2}, 1\ns_nop 3\ns_cbranch_vccz KF_g_ok\ns_cmp_eq_u32 s{T2}, 0\ns_cbranch_scc1 KF_g_ok\ns_sleep 4\n"
            + greload + "\ns_waitcnt vmcnt(0)\ns_branch KF_g_chk\nKF_g_ok:")
    for st in range(1, NST + 1):
        gaps = [[] for _ in range(68)]
        if st < NST:
            w = rd_w(st); per = len(w) // 2
            first = rd_a(st, 0) + w[:per]
            for k, it in enumerate(first): gaps[k].append(("ds",) + it)
            g = max(len(first), 9)
            second = rd_a(st, 1) + w[per:]
            for k, it in enumerate(second): gaps[g + k].append(("ds",) + it)
            g = max(g + len(second), 17)
            for k, it in enumerate(rd_a(st, 2)): gaps[g + k].append(("ds",) + it)
            for i in range(5):
                for k, it in enumerate(rd_a(st, i + 3)): gaps[24 + i*8 + 1 + 2*k].append(("ds",) + it)
            if st + 2 < NST: put_dma(gaps, st + 2, cfg.get("dma2_start", 1), cfg.get("dma2_every", 5))
            if st == 1: gaps[60].append(("raw", f"buffer_store_dword v29, off, s[{RWS}:{RWS+3}], s{S_FOWN} offset:16 sc1"))
            if st == 4: gaps[62].append(("raw", f"s_mov_b32 m0, s{S_GLDS}")); gaps[63].append(("raw", f"buffer_load_dwordx4 v22, s[{RWS}:{RWS+3}], s{S_GSRC} offen sc1 lds"))
            if st == 7: gaps[63].append(("raw", F3POLL))
            if st == 8:
                for i in range(8): gaps[30 + 4*i].append(("ds", f"ds_read_b64 {ar(A_G+2*i,2)}, v{23 + (i>>1)} offset:{(i&1)*128}", ("g", i)))
            if st == 10: gaps[40].append(("rawq", poll_block("KF_f3", 28, F3POLL)))
            if st == 11: gaps[40].append(("rawq", gchk))
            if ND <= st < NST - 1:
                for g in range(32 if st == ND else 20, 64):
                    if scale and len(gaps[g]) <= (0 if g % 3 else 1): gaps[g].append(("raw", scale.pop(0)))
            if st == NST - 1:
                pre = [x for i in range(8) for x in (f"v_accvgpr_read_b32 v{2+i}, a{A_G+2*i}", f"v_lshlrev_b32 v{2+i}, 16, v{2+i}")] + ["v_lshlrev_b32 v10, 4, v0"]
                fill(gaps, pre, 12, 30)
            E.drain(f"vmcnt({E.vm('st%d' % st)})")
            E("s_barrier")
            segstamp(E, cfg, RWS)
        else:
            E.drain()
        if st == NST - 1: sends = send_stream()
        if st >= NST - 1:
            base = 0 if st == NST - 1 else 64; hi = 64 if st == NST - 1 else 24; g = 0
            while sends:
                g = max(g, sends[0][0] - base)
                while g < hi and len(gaps[g]) >= 2: g += 1
                if g >= hi: break
                gaps[g].append(("raw", sends.pop(0)[1]))
        for gp in gaps:
            for k, it in enumerate(gp):
                if it[0] == "rawq": gp[k] = ("raw", it[1].replace("buffer_load", "\x00buffer_load"))
        n = 0
        for i in (5, 6, 7): n = group(E, st - 1, i, gaps, n)
        if st < NST:
            for i in range(5): n = group(E, st, i, gaps, n)
        assert not any(gaps[n:]), (st, gaps[n:])
    E.L = [x.replace("\x00", "") for x in E.L]
    assert not scale, len(scale)
    rest = [x for _, x in sends]
    k = 0
    while k < len(rest):
        m = re.match(r"v_fma_f32 v(\d+), v\d+, v(\d+), v(\d+)", rest[k])
        if m and int(m.group(1)) % 2 == 0 and k + 1 < len(rest) and rest[k+1].startswith(f"v_fma_f32 v{int(m.group(1))+1},"):
            d, o, c = map(int, m.groups())
            E(f"v_pk_fma_f32 {vr(d,2)}, {vr(d,2)}, {vr(o & ~1,2)}, {vr(c,2)} op_sel:[0,{o&1},0] op_sel_hi:[1,{o&1},1]"); k += 2
        else: E(rest[k]); k += 1
    pt(E, cfg, 'loop2')
    epilogue2(E, cfg)

def send_stream():
    out = []
    for i in range(6):
        for a in (0, 1):
            R = acc1(i, 2 * a)[1]; t = 24 + 8 * i + 4 * a + 6
            for jt in (2 * a, 2 * a + 1):
                d = acc2(i, jt); c = acc1(i, jt)[1]
                out += [(t, f"v_fma_f32 v{d+e}, v{d+e}, v{2+i}, v{c+e}") for e in range(4)]
            for k in range(4):
                d = acc2(i, 2 * a + (k >> 1)) + 2 * (k & 1)
                out.append((t, f"v_cvt_pk_bf16_f32 v{R+k}, v{d}, v{d+1}"))
            out.append((t, f"buffer_store_dwordx4 {vr(R,4)}, v10, s[{RWS}:{RWS+3}], s{S_SEND+(i>>1)} offen offset:{((i&1)*2+a)*1024} sc1"))
    return out

def epilogue2(E, cfg):
    P = lambda r: vr(r, 2)
    RV = lambda k, u: 64 + (k * 4 + u) * 4
    E("v_accvgpr_read_b32 v19, a168\nv_accvgpr_read_b32 v13, a169\nv_lshlrev_b32 v11, 1, v19\nv_add_u32 v12, 0x1000, v11\nv_lshlrev_b32 v13, 1, v13\nv_lshlrev_b32 v19, 2, v19")
    E(f"s_add_u32 s{T0}, s{S_RECV}, 4096\ns_add_u32 s{T1}, s{S_RECV}, 8192")
    so = [S_RECV, T0, T1]
    rl = lambda k: [f"buffer_load_dwordx4 {vr(RV(k,u),4)}, v10, s[{RWS}:{RWS+3}], s{so[k]} offen offset:{u*1024} sc1" for u in range(4)]
    for ii in (0, 1):
        for jt in range(4): E(f"buffer_load_dwordx2 {ar(A_X+(ii*4+jt)*2,2)}, v{11+ii}, s[{RX}:{RX+3}], 0 offen offset:{jt*32} @x")
    for jt in range(4): E(f"global_load_dwordx2 {ar(A_DS+jt*2,2)}, v13, s[80:81] offset:{jt*32} @x")
    for k in (2, 1):
        for x in rl(k): E(x + f" @r{k}")
    for r in range(32): E(f"v_accvgpr_read_b32 v{32+r}, a{r}")
    for i in (6, 7):
        for jt in range(4):
            d = acc2(i, jt); c = 32 + ((i - 6) * 4 + jt) * 4
            for h in (0, 2): E(f"v_pk_fma_f32 {P(d+h)}, {P(d+h)}, v[8:9], {P(c+h)} op_sel:[0,{i&1},0] op_sel_hi:[1,{i&1},1]")
    for x in rl(0): E(x + " @r0")
    E(f"s_waitcnt vmcnt({E.vm('x')})")
    pt(E, cfg, 'x')
    for jt in range(4):
        E(f"v_accvgpr_read_b32 v30, a{A_DS+2*jt}\nv_accvgpr_read_b32 v31, a{A_DS+2*jt+1}")
        E("v_lshlrev_b32 v32, 16, v30\nv_and_b32 v33, 0xffff0000, v30\nv_lshlrev_b32 v34, 16, v31\nv_and_b32 v35, 0xffff0000, v31")
        for ii in (0, 1):
            x = A_X + (ii * 4 + jt) * 2; d = acc2(6 + ii, jt)
            E(f"v_accvgpr_read_b32 v30, a{x}\nv_accvgpr_read_b32 v31, a{x+1}")
            E("v_lshlrev_b32 v36, 16, v30\nv_and_b32 v37, 0xffff0000, v30\nv_lshlrev_b32 v38, 16, v31\nv_and_b32 v39, 0xffff0000, v31")
            E("v_pk_mul_f32 v[36:37], v[36:37], v[32:33]\nv_pk_mul_f32 v[38:39], v[38:39], v[34:35]")
            E("v_cvt_pk_bf16_f32 v30, v36, v37\nv_cvt_pk_bf16_f32 v31, v38, v39")
            E("v_lshlrev_b32 v36, 16, v30\nv_and_b32 v37, 0xffff0000, v30\nv_lshlrev_b32 v38, 16, v31\nv_and_b32 v39, 0xffff0000, v31")
            for h in (0, 2): E(f"v_pk_fma_f32 {P(d+h)}, {P(36+h)}, v[8:9], {P(d+h)} op_sel:[0,{ii},0] op_sel_hi:[1,{ii},1]")
    pt(E, cfg, 'skip')
    E(f"s_movk_i32 s{T3}, 0x2000")
    for k in (2, 1, 0):
        E(f"s_waitcnt vmcnt({E.vm('r%d' % k)})\ns_mov_b32 s{T2}, {SPIN}\nKF_r{k}_chk:")
        r = RV(k, 0)
        E(f"v_max3_u32 v30, v{r}, v{r+1}, v{r+2}\nv_max3_u32 v31, v{r+3}, v{r+4}, v{r+5}")
        for e in range(6, 14, 4): E(f"v_max3_u32 v30, v30, v{r+e}, v{r+e+1}\nv_max3_u32 v31, v31, v{r+e+2}, v{r+e+3}")
        E(f"v_max3_u32 v30, v30, v{r+14}, v{r+15}\nv_max_u32 v30, v30, v31\nv_cmp_eq_u32 vcc, -1, v30\ns_sub_u32 s{T2}, s{T2}, 1\ns_nop 3\ns_cbranch_vccz KF_r{k}_ok")
        E(f"s_cmp_eq_u32 s{T2}, 0\ns_cbranch_scc1 KF_r{k}_ok\ns_sleep 2")
        E.L += rl(k)
        E(f"s_waitcnt vmcnt(0)\ns_branch KF_r{k}_chk\nKF_r{k}_ok:")
        pt(E, cfg, 'r%d' % k)
        for u in range(4):
            for j2 in (0, 1):
                jt = 2 * (u & 1) + j2; d = acc2(6 + (u >> 1), jt); t = 32 + 4 * ((2 * u + j2) & 1)
                for h in (0, 1):
                    q = RV(k, u) + 2 * j2 + h
                    E(f"v_lshlrev_b32 v{t+2*h}, 16, v{q}\nv_and_b32 v{t+2*h+1}, 0xffff0000, v{q}")
                for h in (0, 2): E(f"v_pk_add_f32 {P(d+h)}, {P(d+h)}, {P(t+h)}")
                if k == 0: E(f"buffer_store_dwordx4 {vr(d,4)}, v19, s[{ROUT}:{ROUT+3}], {'s%d' % T3 if u >> 1 else '0'} offen offset:{jt*64} {cfg.get('out_aux','')}")

def build(cfg=None):
    t, e = gen(cfg)
    assert not e, e[:10]
    REF = open("gated_mix__ssm_conv_s5__glu_gated_geglu__prompt.s.ref").read().split("\n")
    head = [l for l in REF if l.startswith(";") and "@launch" not in l and "Override" not in l and "grid=ceil" not in l][:18]
    ln = f"; @launch kernel={NAME} grid=(256,1,1) block=(256,1,1) lds={LDS}" if (cfg or {}).get("aslist", True) else f"; @launch grid=(256,1,1) block=(256,1,1) lds={LDS}"
    return "\n".join(head) + "\n" + ln + '\n.amdgcn_target "amdgcn-amd-amdhsa--gfx950"\n.text\n' + t + '.section .rodata,"a"\n.p2align 6\n' + kernel_desc(NAME, sgpr=102) + "\n"

if __name__ == "__main__":
    import sys, json
    cfg = json.loads(sys.argv[2]) if len(sys.argv) > 2 else {}
    s = build(cfg); open(sys.argv[1], "w").write(s); print("wrote", sys.argv[1], s.count("\n"), "lines")
```

```python
from asmlib import *
ACT_OFF = 4096
G_OFF   = 0x1700000
AGG_OFF = G_OFF + 0x4000
EPO_OFF = AGG_OFF + 0x20000
FLG_OFF = AGG_OFF + 0x21000
XCH_OFF = 0x1800000
WS_SIZE = 0x3800000
LOG2E = 1.4426950408889634
import struct
def f2u(x): return struct.unpack("<I", struct.pack("<f", x))[0]
def hexf(x): return f"0x{f2u(x):08x}"
def srd(E, d, lo, size):
    E(f"s_mov_b32 s{d}, s{lo}\ns_and_b32 s{d+1}, s{lo+1}, 0xffff\ns_mov_b32 s{d+2}, {size}\ns_mov_b32 s{d+3}, 0x20000")
def kernel_head(name):
    return f".globl {name}\n.p2align 8\n.type {name},@function\n{name}:"
def kernel_desc(name, vgpr=512, sgpr=100, acc=256):
    return (f".amdhsa_kernel {name}\n  .amdhsa_next_free_vgpr {vgpr}\n  .amdhsa_next_free_sgpr {sgpr}\n  .amdhsa_accum_offset {acc}\n"
            "  .amdhsa_group_segment_fixed_size 0\n  .amdhsa_kernarg_size 136\n  .amdhsa_user_sgpr_count 2\n"
            "  .amdhsa_user_sgpr_kernarg_segment_ptr 1\n  .amdhsa_system_sgpr_workgroup_id_x 1\n"
            "  .amdhsa_float_denorm_mode_32 3\n.end_amdhsa_kernel")
def place(gaps, start, items, step=1, room=1):
    g = start
    for it in items:
        while len(gaps[g]) > room: g += 1
        gaps[g].append(it); g += step
    return g

STAMP_OFF = 0x3900000
def stamp(E, cfg, k):
    if cfg.get("stamps"): E(f"s_memrealtime s[{82+2*(k%2)}:{83+2*(k%2)}]\ns_waitcnt lgkmcnt(0)\ns_mov_b32 s{86+k}, s{82+2*(k%2)}")
def stamp_flush(E, cfg, ptr, kern, wave):
    if not cfg.get("stamps"): return
    E(f"s_add_u32 s82, s{ptr}, {STAMP_OFF + kern*65536}\ns_addc_u32 s83, s{ptr+1}, 0")
    E(f"s_lshl_b32 s84, s2, 2\ns_add_u32 s84, s84, s{wave}\ns_lshl_b32 s84, s84, 5\nv_mov_b32 v1, s84")
    for k in range(8): E(f"v_mov_b32 v{2+k}, s{86+k}")
    E("s_mov_b64 exec, 1\nglobal_store_dwordx4 v1, v[2:5], s[82:83]\nglobal_store_dwordx4 v1, v[6:9], s[82:83] offset:16\ns_mov_b64 exec, -1")

def lines(text_list):
    out = []
    for t in text_list:
        out += [x.strip() for x in t.split("\n") if x.strip()]
    return out
class Rec:
    def __init__(self): self.L = []
    def __call__(self, t): self.L += [x.strip() for x in t.split("\n") if x.strip()]
def fill(gaps, items, lo, hi, cap=2):
    def cost(g): return sum(2 if it[1].startswith(("v_exp", "v_rcp", "v_sin", "v_cos", "v_permlane")) else 1 for it in g)
    items = [x for x in items if not x.startswith("s_nop")]
    g = lo
    for it in items:
        c = 2 if it.startswith(("v_exp", "v_rcp", "v_sin", "v_cos", "v_permlane")) else 1
        while cost(gaps[g]) + c > max(cap, c) or (c == 2 and cost(gaps[g]) + c > cap and gaps[g]): g += 1
        assert g < hi, (len(items), lo, hi)
        gaps[g].append(("raw", it))
    return g
def fix_hazards(L, name):
    import re
    for _ in range(200):
        errs = check(L, name)
        if not errs: return L
        m = re.match(r".*needs (\d+) has (\d+): \[(.*)\] -> \[(.*)\]", errs[0])
        need, has, a, b = int(m.group(1)), int(m.group(2)), m.group(3), m.group(4)
        for i in range(len(L)):
            if L[i].split(";")[0].strip() == b and any(L[j].split(";")[0].strip() == a for j in range(max(0, i - 24), i)):
                sub = check(L[max(0, i - 24):i + 1], name)
                if any(e.endswith(f"[{a}] -> [{b}]") for e in sub):
                    L.insert(i, f"s_nop {need - has - 1}"); break
        else: raise RuntimeError(errs[0])
    raise RuntimeError("hazard fixing did not converge")

SEG_OFF = 0x3700000
def segstamp_init(E, cfg, kern, wave):
    if cfg.get("segs"): E(f"s_lshl_b32 s94, s2, 2\ns_add_u32 s94, s94, s{wave}\ns_lshl_b32 s94, s94, 7\ns_add_u32 s94, s94, {SEG_OFF + kern*0x20000}")
def segstamp(E, cfg, rws):
    if cfg.get("segs"):
        E(f"{'s_memtime' if cfg['segs'] == 2 else 's_memrealtime'} s[82:83]\ns_waitcnt lgkmcnt(0)\nv_accvgpr_write_b32 a251, s82\ns_nop 1\nbuffer_store_dword a251, off, s[{rws}:{rws+3}], s94\ns_add_u32 s94, s94, 4")

import subprocess, tempfile, os, re as _re
WIDEN = ("v_mov_b32", "v_add_u32", "v_sub_u32", "v_subrev_u32", "v_lshlrev_b32", "v_lshrrev_b32", "v_and_b32", "v_or_b32", "v_xor_b32", "v_mul_f32",
         "v_add_f32", "v_sub_f32", "v_exp_f32", "v_rcp_f32", "v_cndmask_b32", "v_cmp_", "v_max_u32", "v_min_u32", "v_mul_u32_u24", "v_cos_f32",
         "v_sin_f32", "v_rndne_f32", "v_permlane16_swap_b32", "v_permlane32_swap_b32")
def _sizes(L):
    d = tempfile.mkdtemp()
    open(d + "/a.s", "w").write('.amdgcn_target "amdgcn-amd-amdhsa--gfx950"\n.text\n' + "\n".join(L) + "\n")
    r = subprocess.run(["clang", "-x", "assembler", "-target", "amdgcn-amd-amdhsa", "-mcpu=gfx950", "-c", d + "/a.s", "-o", d + "/a.o"], capture_output=True, text=True)
    assert r.returncode == 0, r.stderr[:2000]
    o = subprocess.run(["llvm-objdump", "-d", "--mcpu=gfx950", d + "/a.o"], capture_output=True, text=True).stdout
    return [4 * len(m.group(1).split()) for m in _re.finditer(r"// [0-9A-F]{12}: ((?:[0-9A-F]{8} ?)+)", o)]
def align8(L):
    isin = lambda x: not (x.endswith(":") or x.startswith("."))
    sz = _sizes(L); ins = [x for x in L if isin(x)]
    assert len(sz) == len(ins)
    out = []; off = 0; last4 = None; k = -1
    for x in L:
        if not isin(x): out.append(x); continue
        k += 1; n = sz[k]
        if n == 8 and off % 8 == 4:
            p = out[last4]
            run = 0
            while k + run < len(ins) and sz[k + run] == 8 and not ins[k + run].startswith("v_mfma"): run += 1
            if p.startswith(WIDEN) and "_e64" not in p and "_dpp" not in p:
                mn, rest = p.split(None, 1); out[last4] = mn.replace("_e32", "") + "_e64 " + rest; off += 4
            elif run >= 6: out.append("s_nop 0"); off += 4
        out.append(x)
        if n == 4: last4 = len(out) - 1
        off += n
    return out
```

```python
from common import *
NAME = "proj_scan_kernel"
GOFF = 65536; WBUF = 28688; UOFF = 14352; BOFF = GOFF + 2 * WBUF; SCR = 139520; LDS = SCR + 2048
MF = "v_mfma_f32_16x16x32_bf16"
S_W, S_MT, S_NT, S_WM, S_WN = 3, 4, 5, 6, 7
RX, RW, RB, RWS, RDBG, RAGG = 8, 12, 16, 20, 24, 28
S_KX, S_KW, S_MX, S_MW, S_MB, S_CNT = 32, 33, 34, 35, 64, 65
T0, T1, T2, T3 = 66, 67, 68, 69
V_X, V_W, V_B = 2, 10, 17
V_RX, V_RW, V_RM, V_RB = 19, 21, 22, 23
A_XF, A_WF = 64, 192
A_LAM, A_C2, A_L16, A_L32, A_L256, A_L32P = 216, 218, 220, 222, 224, 226
def acc(g, i):
    return ("v", 32 + g * 32 + 4 * i) if g < 7 else ("a", (g - 7) * 32 + 4 * i)
def accs(g, i): k, r = acc(g, i); return vr(r, 4, k)
def xf(b, s, i): return A_XF + b * 64 + (s * 8 + i) * 4
def wf(slot, s): return A_WF + slot * 8 + s * 4

def cmul(E, dr, di, ar_, ai, br, bi):
    E(f"v_mul_f32 v{dr}, v{ar_}, v{br}\nv_mul_f32 v{di}, v{ar_}, v{bi}")
    E(f"v_fma_f32 v{dr}, -v{ai}, v{bi}, v{dr}\nv_fma_f32 v{di}, v{ai}, v{br}, v{di}")
def cfma(E, dr, di, ar_, ai, br, bi, cr, ci):
    E(f"v_fma_f32 v{dr}, v{ar_}, v{br}, v{cr}\nv_fma_f32 v{di}, v{ar_}, v{bi}, v{ci}")
    E(f"v_fma_f32 v{dr}, -v{ai}, v{bi}, v{dr}\nv_fma_f32 v{di}, v{ai}, v{br}, v{di}")
def lam_of(E, lre, lim, ldt, o, t):
    E(f"v_lshlrev_b32 v{lre}, 16, v{lre}\nv_lshlrev_b32 v{lim}, 16, v{lim}\nv_lshlrev_b32 v{ldt}, 16, v{ldt}")
    E(f"v_mul_f32 v{ldt}, {hexf(LOG2E)}, v{ldt}\nv_exp_f32 v{ldt}, v{ldt}\ns_nop 0")
    E(f"v_cvt_pk_bf16_f32 v{ldt}, v{ldt}, v{ldt}\nv_lshlrev_b32 v{ldt}, 16, v{ldt}")
    E(f"v_mul_f32 v{t}, v{ldt}, v{lre}\nv_mul_f32 v{t+1}, v{ldt}, v{lim}")
    E(f"v_mul_f32 v{t}, {hexf(LOG2E)}, v{t}\nv_mul_f32 v{t+1}, 0.15915494309189535, v{t+1}")
    E(f"v_exp_f32 v{t}, v{t}\nv_rndne_f32 v{t+2}, v{t+1}\nv_sub_f32 v{t+1}, v{t+1}, v{t+2}")
    E(f"v_cos_f32 v{t+2}, v{t+1}\nv_sin_f32 v{t+3}, v{t+1}\ns_nop 0")
    E(f"v_mul_f32 v{o}, v{t}, v{t+2}\nv_mul_f32 v{o+1}, v{t}, v{t+3}")
def csq(E, d, a):
    E(f"v_mul_f32 v{d}, v{a}, v{a}\nv_mul_f32 v{d+1}, v{a}, v{a+1}")
    E(f"v_fma_f32 v{d}, -v{a+1}, v{a+1}, v{d}\nv_add_f32 v{d+1}, v{d+1}, v{d+1}")
def stash(E, a, v): E(f"v_accvgpr_write_b32 a{a}, v{v}\nv_accvgpr_write_b32 a{a+1}, v{v+1}")
def unstash(E, v, a): E(f"v_accvgpr_read_b32 v{v}, a{a}\nv_accvgpr_read_b32 v{v+1}, a{a+1}")

def dma_ops(buf):
    ops = []
    for j in range(7): ops.append((f"s_add_u32 m0, s{S_MW}, {buf*WBUF + j*1024}", f"buffer_load_dwordx4 v{V_W+j}, s[{RW}:{RW+3}], s{S_KW} offen lds", f"s_add_u32 s{S_KW}, s{S_KW}, {64*7168}" if j == 6 else None))
    for j in range(2): ops.append((f"s_add_u32 m0, s{S_MB}, {buf*8192 + j*1024}", f"buffer_load_dwordx4 v{V_B+j}, s[{RB}:{RB+3}], s{S_KX} offen lds", None))
    for j in range(8): ops.append((f"s_add_u32 m0, s{S_MX}, {buf*32768 + j*1024}", f"buffer_load_dwordx4 v{V_X+j}, s[{RX}:{RX+3}], s{S_KX} offen lds", f"s_add_u32 s{S_KX}, s{S_KX}, 128" if j == 7 else None))
    return ops
def rd_x(b, s, i):
    return (f"ds_read_b128 {ar(xf(b,s,i),4)}, v{V_RX+s} offset:{b*32768 + i*2048}", ("x", b, s, i))
def rd_w(b, g, slot, s):
    r = wf(slot, s)
    if g < 2: return [(f"ds_read_b128 {ar(r,4)}, v{V_RB+s} offset:{b*8192 + g*4096}", ("w", slot, s, 0))]
    if g < 8: base, off = V_RW, b * WBUF + ((g - 2) & 1) * UOFF + s * 7168 + ((g - 2) >> 1) * 32
    else: base, off = V_RM, b * WBUF + s * 7168
    return [(f"ds_read_b64_tr_b16 {ar(r+2*h,2)}, v{base} offset:{off + h*1792}", ("w", slot, s, h)) for h in (0, 1)]
def mfma_group(E, st, g, gaps, n, first=False):
    slot = (st * 9 + g) % 3
    for i in range(8):
        for s in (0, 1):
            E.need([("w", slot, s, 0), ("w", slot, s, 1), ("x", st, s, i)])
            a = accs(g, i); w_ = ar(wf(slot, s), 4); x_ = ar(xf(st, s, i), 4)
            c = "0" if first and s == 0 else a
            E(f"{MF} {a}, {x_}, {w_}, {c}" if g < 2 else f"{MF} {a}, {w_}, {x_}, {c}")
            for it in gaps[n]:
                if it[0] == "ds": E.ds(it[1], it[2])
                else: E(it[1])
            n += 1
    return n
def segment(E, prev, dma, cfg, vm=0, touch=False, extra=None, tail=None, spread=None):
    nxt = 1 - prev
    gaps = [[] for _ in range(146)]
    xq = [rd_x(nxt, s, i) for i in range(8) for s in (0, 1)]
    seq = [(prev, 7), (prev, 8)] + [(nxt, g) for g in range(7)]
    for p, (st, g) in enumerate(seq):
        gn = g + 2
        b, j = (st, gn) if gn < 9 else (nxt, gn - 9)
        w = [it for s in (0, 1) for it in rd_w(b, j, (st * 9 + g + 2) % 3, s)]
        if p < 2:
            for k, it in enumerate(xq[p*8:p*8+8] + w): gaps[p*16 + k].append(("ds",) + it)
        else:
            for k, it in enumerate(w): gaps[p*16 + 1 + 2*k].append(("ds",) + it)
    g = cfg.get("dma_start", 0)
    if dma:
        ops = dma_ops(prev)
        order = {"wbx": list(range(17)), "alt": [0, 9, 1, 10, 2, 11, 3, 12, 7, 4, 13, 8, 5, 14, 15, 6, 16],
                 "xbw": list(range(9, 17)) + [7, 8] + list(range(7))}[cfg.get("dma_order", "wbx")]
        if cfg.get("dma_order") == "xbw":
            ops[8] = ops[8][:2] + (ops[16][2],); ops[16] = ops[16][:2] + (None,)
        for k in order:
            m, d, adv = ops[k]
            while len(gaps[g]) > 1 or len(gaps[g+1]) > 1: g += 1
            gaps[g].append(("raw", m)); gaps[g+1].append(("raw", d))
            if adv: gaps[g+2].append(("raw", adv))
            g += cfg.get("dma_w", cfg.get("dma_every", 5)) if k < 7 else cfg.get("dma_every", 5)
    if touch:
        gaps[g].append(("raw", TOUCH)); gaps[g+2].append(("raw", TOUCH_ADV))
    if tail:
        g += 4
        for it in tail:
            while len(gaps[g]) > 0: g += 1
            gaps[g].append(("raw", it)); g += 4
    if extra: fill(gaps, extra, 0, 144)
    if spread:
        g = 13
        for it in spread:
            while len(gaps[g]) > 0: g += 1
            gaps[g].append(("raw", it)); g += 6
    E.drain(f"vmcnt({vm})")
    E("s_barrier")
    segstamp(E, cfg, RWS)
    n = 0
    for st, g in seq: n = mfma_group(E, st, g, gaps, n)
    assert not any(gaps[n:])

TOUCH = "global_load_dword a254, v[26:27], off"
TOUCH_ADV = "v_lshl_add_u64 v[26:27], v[28:29], 0, v[26:27]"
def touch_setup(E):
    E(f"s_lshl_b32 s74, s2, 2\ns_add_u32 s74, s74, s{S_W}")
    E(f"s_lshl_b32 s75, s{S_MT}, 2\ns_and_b32 s76, s{S_NT}, 3\ns_add_u32 s76, s76, s75\ns_lshl_b32 s76, s76, 2\ns_add_u32 s76, s76, s{S_W}")
    E(f"s_add_u32 s75, s75, s{S_W}\ns_lshl_b32 s77, s{S_NT}, 5\ns_add_u32 s75, s75, s77\ns_lshl_b32 s75, s75, 11\ns_add_u32 s75, s75, 128")
    E(f"s_lshr_b32 s77, s76, 1\ns_add_u32 s77, s77, 64\ns_mul_i32 s77, s77, 7168\ns_lshr_b32 s78, s{S_NT}, 2\ns_mul_i32 s78, s78, 896\ns_add_u32 s77, s77, s78\ns_sub_u32 s77, s77, 512")
    E("s_and_b32 s76, s76, 1\ns_cmp_eq_u32 s76, 0\ns_cselect_b32 s78, s52, s54\ns_cselect_b32 s79, s53, s55")
    E("v_cmp_gt_u32 vcc, 26, v0\ns_lshl_b32 s76, s74, 12\ns_add_u32 s76, s76, 128\nv_cndmask_b32 v25, 0, v0, vcc")
    E("v_lshlrev_b32 v30, 11, v25\nv_add_u32 v30, s76, v30\nv_mov_b32 v26, s36\nv_mov_b32 v27, s37\nv_mov_b32 v28, 128\nv_mov_b32 v29, 0")
    def sel(first, lo, hi, off, step=None):
        E(f"v_cmp_le_u32 vcc, {first}, v25\n{off}\nv_mov_b32 v1, s{lo}")
        E(f"v_cndmask_b32 v30, v30, v31, vcc\nv_cndmask_b32 v26, v26, v1, vcc\nv_mov_b32 v1, s{hi}\nv_cndmask_b32 v27, v27, v1, vcc")
        if step is not None: E(f"v_mov_b32 v1, {step}\nv_cndmask_b32 v28, v28, v1, vcc")
    sel(2, 42, 43, "v_mov_b32 v31, s75")
    sel(3, 44, 45, "v_mov_b32 v31, s75")
    sel(4, 78, 79, "v_lshlrev_b32 v31, 7, v25\nv_add_u32 v31, s77, v31", 64 * 7168)
    E(f"s_mul_i32 s75, s74, {56*128}\ns_sub_u32 s75, s75, {11*11*128}\ns_lshl_b32 s76, s74, 11\ns_sub_u32 s77, s76, {16*512}\ns_sub_u32 s76, s76, {18*512}")
    sel(11, 56, 57, f"v_mul_u32_u24 v31, {11*128}, v25\nv_add_u32 v31, s75, v31", 128)
    sel(16, 46, 47, "v_lshlrev_b32 v31, 9, v25\nv_add_u32 v31, s77, v31")
    sel(18, 48, 49, "v_lshlrev_b32 v31, 9, v25\nv_add_u32 v31, s76, v31")
    sel(20, 58, 59, f"v_lshlrev_b32 v31, 9, v25\nv_subrev_u32 v31, {20*512}, v31")
    E(f"s_lshl_b32 s75, s{S_NT}, 6")
    sel(22, 38, 39, "v_mov_b32 v31, s75", "0")
    sel(23, 40, 41, "v_mov_b32 v31, s75")
    sel(24, 50, 51, "v_mov_b32 v31, s75")
    sel(25, 80, 81, "v_mov_b32 v31, 0", 128)
    E("v_mov_b32 v31, 0\nv_lshl_add_u64 v[26:27], v[30:31], 0, v[26:27]")

def gate_stream():
    E = Rec()
    a, b, c, d = 26, 27, 28, 29
    for k in range(8):
        E(f"v_accvgpr_read_b32 v1, a{216+k}\nv_lshlrev_b32 v{b}, 16, v1\nv_and_b32 v{d}, 0xffff0000, v1")
        for u, s_ in ((0, a), (1, c)):
            E(f"v_accvgpr_read_b32 v25, a{224+8*u+k}\nv_lshlrev_b32 v30, 16, v25\nv_and_b32 v31, 0xffff0000, v25")
            E(f"v_mul_f32 v30, v30, v{b}\nv_mul_f32 v31, v31, v{d}\nv_cvt_pk_bf16_f32 v25, v30, v31")
            E("v_lshlrev_b32 v30, 16, v25\nv_and_b32 v31, 0xffff0000, v25")
            if k == 0: E(f"v_add_f32 v{s_}, v30, v31")
            else: E(f"v_add_f32 v{s_}, v{s_}, v30\nv_add_f32 v{s_}, v{s_}, v31")
    t = 25
    for sh in (8, 4, 2, 1):
        E(f"v_add_f32_dpp v{a}, v{a}, v{a} row_ror:{sh} row_mask:0xf bank_mask:0xf\nv_add_f32_dpp v{c}, v{c}, v{c} row_ror:{sh} row_mask:0xf bank_mask:0xf")
    for sw in (16, 32):
        E(f"v_mov_b32 v{b}, v{a}\nv_mov_b32 v{d}, v{c}\nv_permlane{sw}_swap_b32 v{a}, v{b}\nv_permlane{sw}_swap_b32 v{c}, v{d}")
        E(f"v_add_f32 v{a}, v{a}, v{b}\nv_add_f32 v{c}, v{c}, v{d}")
    E(f"v_cvt_pk_bf16_f32 v{t}, v{a}, v{c}\nv_lshlrev_b32 v{a}, 16, v{t}\nv_and_b32 v{c}, 0xffff0000, v{t}")
    E(f"v_mul_f32 v{a}, {hexf(-LOG2E)}, v{a}\nv_mul_f32 v{c}, {hexf(-LOG2E)}, v{c}\nv_exp_f32 v{a}, v{a}\nv_exp_f32 v{c}, v{c}")
    E(f"v_add_f32 v{a}, 1.0, v{a}\nv_add_f32 v{c}, 1.0, v{c}\nv_rcp_f32 v{a}, v{a}\nv_rcp_f32 v{c}, v{c}")
    E(f"v_cvt_pk_bf16_f32 v{t}, v{a}, v{c}\nv_lshlrev_b32 v{a}, 16, v{t}\nv_and_b32 v{c}, 0xffff0000, v{t}")
    E(f"v_sub_f32 v{b}, 1.0, v{a}\nv_sub_f32 v{d}, 1.0, v{c}\nv_cvt_pk_bf16_f32 v{t}, v{b}, v{d}\nv_lshlrev_b32 v{b}, 16, v{t}\nv_and_b32 v{d}, 0xffff0000, v{t}")
    return E.L
def param_stream():
    E = Rec()
    for k in range(3): E(f"v_accvgpr_read_b32 v{2+k}, a{240+k}")
    lam_of(E, 2, 3, 4, 6, 10)
    stash(E, A_LAM, 6)
    E("v_add_f32 v10, -1.0, v6\nv_mul_f32 v11, v2, v2\nv_fma_f32 v11, v3, v3, v11\nv_rcp_f32 v11, v11")
    E("v_mul_f32 v12, v10, v2\nv_mul_f32 v13, v7, v2\nv_fma_f32 v12, v7, v3, v12\nv_fma_f32 v13, -v10, v3, v13")
    E("v_add_f32 v11, v11, v11\nv_mul_f32 v12, v12, v11\nv_mul_f32 v13, v13, v11")
    stash(E, A_C2, 12)
    a, b = 6, 8
    for k in range(1, 9):
        csq(E, b, a); a, b = b, a
        if k == 4: stash(E, A_L16, a)
        if k == 5: stash(E, A_L32, a)
        if k == 8: stash(E, A_L256, a)
    for k in range(3): E(f"v_accvgpr_read_b32 v{2+k}, a{243+k}")
    lam_of(E, 2, 3, 4, 6, 10)
    a, b = 6, 8
    for k in range(1, 6): csq(E, b, a); a, b = b, a
    stash(E, A_L32P, a)
    return E.L

def gelu_quads(E, quads, T=(6, 8, 12, 14)):
    K = "v[30:31]"
    P = lambda r: vr(r, 2)
    for (g, u), t in zip(quads, T): E(f"v_pk_mul_f32 {P(t)}, {P(g)}, {P(g)}")
    for (g, u), t in zip(quads, T): E(f"v_pk_fma_f32 {P(t)}, {P(t)}, {K}, {K} op_sel:[0,1,0] op_sel_hi:[1,1,0]")
    for (g, u), t in zip(quads, T): E(f"v_pk_mul_f32 {P(t)}, {P(t)}, {P(g)}")
    for (g, u), t in zip(quads, T): E(f"v_exp_f32_e64 v{t}, v{t}\nv_exp_f32_e64 v{t+1}, v{t+1}")
    for (g, u), t in zip(quads, T): E(f"v_pk_add_f32 {P(t)}, {P(t)}, 1.0 op_sel_hi:[1,0]")
    for (g, u), t in zip(quads, T): E(f"v_rcp_f32_e64 v{t}, v{t}\nv_rcp_f32_e64 v{t+1}, v{t+1}")
    for (g, u), t in zip(quads, T): E(f"v_pk_mul_f32 {P(u)}, {P(u)}, {P(g)}")
    for (g, u), t in zip(quads, T): E(f"v_pk_mul_f32 {P(u)}, {P(u)}, {P(t)}")

def gen(cfg=None):
    cfg = cfg or {}
    st_aux = cfg.get("st_aux", "")
    E = Em()
    E(kernel_head(NAME))
    E("s_cmp_ge_u32 s2, 256\ns_cbranch_scc1 K1_end")
    stamp(E, cfg, 0)
    E("s_load_dwordx16 s[36:51], s[0:1], 0\ns_load_dwordx8 s[52:59], s[0:1], 80\ns_load_dwordx4 s[60:63], s[0:1], 120\ns_load_dwordx2 s[80:81], s[0:1], 64")
    E(f"v_lshrrev_b32 v1, 6, v0\nv_and_b32 v0, 63, v0\nv_readfirstlane_b32 s{S_W}, v1")
    E(f"s_lshr_b32 s{S_MT}, s2, 5\ns_and_b32 s{T0}, s2, 7\ns_lshr_b32 s{T1}, s2, 3\ns_and_b32 s{T1}, s{T1}, 3")
    E(f"s_lshl_b32 s{S_NT}, s{T0}, 2\ns_add_u32 s{S_NT}, s{S_NT}, s{T1}")
    E(f"s_lshr_b32 s{S_WM}, s{S_W}, 1\ns_and_b32 s{S_WN}, s{S_W}, 1")
    E("v_lshrrev_b32 v25, 3, v0\nv_and_b32 v26, 7, v0")
    E("v_lshrrev_b32 v27, 2, v25\nv_lshlrev_b32 v27, 5, v27")
    E("v_and_b32 v28, 1, v25\nv_lshl_add_u32 v27, v28, 4, v27")
    E("v_lshrrev_b32 v28, 1, v25\nv_and_b32 v29, 1, v28\nv_add_u32 v27, v27, v29")
    E("v_xor_b32 v29, v26, v28\nv_lshlrev_b32 v29, 4, v29")
    E("v_xor_b32 v30, 64, v29")
    E(f"s_lshl_b32 s{T0}, s{S_MT}, 8\ns_lshl_b32 s{T1}, s{S_WM}, 7\ns_add_u32 s{T0}, s{T0}, s{T1}")
    E(f"s_lshl_b32 s{T1}, s{S_WN}, 3\ns_add_u32 s{T0}, s{T0}, s{T1}")
    E(f"v_add_u32 v27, s{T0}, v27\nv_lshlrev_b32 v27, 11, v27")
    E(f"v_add_u32 v{V_X}, v27, v29\nv_add_u32 v{V_X+1}, v27, v30\nv_add_u32 v{V_X+1}, {64*2048}, v{V_X+1}")
    for j in range(2, 8): E(f"v_add_u32 v{V_X+j}, {2*2048}, v{V_X+j-2}")
    E(f"s_lshl_b32 s{T0}, s{S_NT}, 5\ns_lshl_b32 s{T1}, s{S_WN}, 4\ns_add_u32 s{T0}, s{T0}, s{T1}")
    E(f"v_add_u32 v27, s{T0}, v25\nv_lshlrev_b32 v27, 11, v27")
    E(f"v_add_u32 v{V_B}, v27, v29\nv_add_u32 v{V_B+1}, v27, v30\nv_add_u32 v{V_B+1}, {8*2048}, v{V_B+1}")
    E(f"s_mul_i32 s{T1}, s{S_NT}, 224\ns_mul_i32 s{T2}, s{S_WN}, {32*7168}\ns_add_u32 s{T1}, s{T1}, s{T2}\ns_movk_i32 s{T2}, 7168")
    for j in range(7):
        E(f"v_add_u32 v25, {64*j}, v0\nv_mul_u32_u24 v26, 4682, v25\nv_lshrrev_b32 v26, 16, v26")
        E("v_mul_u32_u24 v27, 14, v26\nv_sub_u32 v27, v25, v27")
        E("v_and_b32 v28, 19, v26\nv_and_b32 v29, 4, v26\nv_lshl_or_b32 v28, v29, 1, v28")
        E("v_and_b32 v29, 8, v26\nv_lshrrev_b32 v29, 1, v29\nv_or_b32 v28, v28, v29")
        E(f"v_mul_u32_u24 v28, s{T2}, v28\nv_lshl_add_u32 v28, v27, 4, v28\nv_add_u32 v{V_W+j}, s{T1}, v28")
    E(f"s_lshl_b32 s{S_MX}, s{S_W}, 13")
    E(f"s_mul_i32 s{S_MW}, s{S_WM}, {UOFF}\ns_mul_i32 s{T1}, s{S_WN}, 7168\ns_add_u32 s{S_MW}, s{S_MW}, s{T1}\ns_add_u32 s{S_MW}, s{S_MW}, {GOFF}")
    E(f"s_lshl_b32 s{S_MB}, s{S_W}, 11\ns_add_u32 s{S_MB}, s{S_MB}, {BOFF}")
    E(f"s_mov_b32 s{S_KX}, 0\ns_mov_b32 s{S_KW}, 0")
    E("v_and_b32 v25, 15, v0\nv_lshrrev_b32 v26, 4, v0")
    E("v_lshrrev_b32 v27, 1, v25\nv_xor_b32 v27, v27, v26\nv_lshlrev_b32 v27, 4, v27\nv_lshl_add_u32 v27, v25, 7, v27")
    E(f"s_lshl_b32 s{T1}, s{S_WM}, 14\nv_add_u32 v{V_RX}, s{T1}, v27\nv_xor_b32 v{V_RX+1}, 64, v{V_RX}")
    E(f"s_lshl_b32 s{T1}, s{S_WN}, 11\ns_add_u32 s{T1}, s{T1}, {BOFF}\nv_xor_b32 v28, 64, v27\nv_add_u32 v{V_RB}, s{T1}, v27\nv_add_u32 v{V_RB+1}, s{T1}, v28")
    E("v_lshrrev_b32 v27, 5, v0\nv_lshlrev_b32 v27, 4, v27\nv_and_b32 v28, 1, v26\nv_lshl_add_u32 v27, v28, 2, v27")
    E("v_bfe_u32 v28, v0, 2, 2\nv_add_u32 v27, v27, v28\nv_mul_u32_u24 v27, 224, v27")
    E(f"s_mul_i32 s{T1}, s{S_WN}, 112\ns_add_u32 s{T1}, s{T1}, {GOFF}\nv_add_u32 v27, s{T1}, v27")
    E(f"v_and_b32 v28, 3, v0\nv_lshl_add_u32 v{V_RW}, v28, 3, v27")
    E(f"v_and_b32 v28, 1, v0\nv_lshl_add_u32 v27, v28, 3, v27\nv_bfe_u32 v28, v0, 1, 1\nv_mul_u32_u24 v28, {UOFF}, v28")
    E(f"v_add_u32 v27, 96, v27\nv_add_u32 v{V_RM}, v27, v28")
    E("s_waitcnt lgkmcnt(0)")
    srd(E, RX, 36, 2048 * 2048)
    E(f"s_cmp_eq_u32 s{S_WM}, 0\ns_cselect_b32 s{T2}, s52, s54\ns_cselect_b32 s{T3}, s53, s55")
    srd(E, RW, T2, 1024 * 7168)
    E(f"s_cmp_eq_u32 s{S_WM}, 0\ns_cselect_b32 s{T2}, s42, s44\ns_cselect_b32 s{T3}, s43, s45")
    srd(E, RB, T2, 1024 * 2048)
    srd(E, RWS, 62, WS_SIZE)
    srd(E, RDBG, 60, 256)
    E(f"s_add_u32 s{T2}, s62, {AGG_OFF}\ns_addc_u32 s{T3}, s63, 0")
    srd(E, RAGG, T2, 131072)
    stamp(E, cfg, 1)
    ops = dma_ops(0)
    for m, d, adv in ops[7:] + ops[:7]:
        E(m); E("s_nop 0"); E(d + (" @w0" if "s[%d:" % RW in d else " @x0"))
        if adv: E(adv)
    touch_setup(E)
    npre = cfg.get("npre", 3)
    T1ST = f"s_mov_b64 exec, 0x7ff\n{TOUCH}\n{TOUCH_ADV}\ns_mov_b64 exec, -1"
    for _ in range(npre): E(T1ST)
    E(f"s_mov_b32 s77, {EPO_OFF}\ns_lshl_b32 s78, s2, 2\ns_add_u32 s78, s78, s{S_W}\nbuffer_load_dword a250, off, s[{RWS}:{RWS+3}], s77 sc1")
    E(f"s_getpc_b64 s[74:75]\nK1_pc0:\ns_lshl_b32 s76, s{S_W}, 13\nv_lshlrev_b32 v1, 7, v0\nv_add_u32 v1, s76, v1")
    E("global_load_dword a255, v1, s[74:75]\ns_add_u32 s74, s74, 0x8000\ns_addc_u32 s75, s75, 0\nv_min_u32 v1, K2_end-K1_pc0-0x8000, v1")
    E(f"s_lshl_b32 s70, s{S_MT}, 8\ns_lshl_b32 s{T1}, s{S_NT}, 3\ns_add_u32 s70, s70, s{T1}\ns_lshl_b32 s{T1}, s{S_W}, 1\ns_add_u32 s70, s70, s{T1}")
    E(f"s_and_b32 s73, s70, 0xff80\ns_bfe_u32 s{T1}, s70, 0x30004\ns_lshl_b32 s{T1}, s{T1}, 1\ns_add_u32 s73, s73, s{T1}")
    E(f"s_bfe_u32 s{T1}, s70, 0x20002\ns_lshl_b32 s{T1}, s{T1}, 5\ns_add_u32 s73, s73, s{T1}")
    E(f"s_bfe_u32 s{T1}, s70, 0x10001\ns_add_u32 s73, s73, s{T1}\ns_lshl_b32 s73, s73, 11\ns_add_u32 s72, s73, {16*2048}")
    E(f"s_lshl_b32 s70, s70, 3\ns_add_u32 s70, s70, {G_OFF}\ns_lshl_b32 s71, s2, 5\ns_add_u32 s71, s71, {FLG_OFF}")
    small = lines(["global_load_ushort a240, v25, s[38:39]\nglobal_load_ushort a241, v25, s[40:41]\nglobal_load_ushort a242, v25, s[50:51]",
        "global_load_ushort a243, v30, s[38:39]\nglobal_load_ushort a244, v30, s[40:41]\nglobal_load_ushort a245, v30, s[50:51]",
        "global_load_dwordx4 a[216:219], v31, s[58:59]\nglobal_load_dwordx4 a[220:223], v31, s[58:59] offset:1024",
        f"buffer_load_dwordx4 a[224:227], v31, s[{RX}:{RX+3}], s73 offen\nbuffer_load_dwordx4 a[228:231], v31, s[{RX}:{RX+3}], s73 offen offset:1024",
        f"buffer_load_dwordx4 a[232:235], v31, s[{RX}:{RX+3}], s72 offen\nbuffer_load_dwordx4 a[236:239], v31, s[{RX}:{RX+3}], s72 offen offset:1024",
        ])
    for r in range(64): E(f"v_accvgpr_write_b32 a{r}, 0")
    E(f"s_waitcnt vmcnt({E.vm('x0')}) lgkmcnt(0)\ns_barrier")
    stamp(E, cfg, 2)
    segstamp_init(E, cfg, 0, S_W)
    gaps = [[] for _ in range(146)]
    for g in (0, 1):
        for s in (0, 1):
            for it in rd_w(0, g, g, s): E.ds(*it)
        for i in range(4 * g, 4 * g + 4):
            for s in (0, 1): E.ds(*rd_x(0, s, i))
    n = 0
    for g in range(7):
        w = [it for s in (0, 1) for it in rd_w(0, g + 2, (g + 2) % 3, s)]
        for k, it in enumerate(w): gaps[(17 + k) if g == 0 else (21 + k) if g == 1 else (g*16 + 1 + 2*k)].append(("ds",) + it)
    nd = 3 - npre
    for k in range(nd): gaps[2*k].append(("raw", T1ST))
    g = 2 * nd
    for m, d, adv in dma_ops(1):
        while len(gaps[g]) > 1 or len(gaps[g+1]) > 1 or g in (14, 15, 16): g += 1
        gaps[g].append(("raw", m)); gaps[g+1].append(("raw", d))
        if g + 1 < 16: nd += 1
        if adv: gaps[g+2].append(("raw", adv))
        g += 4
    R_ = Rec(); segstamp(R_, cfg, RWS); segstamp(R_, cfg, RWS) if False else None
    gaps[15].append(("raw", f"s_waitcnt vmcnt({E.vm('w0') + nd})\ns_barrier\n" + "\n".join(R_.L)))
    late = ["global_load_dword a255, v1, s[74:75]"]
    for it in late:
        while gaps[g]: g += 1
        gaps[g].append(("raw", it)); g += 2
    for g in range(7): n = mfma_group(E, 0, g, gaps, n, first=True)
    assert not any(gaps[n:])
    E.L = fix_hazards(E.L, "k1pro")
    pro = list(E.L)
    tagger = [f"s_cmp_lg_u32 s78, 0\ns_cbranch_scc1 K1_notag\nv_accvgpr_read_b32 v30, a250\ns_mov_b32 s78, 0x9e3779b1\nv_mul_lo_u32 v30, v30, s78\nv_mov_b32 v31, 1\nv_add_u32 v30, 0x7f4a7c15, v30\n"
              f"buffer_store_dword v30, off, s[{RWS}:{RWS+3}], s77 sc1\nbuffer_store_dwordx2 v[30:31], off, s[{RDBG}:{RDBG+3}], 0 sc1\nK1_notag:"]
    E(f"s_mov_b32 s{S_CNT}, 6\n.p2align 3\nK1_loop:")
    l0 = len(E.L)
    segment(E, 0, True, cfg, 1, True); segment(E, 1, True, cfg, 1, True, extra=tagger)
    E(f"s_sub_u32 s{S_CNT}, s{S_CNT}, 1\ns_cmp_lg_u32 s{S_CNT}, 0")
    body = E.L[l0:]
    E("s_cbranch_scc1 K1_loop")
    l1 = len(E.L)
    gs = gate_stream(); h = 175
    addr = lines([f"s_lshl_b32 s{T1}, s{S_NT}, 5\ns_lshl_b32 s{T0}, s{S_WN}, 4\ns_add_u32 s{T0}, s{T0}, s{T1}",
        f"v_and_b32 v25, 15, v0\nv_add_u32 v25, s{T0}, v25\nv_lshlrev_b32 v25, 1, v25",
        f"v_and_b32 v30, 31, v0\nv_add_u32 v30, s{T1}, v30\nv_lshlrev_b32 v30, 1, v30\nv_lshlrev_b32 v31, 4, v0"])
    fin = ["v_mov_b32 v25, 0", f"buffer_store_dwordx4 v[26:29], v25, s[{RWS}:{RWS+3}], s70 offen",
           "v_and_b32 v25, 7, v0", "v_lshlrev_b32 v25, 2, v25", "v_mov_b32 v30, 0", f"buffer_store_dword v30, v25, s[{RWS}:{RWS+3}], s71 offen"]
    segment(E, 0, True, cfg, 1, extra=addr, spread=small[6:] + small[:6] + [f"buffer_load_dwordx2 a[252:253], off, s[{RDBG}:{RDBG+3}], 0 sc1"])
    segment(E, 1, True, cfg, 0, extra=gs[:h])
    segment(E, 0, False, cfg, 0, extra=gs[h:] + fin + param_stream())
    E.drain()
    gaps = [[] for _ in range(40)]
    n = mfma_group(E, 1, 7, gaps, 0); mfma_group(E, 1, 8, gaps, n)
    E.L[l1:] = fix_hazards(E.L[l1:], "k1tail")
    stamp(E, cfg, 3)
    epilogue(E, cfg, st_aux)
    stamp(E, cfg, 6)
    if cfg.get("stamps"): E("s_waitcnt vmcnt(0)")
    stamp(E, cfg, 7)
    stamp_flush(E, cfg, 62, 0, S_W)
    E("K1_end:\ns_endpgm")
    errs = check(pro + body + body + E.L[l1:], "k1")
    return E.text(), errs

def pkf(d, a, b, c, sel, nb=False):
    return (f"v_pk_fma_f32 {vr(d,2)}, {vr(a,2)}, {vr(b,2)}, {vr(c,2)} op_sel:[0,{sel},0] op_sel_hi:[1,{sel},1]"
            + (" neg_lo:[0,1,0] neg_hi:[0,1,0]" if nb else ""))
def pkm(d, a, b, sel, nb=False):
    return (f"v_pk_mul_f32 {vr(d,2)}, {vr(a,2)}, {vr(b,2)} op_sel:[0,{sel}] op_sel_hi:[1,{sel}]"
            + (" neg_lo:[0,1] neg_hi:[0,1]" if nb else ""))

def epilogue(E, cfg, aux):
    LAM, L16, SA = 2, 4, 10
    re = lambda n: 32 + 2 * n
    im = lambda n: 64 + 2 * n
    unstash(E, LAM, A_LAM); unstash(E, L16, A_L16)
    E("v_and_b32 v25, 15, v0\nv_lshrrev_b32 v26, 4, v0")
    hr, hi = re(0), im(0)
    for n in range(1, 16):
        nr, ni = (6, 8) if n & 1 else (12, 14)
        E(pkf(nr, hr, LAM, re(n), 0)); E(pkf(ni, hi, LAM, im(n), 0))
        E(pkf(nr, hi, LAM, nr, 1, True)); E(pkf(ni, hr, LAM, ni, 1))
        hr, hi = nr, ni
    E(f"v_mov_b32 v{SA}, v{hr}\nv_mov_b32 v{SA+1}, v{hi}")
    cfma(E, 12, 13, L16, L16 + 1, hr, hi, hr + 1, hi + 1)
    E(f"s_lshl_b32 s{T0}, s{S_WM}, 10\ns_lshl_b32 s{T1}, s{S_WN}, 7\ns_add_u32 s{T0}, s{T0}, s{T1}\ns_add_u32 s{T0}, s{T0}, {SCR}")
    E(f"v_lshlrev_b32 v27, 8, v26\nv_lshl_add_u32 v27, v25, 3, v27\nv_add_u32 v27, s{T0}, v27\nds_write_b64 v27, v[12:13]")
    E(f"s_lshl_b32 s{T0}, s{S_MT}, 12\ns_lshl_b32 s{T1}, s{S_WM}, 11\ns_add_u32 s70, s{T0}, s{T1}\ns_add_u32 s70, s70, {ACT_OFF}")
    E(f"s_mul_i32 s{T0}, s{S_NT}, 14\ns_mul_i32 s{T1}, s{S_WN}, 7\ns_add_u32 s{T0}, s{T0}, s{T1}\ns_add_u32 s{T0}, s{T0}, 256\ns_lshl_b32 s{T0}, s{T0}, 15\ns_add_u32 s71, s70, s{T0}")
    E("v_lshrrev_b32 v28, 1, v26\nv_and_b32 v29, 1, v26\nv_lshlrev_b32 v1, 15, v28\nv_lshl_add_u32 v1, v29, 8, v1\nv_lshl_add_u32 v1, v25, 4, v1\nv_add_u32 v16, s71, v1")
    E(f"v_lshl_add_u32 v1, v29, 1, v28\nv_lshlrev_b32 v1, 8, v1\nv_lshl_add_u32 v1, v25, 4, v1\nv_add_u32 v1, s71, v1\nv_add_u32 v17, {6*32768}, v1")
    E(f"s_lshl_b32 s{T0}, s{S_NT}, 2\ns_lshl_b32 s{T1}, s{S_WN}, 1\ns_add_u32 s{T0}, s{T0}, s{T1}\ns_lshl_b32 s{T0}, s{T0}, 15\ns_add_u32 s72, s70, s{T0}")
    E("v_lshl_add_u32 v1, v28, 7, v29\nv_lshlrev_b32 v1, 15, v1\nv_lshl_add_u32 v1, v25, 4, v1\nv_add_u32 v18, s72, v1")
    E(f"v_mov_b32 v30, {hexf(-2*0.7978845608028654*LOG2E)}\nv_mov_b32 v31, {hexf(-2*0.7978845608028654*LOG2E*0.044715)}")
    E(f"v_accvgpr_read_b32 v28, a252\nv_accvgpr_read_b32 v29, a253\ns_mov_b32 s{T2}, 0x100000\nK1_tagchk:\nv_readfirstlane_b32 s75, v28\nv_readfirstlane_b32 s76, v29\ns_sub_u32 s{T2}, s{T2}, 1")
    E(f"s_cmp_lg_u32 s76, 0\ns_cbranch_scc1 K1_tagok\ns_cmp_eq_u32 s{T2}, 0\ns_cbranch_scc1 K1_tagok\ns_sleep 8\nbuffer_load_dwordx2 v[28:29], off, s[{RDBG}:{RDBG+3}], 0 sc1\ns_waitcnt vmcnt(0)\ns_branch K1_tagchk\nK1_tagok:")
    E("s_waitcnt lgkmcnt(0)\ns_barrier")
    E(f"s_cmp_eq_u32 s{S_MT}, 7\ns_cselect_b32 s73, 1, s{S_W}\ns_cmp_lg_u32 s73, 0\ns_cbranch_scc1 K1_nopub")
    E(f"v_and_b32 v1, 31, v0\nv_lshlrev_b32 v1, 3, v1\nv_add_u32 v27, {SCR}, v1")
    slot = [12, 14, 20, 22]
    E("ds_read_b64 v[6:7], v27")
    for s in range(1, 5): E(f"ds_read_b64 {vr(slot[s-1],2)}, v27 offset:{256*s}")
    unstash(E, 28, A_L32P)
    a, b = 6, 8
    for s in range(1, 8):
        E(f"s_waitcnt lgkmcnt({min(3, 7-s)})")
        cur = slot[(s - 1) & 3]
        cfma(E, b, b + 1, 28, 29, a, a + 1, cur, cur + 1); a, b = b, a
        if s + 4 < 8: E(f"ds_read_b64 {vr(cur,2)}, v27 offset:{256*(s+4)}")
    E(f"s_lshl_b32 s{T0}, s{S_MT}, 14\ns_lshl_b32 s{T1}, s{S_NT}, 9\ns_add_u32 s{T0}, s{T0}, s{T1}")
    E(f"v_mov_b32 v12, v{a}\nv_mov_b32 v13, s75\nv_mov_b32 v14, v{a+1}\nv_mov_b32 v15, s75\nv_lshlrev_b32 v1, 1, v1")
    E(f"buffer_store_dwordx4 v[12:15], v1, s[{RAGG}:{RAGG+3}], s{T0} offen sc1\ns_nop 1")
    E("K1_nopub:")
    def store_quad(R, voff, soff, imm):
        E(f"buffer_store_dwordx4 v[{R}:{R+3}], v{voff}, s[{RWS}:{RWS+3}], {soff} offen offset:{imm} {aux}")
    for j in range(3):
        G = 96 + 64 * j; U = G + 32
        if j == 2:
            U = 96
            for r in range(32): E(f"v_accvgpr_read_b32 v{U+r}, a{r}")
        E(f"s_mov_b32 s74, {2*j*32768}")
        for i in range(0, 8, 2):
            R = G + 4 * i
            gelu_quads(E, [(G + 4 * i + 2 * k, U + 4 * i + 2 * k) for k in range(4)])
            for k in range(4): E(f"v_cvt_pk_bf16_f32 v{R+k}, v{U+4*i+2*k}, v{U+4*i+2*k+1}")
            E(f"s_nop 1\nv_permlane16_swap_b32 v{R}, v{R+2}\nv_permlane16_swap_b32 v{R+1}, v{R+3}")
            store_quad(R, 16, "s74", i * 256)
    AG = 192
    E(f"s_sub_u32 s{T0}, s{S_MT}, 7\ns_lshl_b32 s{T0}, s{T0}, 14\ns_lshl_b32 s{T1}, s{S_NT}, 9\ns_add_u32 s{T0}, s{T0}, s{T1}\ns_lshl_b32 s{T1}, s{S_WN}, 8\ns_add_u32 s{T0}, s{T0}, s{T1}")
    E(f"v_lshlrev_b32 v96, 4, v25\nv_add_u32 v96, s{T0}, v96")
    for k in range(1, 7): E(f"v_add_u32 v{96+k}, {0x4000*k}, v96")
    def agg_loads():
        for k in range(7): E(f"buffer_load_dwordx4 v[{AG+4*k}:{AG+4*k+3}], v{96+k}, s[{RAGG}:{RAGG+3}], 0 offen sc1")
    agg_loads()
    stamp(E, cfg, 4)
    M = 128
    for r in range(32): E(f"v_accvgpr_read_b32 v{M+r}, a{32+r}")
    E("s_nop 1")
    for i in range(0, 8, 2):
        for r in range(4): E(f"v_permlane32_swap_b32 v{M+4*i+r}, v{M+4*i+4+r}")
    for i in (0, 4):
        R = M + 4 * i
        q = [(M + 4 * ii + 2 * k, M + 4 * ii + 4 + 2 * k) for ii in (i, i + 2) for k in (0, 1)]
        gelu_quads(E, q)
        for k in range(4): E(f"v_cvt_pk_bf16_f32 v{R+k}, v{q[k][1]}, v{q[k][1]+1}")
        E(f"s_nop 1\nv_permlane16_swap_b32 v{R}, v{R+2}\nv_permlane16_swap_b32 v{R+1}, v{R+3}")
        store_quad(R, 17, "0", i * 256)
    stamp(E, cfg, 5)
    SG = 112
    E(f"s_lshl_b32 s{T1}, s{S_WN}, 7\ns_add_u32 s{T1}, s{T1}, {SCR}\nv_lshlrev_b32 v27, 3, v25\nv_add_u32 v27, s{T1}, v27")
    for s in range(7): E(f"ds_read_b64 v[{SG+2*s}:{SG+2*s+1}], v27 offset:{256*s}")
    unstash(E, 20, A_L256); unstash(E, 22, A_L32)
    E(f"s_lshl_b32 s{T1}, s{S_WM}, 2\nv_add_u32 v28, s{T1}, v26")
    E(f"s_lshl_b32 s{T1}, s{S_W}, 13\nv_lshlrev_b32 v27, 7, v26\nv_lshl_add_u32 v27, v25, 3, v27\nv_add_u32 v14, s{T1}, v27")
    E("v_lshrrev_b32 v27, 5, v0\nv_lshlrev_b32 v27, 9, v27\nv_and_b32 v29, 3, v0\nv_lshl_add_u32 v27, v29, 7, v27")
    E(f"v_and_b32 v29, 1, v26\nv_lshl_add_u32 v27, v29, 6, v27\nv_bfe_u32 v29, v0, 2, 2\nv_lshl_add_u32 v27, v29, 3, v27\nv_add_u32 v15, s{T1}, v27")
    E(f"s_mov_b32 s{T2}, 0x100000\ns_waitcnt vmcnt(2)\nK1_chk:\nv_mov_b32 v104, 0")
    for k in range(7):
        E(f"s_cmp_gt_u32 s{S_MT}, {6-k}\ns_cselect_b32 s{T3}, -1, 0\nv_xor_b32 v105, s75, v{AG+4*k+1}\nv_xor_b32 v106, s75, v{AG+4*k+3}\nv_or_b32 v105, v105, v106\nv_and_or_b32 v104, v105, s{T3}, v104")
    E(f"v_cmp_ne_u32 vcc, 0, v104\ns_sub_u32 s{T2}, s{T2}, 1\ns_nop 3\ns_cbranch_vccz K1_got\ns_cmp_eq_u32 s{T2}, 0\ns_cbranch_scc1 K1_got\ns_sleep 6")
    agg_loads()
    E("s_waitcnt vmcnt(0)\ns_branch K1_chk\nK1_got:\ns_waitcnt lgkmcnt(0)")
    E(f"v_mov_b32 v8, v{AG}\nv_mov_b32 v9, v{AG+2}")
    a, b = 8, 6
    for k in range(1, 7):
        cfma(E, b, b + 1, 20, 21, a, a + 1, AG + 4 * k, AG + 4 * k + 2); a, b = b, a
    CR, CI = 160, 162
    E(f"v_mov_b32 v{CR}, v{a}\nv_mov_b32 v{CI}, v{a+1}")
    for s in range(7):
        E(f"v_cmp_lt_u32 vcc, {s}, v28")
        cfma(E, b, b + 1, 22, 23, a, a + 1, SG + 2 * s, SG + 2 * s + 1); a, b = b, a
        E(f"v_cndmask_b32 v{CR}, v{CR}, v{a}, vcc\nv_cndmask_b32 v{CI}, v{CI}, v{a+1}, vcc")
    cfma(E, CR + 1, CI + 1, L16, L16 + 1, CR, CI, SA, SA + 1)
    unstash(E, 20, A_C2)
    hr, hi = CR, CI
    for n in range(16):
        E(pkf(re(n), hr, LAM, re(n), 0)); E(pkf(im(n), hi, LAM, im(n), 0))
        E(pkf(re(n), hi, LAM, re(n), 1, True)); E(pkf(im(n), hr, LAM, im(n), 1))
        hr, hi = re(n), im(n)
    for i in range(8):
        T = 96 + 8 * (i & 1); R = 112 + 4 * i
        for k in (0, 1):
            n = 2 * i + k
            E(pkm(T + 4 * k, re(n), 20, 0)); E(pkm(T + 4 * k + 2, im(n), 20, 0, True))
            E(pkf(T + 4 * k, im(n), 20, T + 4 * k, 1, True)); E(pkf(T + 4 * k + 2, re(n), 20, T + 4 * k + 2, 1, True))
        for k in (0, 1):
            E(f"v_cvt_pk_bf16_f32 v{R+k}, v{T+4*k}, v{T+4*k+1}\nv_cvt_pk_bf16_f32 v{R+2+k}, v{T+4*k+2}, v{T+4*k+3}")
        E(f"ds_write_b64 v14, v[{R}:{R+1}] offset:{i*1024}\nds_write_b64 v14, v[{R+2}:{R+3}] offset:{i*1024+512}")
    E("s_waitcnt lgkmcnt(0)")
    def trd(i):
        R = 192 + 4 * i
        E(f"ds_read_b64_tr_b16 v[{R}:{R+1}], v15 offset:{i*1024}\nds_read_b64_tr_b16 v[{R+2}:{R+3}], v15 offset:{i*1024+32}")
    for i in range(4): trd(i)
    for i in range(8):
        if i < 4: trd(i + 4)
        E(f"s_waitcnt lgkmcnt({min(8, 14-2*i)})")
        store_quad(192 + 4 * i, 18, "0", i * 256)

if __name__ == "__main__":
    t, errs = gen()
    print("\n".join(errs[:40])); print(len(errs), "hazards;", t.count("\n"), "lines")
```

```python
from asmlib import *
DOUBLE = ("v_exp", "v_rcp", "v_sin", "v_cos", "v_permlane")
class Item:
    def __init__(self, text, lo, hi, chain=None, dist=1, tag=None, kind="raw", needs=()):
        self.text, self.lo, self.hi, self.chain, self.dist, self.tag, self.kind, self.needs = text, lo, hi, chain, dist, tag, kind, needs
        self.cost = 1 if callable(text) else 2 if text.startswith(DOUBLE) else max(1, sum(not x.endswith(":") for x in text.split("\n")))
        if needs: self.cost += 1
class Stream:
    def __init__(self): self.mf = []; self.items = []; self.fixed = {}
    def mfma(self, text, needs): self.mf.append((text, needs))
    def add(self, text, lo=0, hi=10**6, chain=None, dist=1): self.items.append(Item(text, lo, hi, chain, dist))
    def ds(self, text, tag, lo, hi): self.items.append(Item(text, lo, hi, "ds%s" % id(text), 1, tag, "ds"))
    def ride(self, items, lo=0):
        for it in items: it.lo = max(lo, 0); it.hi = 10**6; it.chain = "ride"; self.items.append(it)
    def at(self, g, text): self.fixed.setdefault(g, []).append(text)
    def place(self, reserved):
        n = len(self.mf); gaps = [[] for _ in range(n)]
        chains = {}
        for it in self.items: chains.setdefault(it.chain if it.chain is not None else id(it), []).append(it)
        for c in chains.values():
            nxt = 10**6
            for it in reversed(c):
                it.dl = min(it.hi, nxt); nxt = it.dl - it.dist
        head = {k: 0 for k in chains}; last = {k: -10**6 for k in chains}
        todo = sum(it.chain != "ride" for it in self.items)
        for g in range(n):
            load = (1 if g in reserved else 0) + 2 * len(self.fixed.get(g, []))
            while True:
                ready = []
                for k, c in chains.items():
                    if head[k] < len(c):
                        it = c[head[k]]
                        if it.lo <= g and g >= last[k] + it.dist: ready.append((it.dl, k, it))
                if not ready: break
                ready.sort(key=lambda x: x[0])
                dl, k, it = ready[0]
                cap = 1
                pend = sorted(x.dl for c_k, c in chains.items() for x in c[head[c_k]:] if x.dl < 10**5)
                for cnt, d in enumerate(pend, 1):
                    if cnt > (min(d, n - 1) - g + 1 - (1 if load else 0)): cap = 2; break
                if todo > (n - g) - (1 if load else 0): cap = 2
                if dl <= g: cap = 99
                if k != "ride" and (load + (it.cost if load else 0) > cap or load >= cap):
                    ready = [x for x in ready if x[1] == "ride"]
                    if not ready: break
                    dl, k, it = ready[0]
                if k == "ride" and load >= 2: break
                gaps[g].append(it); load += it.cost; head[k] += 1; last[k] = g; todo -= k != "ride"
        left = [it for k, c in chains.items() for it in c[head[k]:]]
        return gaps, left
    def emit(self, E, allow_left=False):
        reserved = set()
        for _ in range(6):
            gaps, left = self.place(reserved)
            T = Em(); T.q = list(E.q); T.t = E.t; T.age = E.age
            waits = set()
            for g, (text, needs) in enumerate(self.mf):
                k = len(T.L); T.need(needs)
                if len(T.L) > k and g: waits.add(g - 1)
                T(text)
                for it in gaps[g]:
                    T.need(it.needs)
                    if it.kind == "ds":
                        k = len(T.L); T.ds(it.text, it.tag)
                        if len(T.L) > k + 1: waits.add(g)
            if waits <= reserved: break
            reserved |= waits
        assert allow_left or all(x.chain == "ride" for x in left), [x.text for x in left[:4]]
        for g, (text, needs) in enumerate(self.mf):
            E.need(needs); E(text)
            for t in self.fixed.get(g, []):
                if callable(t): t(E)
                else: E(t)
            for it in gaps[g]: put(E, it)
        return left
def put(E, it):
    E.need(it.needs)
    if it.kind == "ds": E.ds(it.text, it.tag)
    elif callable(it.text): it.text(E)
    else: E(it.text)
```

```python
from common import *
from sched import Stream, Item, put
import re
from k1 import cmul as k1_cmul
from k1 import gate_stream, param_stream, gelu_quads, pkf, pkm, cfma, stash, unstash, A_LAM, A_C2, A_L16, A_L32, A_L256, A_L32P
NAME = "gated_mix__ssm_conv_s5__glu_gated_geglu__prompt_kernel"
MF = "v_mfma_f32_16x16x32_bf16"
GOFF = 65536; WBUF = 28688; UOFF = 14352; BOFF = GOFF + 2 * WBUF
WOFF = 98304; GLDS = 147456; SCR = GLDS + 2048; TRS = SCR + 2048; LDS = TRS + 12288
S_W, S_MT, S_NT, S_WM, S_WN = 3, 4, 5, 6, 7
RX, RW, RB, RWS, RDBG, RAGG = 8, 12, 16, 20, 24, 28
S_KX, S_KW, S_MX, S_MW, S_MB, S_CNT = 32, 33, 34, 35, 64, 65
T0, T1, T2, T3 = 66, 67, 68, 69
S_KQ, S_NB, S_KXR, S_FILL, S_TAG = 98, 99, 100, 101, 75
RWD, RC0, RC1, ROUT = RW, RB, RDBG, RAGG
S_AC, S_AD, S_WC, S_WD, S_MA, S_MW2, S_SA, S_SW = 38, 39, 40, 41, 42, 43, 44, 45
S_SEND, S_RECV, S_FOWN, S_FGRP, S_GSRC, S_GLDS = 50, 53, 54, 55, 58, 59
V_X, V_W, V_B, V_RX, V_RW, V_RM, V_RB = 2, 10, 17, 19, 21, 22, 23
V_A, V_C, V_D, V_RA, V_RC, V_RD, V_G = 2, 6, 10, 14, 16, 18, 22
H_A, H_D = 128, 132
A_XF, A_WF1 = 64, 192
A_WF, A_AF, A_G, A_X, A_DS = 32, 96, 128, 144, 160
ND, NST = 14, 22
SPIN = 0x100000
LAT = 7
TOUCH = "global_load_dword a254, v[26:27], off"
TOUCH_ADV = "v_lshl_add_u64 v[26:27], v[28:29], 0, v[26:27]"
PTS = "start,bar0,loop1,e1end,k2start,loop2,end,drained"
def pt(E, cfg, name):
    pts = cfg.get("pts", PTS).split(",")
    if name in pts: stamp(E, cfg, pts.index(name))
SLEEP = [3]
COLD = []
def cold_poll(name, reload, recheck):
    COLD.append(f"{name}_slow:\ns_mov_b32 s{T2}, {SPIN}\n{name}_again:\ns_sleep {SLEEP[0]}\n{reload}\ns_waitcnt vmcnt(0)\n{recheck}\ns_sub_u32 s{T2}, s{T2}, 1\ns_nop 3\n"
                f"s_cbranch_vccz {name}_ok\ns_cmp_lg_u32 s{T2}, 0\ns_cbranch_scc1 {name}_again\ns_branch {name}_ok")
    return f"s_cbranch_vccnz {name}_slow\n{name}_ok:"

def acc(g, i): return vr(32 + g * 32 + 4 * i, 4) if g < 7 else ar((g - 7) * 32 + 4 * i, 4)
def xf(b, s, i): return A_XF + b * 64 + (s * 8 + i) * 4
def wf1(g, s): return A_WF1 + (g % 3) * 8 + s * 4
def dma1(buf, cfg, first=False):
    dw, dx = cfg.get("dma_w", 6), cfg.get("dma_x", 4)
    W = lambda j: (f"buffer_load_dwordx4 v{V_W+j}, s[{RW}:{RW+3}], s{S_KW} offen offset:{(j&3)*1024} lds @w", dw)
    X = lambda j: (f"buffer_load_dwordx4 v{V_X+j}, s[{RX}:{RX+3}], s{S_KX} offen offset:{(j&3)*1024} lds @x", dx)
    B = lambda j: (f"buffer_load_dwordx4 v{V_B+j}, s[{RB}:{RB+3}], s{S_KX} offen offset:{j*1024} lds @x", dx)
    def blk(m, loads): return [(m, loads[0][1] - 1), (loads[0][0], 1)] + loads[1:]
    w0 = blk(f"s_add_u32 m0, s{S_MW}, {buf*WBUF}", [W(j) for j in range(4)]); w1 = blk(f"s_add_u32 m0, s{S_MW}, {buf*WBUF + 4096}", [W(j) for j in range(4, 7)])
    x0 = blk(f"s_add_u32 m0, s{S_MX}, {buf*32768}", [X(j) for j in range(4)]); x1 = blk(f"s_add_u32 m0, s{S_MX}, {buf*32768 + 4096}", [X(j) for j in range(4, 8)])
    b0 = blk(f"s_add_u32 m0, s{S_MB}, {buf*8192}", [B(0), B(1)])
    aw, ax = [(f"s_add_u32 s{S_KW}, s{S_KW}, {64*7168}", 1)], [(f"s_add_u32 s{S_KX}, s{S_KX}, 128", 1)]
    return b0 + x0 + x1 + ax + w0 + w1 + aw if first else w0 + x0 + b0 + w1 + aw + x1 + ax
def rd_x(b, s, i): return (f"ds_read_b128 {ar(xf(b,s,i),4)}, v{V_RX+s} offset:{b*32768 + i*2048}", ("x", b, s, i))
def rd_w1(b, g):
    out = []
    for s in (0, 1):
        r = wf1(g, s)
        if g < 2: out.append((f"ds_read_b128 {ar(r,4)}, v{V_RB+s} offset:{b*8192 + g*4096}", ("w", g % 3, s, 0))); continue
        if g < 8: base, off = V_RW, b * WBUF + ((g - 2) & 1) * UOFF + s * 7168 + ((g - 2) >> 1) * 32
        else: base, off = V_RM, b * WBUF + s * 7168
        out += [(f"ds_read_b64_tr_b16 {ar(r+2*h,2)}, v{base} offset:{off + h*1792}", ("w", g % 3, s, h)) for h in (0, 1)]
    return out
def group1(S, b, g, first=False):
    for i in range(8):
        for s in (0, 1):
            a = acc(g, i); w_ = ar(wf1(g, s), 4); x_ = ar(xf(b, s, i), 4); c = "0" if first and s == 0 else a
            S.mfma(f"{MF} {a}, {x_}, {w_}, {c}" if g < 2 else f"{MF} {a}, {w_}, {x_}, {c}", [("w", g % 3, s, 0), ("w", g % 3, s, 1), ("x", b, s, i)])
def segment(E, prev, cfg, vm, dma=(), extra=(), last=False, extra_hi=None, extra_lo=0, pin=None):
    nxt = 1 - prev; S = Stream()
    seq = [(prev, 7), (prev, 8)] + [(nxt, g) for g in range(9 if last else 7)]
    for b, g in seq: group1(S, b, g)
    for i in range(8):
        for s in (0, 1): S.ds(*rd_x(nxt, s, i), 0, 32 + 2 * i + s - LAT)
    for p in range(9):
        for it in rd_w1(nxt, p): S.ds(*it, 16 * p, min(16 * (p + 2), 10**6 if last else 144) - LAT)
    for k, (t, d) in enumerate(dma): S.add(t, 0, cfg.get("dma_end", 104), "dma", d if k else 1)
    for t in extra: S.add(t, extra_lo, extra_hi or len(S.mf) - 1, "extra", 0)
    if pin: S.at(*pin)
    E.drain(f"vmcnt({vm})"); E("s_barrier")
    segstamp(E, cfg, RWS)
    S.emit(E)

NPROJ = 26
T1ST = f"s_mov_b64 exec, {hex((1 << NPROJ) - 1)}\n{TOUCH}\n{TOUCH_ADV}\ns_mov_b64 exec, -1"
def touch_offsets(E):
    E(f"s_and_b32 s76, s{S_MT}, 3\ns_lshl_b32 s76, s76, 3\ns_add_u32 s76, s76, s{S_NB}\ns_lshl_b32 s76, s76, 2\ns_add_u32 s76, s76, s{S_W}")
    E(f"s_lshl_b32 s75, s76, 1\ns_lshl_b32 s77, s{S_KQ}, 8\ns_add_u32 s75, s75, s77\ns_lshl_b32 s75, s75, 11")
    E(f"s_lshr_b32 s77, s76, 1\ns_mul_i32 s77, s77, 7168\ns_mul_i32 s78, s{S_KQ}, 1792\ns_add_u32 s77, s77, s78\ns_sub_u32 s77, s77, {12*128}")
    E(f"s_and_b32 s79, s{S_MT}, 4\ns_lshl_b32 s79, s79, 8\ns_lshl_b32 s78, s76, 3\ns_add_u32 s79, s79, s78\ns_lshl_b32 s79, s79, 11\ns_and_b32 s76, s76, 1")
    E("v_cmp_gt_u32 vcc, 42, v0\nv_mov_b32 v28, 128\nv_mov_b32 v29, 0\nv_cndmask_b32 v24, 0, v0, vcc")
    E("v_lshlrev_b32 v30, 11, v24\nv_add_u32 v30, s79, v30\nv_cmp_le_u32 s[70:71], 8, v24\nv_cmp_le_u32 s[72:73], 10, v24\nv_cmp_le_u32 vcc, 12, v24")
    E("v_and_b32 v31, 1, v24\nv_lshlrev_b32 v31, 11, v31\nv_add_u32 v31, s75, v31\nv_cndmask_b32 v30, v30, v31, s[70:71]")
    E(f"v_lshlrev_b32 v31, 7, v24\nv_add_u32 v31, s77, v31\nv_cndmask_b32 v30, v30, v31, vcc\nv_mov_b32 v31, {64*7168}\nv_cndmask_b32 v28, v28, v31, vcc\nv_mov_b32 v31, 0")
def touch_bases(E):
    E("s_cmp_eq_u32 s76, 0\ns_cselect_b32 s78, s52, s54\ns_cselect_b32 s79, s53, s55\nv_mov_b32 v26, s36\nv_mov_b32 v27, s37")
    for m, lo in (("s[70:71]", 42), ("s[72:73]", 44), ("vcc", 78)):
        E(f"v_mov_b32 v1, s{lo}\nv_mov_b32 v25, s{lo+1}\nv_cndmask_b32 v26, v26, v1, {m}\nv_cndmask_b32 v27, v27, v25, {m}")
    E("v_lshl_add_u64 v[26:27], v[30:31], 0, v[26:27]")
def touch_rest(E):
    def sel(first, lo, off, step=None):
        E(f"v_cmp_le_u32 vcc, {first}, v24\n{off}\nv_mov_b32 v32, s{lo}\nv_mov_b32 v33, s{lo+1}\nv_lshl_add_u64 v[32:33], v[30:31], 0, v[32:33]")
        E("v_cndmask_b32 v26, v26, v32, vcc\nv_cndmask_b32 v27, v27, v33, vcc")
        if step is not None: E(f"v_mov_b32 v1, {step}\nv_cndmask_b32 v28, v28, v1, vcc")
    E(f"s_lshl_b32 s74, s2, 2\ns_add_u32 s74, s74, s{S_W}")
    E(f"s_mul_i32 s75, s74, {56*128}\ns_sub_u32 s75, s75, {26*11*128}\ns_lshl_b32 s76, s74, 11\ns_sub_u32 s77, s76, {31*512}\ns_sub_u32 s76, s76, {33*512}")
    sel(26, 56, f"v_mul_u32_u24 v30, {11*128}, v24\nv_add_u32 v30, s75, v30", 128)
    sel(31, 46, "v_lshlrev_b32 v30, 9, v24\nv_add_u32 v30, s77, v30")
    sel(33, 48, "v_lshlrev_b32 v30, 9, v24\nv_add_u32 v30, s76, v30")
    sel(35, 58, f"v_lshlrev_b32 v30, 9, v24\nv_subrev_u32 v30, {35*512}, v30")
    E(f"s_lshl_b32 s75, s{S_NT}, 6\ns_lshl_b32 s76, s{S_MT}, 20")
    sel(37, 38, "v_mov_b32 v30, s75", "0")
    sel(38, 40, "s_nop 0")
    sel(39, 50, "s_nop 0")
    sel(40, 96, "v_mov_b32 v30, s76")
    sel(41, 80, "v_mov_b32 v30, 0", 128)
    E("v_cmp_le_u32 vcc, 42, v0\nv_readlane_b32 s75, v26, 41\nv_readlane_b32 s76, v27, 41\ns_nop 1\nv_mov_b32 v32, s75\nv_mov_b32 v33, s76")
    E("v_cndmask_b32 v26, v26, v32, vcc\nv_cndmask_b32 v27, v27, v33, vcc")

def gen(cfg=None):
    cfg = cfg or {}
    COLD.clear(); SLEEP[0] = cfg.get("sleep", 4)
    E = Em()
    E(kernel_head(NAME))
    E("s_cmp_ge_u32 s2, 256\ns_cbranch_scc1 KF_end")
    pt(E, cfg, "start")
    E("s_load_dwordx16 s[36:51], s[0:1], 0\ns_load_dwordx8 s[52:59], s[0:1], 80\ns_load_dwordx4 s[60:63], s[0:1], 120\ns_load_dwordx2 s[80:81], s[0:1], 64\ns_load_dwordx2 s[96:97], s[0:1], 112")
    E(f"v_lshrrev_b32 v1, 6, v0\nv_and_b32 v0, 63, v0\nv_readfirstlane_b32 s{S_W}, v1")
    E(f"s_and_b32 s{S_KQ}, s2, 3\ns_and_b32 s{T0}, s2, 4\ns_bfe_u32 s{T1}, s2, 0x20003\ns_add_u32 s{S_MT}, s{T0}, s{T1}\ns_lshr_b32 s{S_NB}, s2, 5")
    E(f"s_lshl_b32 s{S_NT}, s{S_KQ}, 3\ns_add_u32 s{S_NT}, s{S_NT}, s{S_NB}\ns_xor_b32 s{S_KXR}, s{S_KQ}, 3")
    E(f"s_lshr_b32 s{S_WM}, s{S_W}, 1\ns_and_b32 s{S_WN}, s{S_W}, 1")
    E("v_lshrrev_b32 v25, 3, v0\nv_and_b32 v26, 7, v0")
    E("v_lshrrev_b32 v27, 2, v25\nv_lshlrev_b32 v27, 5, v27")
    E("v_and_b32 v28, 1, v25\nv_lshl_add_u32 v27, v28, 4, v27")
    E("v_lshrrev_b32 v28, 1, v25\nv_and_b32 v29, 1, v28\nv_add_u32 v27, v27, v29")
    E("v_xor_b32 v29, v26, v28\nv_lshlrev_b32 v29, 4, v29")
    E("v_xor_b32 v30, 64, v29")
    E(f"s_lshl_b32 s{T0}, s{S_MT}, 8\ns_lshl_b32 s{T1}, s{S_WM}, 7\ns_add_u32 s{T0}, s{T0}, s{T1}")
    E(f"s_lshl_b32 s{T1}, s{S_WN}, 3\ns_add_u32 s{T0}, s{T0}, s{T1}")
    E(f"v_add_u32 v27, s{T0}, v27\nv_lshlrev_b32 v27, 11, v27\nv_add_u32 v{V_X}, v27, v29\nv_add_u32 v31, v27, v30")
    for j in range(1, 8): E(f"v_add_u32 v{V_X+j}, {(j&1)*64*2048 + (j>>1)*4096 - (j&3)*1024}, v{31 if j & 1 else V_X}")
    E(f"s_lshl_b32 s{T0}, s{S_NT}, 5\ns_lshl_b32 s{T1}, s{S_WN}, 4\ns_add_u32 s{T0}, s{T0}, s{T1}")
    E(f"v_add_u32 v27, s{T0}, v25\nv_lshlrev_b32 v27, 11, v27")
    E(f"v_add_u32 v{V_B}, v27, v29\nv_add_u32 v{V_B+1}, v27, v30\nv_add_u32 v{V_B+1}, {8*2048 - 1024}, v{V_B+1}")
    E(f"s_mul_i32 s{T1}, s{S_NT}, 224\ns_mul_i32 s{T2}, s{S_WN}, {32*7168}\ns_add_u32 s{T1}, s{T1}, s{T2}\ns_movk_i32 s{T2}, 7168")
    for j in range(7):
        E(f"v_add_u32 v25, {64*j}, v0\nv_mul_u32_u24 v26, 4682, v25\nv_lshrrev_b32 v26, 16, v26")
        E("v_mul_u32_u24 v27, 14, v26\nv_sub_u32 v27, v25, v27")
        E("v_and_b32 v28, 19, v26\nv_and_b32 v29, 4, v26\nv_lshl_or_b32 v28, v29, 1, v28")
        E("v_and_b32 v29, 8, v26\nv_lshrrev_b32 v29, 1, v29\nv_or_b32 v28, v28, v29")
        E(f"s_sub_u32 s{T3}, s{T1}, {(j&3)*1024}\nv_mul_u32_u24 v28, s{T2}, v28\nv_lshl_add_u32 v28, v27, 4, v28\nv_add_u32 v{V_W+j}, s{T3}, v28")
    E(f"s_lshl_b32 s{S_MX}, s{S_W}, 13")
    E(f"s_mul_i32 s{S_MW}, s{S_WM}, {UOFF}\ns_mul_i32 s{T1}, s{S_WN}, 7168\ns_add_u32 s{S_MW}, s{S_MW}, s{T1}\ns_add_u32 s{S_MW}, s{S_MW}, {GOFF}")
    E(f"s_lshl_b32 s{S_MB}, s{S_W}, 11\ns_add_u32 s{S_MB}, s{S_MB}, {BOFF}")
    E(f"s_mov_b32 s{S_KX}, 0\ns_mov_b32 s{S_KW}, 0")
    touch_offsets(E)
    E("s_waitcnt lgkmcnt(0)")
    if cfg.get("wsbase"): E(f"s_add_u32 s62, s62, {cfg['wsbase']}\ns_addc_u32 s63, s63, 0")
    npre = cfg.get("npre", 0)
    if npre: touch_bases(E)
    for _ in range(npre): E(T1ST)
    srd(E, RX, 36, 2048 * 2048)
    E(f"s_cmp_eq_u32 s{S_WM}, 0\ns_cselect_b32 s{T2}, s42, s44\ns_cselect_b32 s{T3}, s43, s45")
    srd(E, RB, T2, 1024 * 2048)
    E(f"s_cmp_eq_u32 s{S_WM}, 0\ns_cselect_b32 s{T2}, s52, s54\ns_cselect_b32 s{T3}, s53, s55")
    srd(E, RW, T2, 1024 * 7168)
    d0 = [t + ("\ns_nop 0" if "m0" in t else "") for t, _ in dma1(0, cfg, True)]
    nfirst = cfg.get("nfirst", 14)
    for t in d0[:nfirst]: E(t)
    if not npre: touch_bases(E); E(TOUCH_ADV)
    touch_rest(E)
    E("v_and_b32 v34, 15, v0\nv_lshrrev_b32 v35, 4, v0")
    E("v_lshrrev_b32 v36, 1, v34\nv_xor_b32 v36, v36, v35\nv_lshlrev_b32 v36, 4, v36\nv_lshl_add_u32 v36, v34, 7, v36")
    E(f"s_lshl_b32 s{T1}, s{S_WM}, 14\nv_add_u32 v{V_RX}, s{T1}, v36\nv_xor_b32 v{V_RX+1}, 64, v{V_RX}")
    E(f"s_lshl_b32 s{T1}, s{S_WN}, 11\ns_add_u32 s{T1}, s{T1}, {BOFF}\nv_xor_b32 v37, 64, v36\nv_add_u32 v{V_RB}, s{T1}, v36\nv_add_u32 v{V_RB+1}, s{T1}, v37")
    E("v_lshrrev_b32 v36, 5, v0\nv_lshlrev_b32 v36, 4, v36\nv_and_b32 v37, 1, v35\nv_lshl_add_u32 v36, v37, 2, v36")
    E("v_bfe_u32 v37, v0, 2, 2\nv_add_u32 v36, v36, v37\nv_mul_u32_u24 v36, 224, v36")
    E(f"s_mul_i32 s{T1}, s{S_WN}, 112\ns_add_u32 s{T1}, s{T1}, {GOFF}\nv_add_u32 v36, s{T1}, v36")
    E(f"v_and_b32 v37, 3, v0\nv_lshl_add_u32 v{V_RW}, v37, 3, v36")
    E(f"v_and_b32 v37, 1, v0\nv_lshl_add_u32 v36, v37, 3, v36\nv_bfe_u32 v37, v0, 1, 1\nv_mul_u32_u24 v37, {UOFF}, v37")
    E(f"v_add_u32 v36, 96, v36\nv_add_u32 v{V_RM}, v36, v37")
    srd(E, RWS, 62, WS_SIZE)
    srd(E, RDBG, 60, 256)
    E(f"s_add_u32 s{T2}, s62, {AGG_OFF}\ns_addc_u32 s{T3}, s63, 0")
    srd(E, RAGG, T2, 131072)
    E(f"s_lshl_b32 s70, s{S_MT}, 8\ns_lshl_b32 s{T1}, s{S_NT}, 3\ns_add_u32 s70, s70, s{T1}\ns_lshl_b32 s{T1}, s{S_W}, 1\ns_add_u32 s70, s70, s{T1}")
    E(f"s_and_b32 s73, s70, 0xff80\ns_bfe_u32 s{T1}, s70, 0x30004\ns_lshl_b32 s{T1}, s{T1}, 1\ns_add_u32 s73, s73, s{T1}")
    E(f"s_bfe_u32 s{T1}, s70, 0x20002\ns_lshl_b32 s{T1}, s{T1}, 5\ns_add_u32 s73, s73, s{T1}")
    E(f"s_bfe_u32 s{T1}, s70, 0x10001\ns_add_u32 s73, s73, s{T1}\ns_lshl_b32 s73, s73, 11\ns_add_u32 s72, s73, {16*2048}")
    E(f"s_lshl_b32 s70, s70, 3\ns_add_u32 s70, s70, {G_OFF}")
    E(f"s_lshl_b32 s{T0}, s{S_MT}, 3\ns_add_u32 s{T0}, s{T0}, s{S_NB}\ns_lshl_b32 s{T0}, s{T0}, 2\ns_add_u32 s{T0}, s{T0}, s{S_KQ}\ns_lshl_b32 s{T0}, s{T0}, 2\ns_add_u32 s{T0}, s{T0}, s{S_W}")
    E(f"s_mul_i32 s{S_FILL}, s{T0}, 12288\ns_add_u32 s{S_FILL}, s{S_FILL}, {XCH_OFF}\nv_lshlrev_b32 v25, 4, v0")
    for r in range(64): E(f"v_accvgpr_write_b32 a{r}, 0")
    for r in range(4): E(f"v_accvgpr_write_b32 a{246+r}, -1")
    E(f"s_mov_b32 s77, {EPO_OFF}\ns_lshl_b32 s78, s2, 2\ns_add_u32 s78, s78, s{S_W}")
    E(f"s_getpc_b64 s[74:75]\nKF_pc0:\ns_lshl_b32 s76, s{S_W}, 13\nv_lshlrev_b32 v1, 7, v0\nv_add_u32 v1, s76, v1")
    for t in d0[nfirst:]: E(t)
    pt(E, cfg, "issued")
    for _ in range(3 - max(npre, 1)): E(T1ST)
    E(f"buffer_load_dword a250, off, s[{RWS}:{RWS+3}], s77 sc1")
    E("global_load_dword a255, v1, s[74:75]\ns_add_u32 s74, s74, 0x8000\ns_addc_u32 s75, s75, 0\nv_min_u32 v1, KF_end-KF_pc0-0x8000, v1")
    pt(E, cfg, "prep")
    E(f"s_waitcnt vmcnt({E.vm('x')})\ns_barrier")
    pt(E, cfg, "bar0")
    segstamp_init(E, cfg, 0, S_W)
    E.vq = [("w0" if t == "w" else t) for t in E.vq]
    for g in (0, 1):
        for it in rd_w1(0, g): E.ds(*it)
        for i in range(4 * g, 4 * g + 4):
            for s in (0, 1): E.ds(*rd_x(0, s, i))
    S = Stream()
    for g in range(7): group1(S, 0, g, True)
    def midbar(E):
        pt(E, cfg, "wpre"); E(f"s_waitcnt vmcnt({E.vm('w0')})"); pt(E, cfg, "wpost"); E("s_barrier"); pt(E, cfg, "wbar")
    S.at(15, midbar)
    for g in range(2, 9):
        for it in rd_w1(0, g): S.ds(*it, max(16, 16 * (g - 2)), min(16 * g, 112) - LAT)
    d1 = [(t, min(d, 4)) for t, d in dma1(1, cfg)] + [("global_load_dword a255, v1, s[74:75]", 3), (f"buffer_load_dword a255, off, s[{RWS}:{RWS+3}], s{S_FILL} sc1", 3)]
    late = [(T1ST, 2)]
    d1 = d1[:cfg.get("late_at", 16)] + late + d1[cfg.get("late_at", 16):]
    for k, (t, d) in enumerate(d1): S.add(t, 0, 84, "dma", d if k else 1)
    S.emit(E)
    pt(E, cfg, "seg0")
    if "st1" in cfg.get("pts", ""): E("s_waitcnt vmcnt(2)"); pt(E, cfg, "st1")
    E.L = fix_hazards(E.L, "pro")
    pro = list(E.L)
    COLD.append(f"KF_tag:\nv_accvgpr_read_b32 v30, a250\ns_mov_b32 s78, 0x9e3779b1\nv_mul_lo_u32 v30, v30, s78\nv_mov_b32 v31, 1\nv_add_u32 v30, 0x7f4a7c15, v30\n"
                f"buffer_store_dword v30, off, s[{RWS}:{RWS+3}], s77 sc1\nbuffer_store_dwordx2 v[30:31], off, s[{RDBG}:{RDBG+3}], 0 sc1\ns_branch KF_notag")
    side = [(TOUCH, 4), (TOUCH_ADV, 1), (f"buffer_store_dwordx4 a[246:249], v25, s[{RWS}:{RWS+3}], s{S_FILL} offen sc1", 3), (f"s_add_u32 s{S_FILL}, s{S_FILL}, 1024", 1)]
    E(f"s_mov_b32 s{S_CNT}, 6\nKF_loop:")
    l0 = len(E.L)
    segment(E, 0, cfg, 2, dma1(0, cfg) + side)
    segment(E, 1, cfg, 2, [("s_cmp_eq_u32 s78, 0\ns_cbranch_scc1 KF_tag\nKF_notag:", 1)] + dma1(1, cfg) + side + [(f"s_sub_u32 s{S_CNT}, s{S_CNT}, 1", 1), (f"s_cmp_lg_u32 s{S_CNT}, 0", 1)])
    body = E.L[l0:]
    E("s_cbranch_scc1 KF_loop")
    l1 = len(E.L)
    gs = [x for x in gate_stream() if not x.startswith("s_nop")]; h = cfg.get("gate_split", 90)
    addr = lines([f"s_lshl_b32 s{T1}, s{S_NT}, 5\ns_lshl_b32 s{T0}, s{S_WN}, 4\ns_add_u32 s{T0}, s{T0}, s{T1}",
        f"v_and_b32 v25, 15, v0\nv_add_u32 v25, s{T0}, v25\nv_lshlrev_b32 v25, 1, v25",
        f"v_and_b32 v30, 31, v0\nv_add_u32 v30, s{T1}, v30\nv_lshlrev_b32 v30, 1, v30\nv_lshlrev_b32 v31, 4, v0"])
    small = lines(["global_load_dwordx4 a[216:219], v31, s[58:59]\nglobal_load_dwordx4 a[220:223], v31, s[58:59] offset:1024",
        f"buffer_load_dwordx4 a[224:227], v31, s[{RX}:{RX+3}], s73 offen\nbuffer_load_dwordx4 a[228:231], v31, s[{RX}:{RX+3}], s73 offen offset:1024",
        f"buffer_load_dwordx4 a[232:235], v31, s[{RX}:{RX+3}], s72 offen\nbuffer_load_dwordx4 a[236:239], v31, s[{RX}:{RX+3}], s72 offen offset:1024",
        "global_load_ushort a240, v25, s[38:39]\nglobal_load_ushort a241, v25, s[40:41]\nglobal_load_ushort a242, v25, s[50:51]",
        "global_load_ushort a243, v30, s[38:39]\nglobal_load_ushort a244, v30, s[40:41]\nglobal_load_ushort a245, v30, s[50:51]",
        f"buffer_load_dwordx2 a[252:253], off, s[{RDBG}:{RDBG+3}], 0 sc1"])
    d13 = dma1(0, cfg) + [(x, 3) for x in small]
    for k in range(len(small)): small[k] += ' @small'
    d13 = dma1(0, cfg) + [(x, 3) for x in small]
    tagchk = ["v_accvgpr_read_b32 v3, a253", "v_accvgpr_read_b32 v2, a252", "v_cmp_eq_u32 vcc, 0, v3", "s_nop 0", "s_nop 0",
              cold_poll("KF_tg", f"buffer_load_dwordx2 v[2:3], off, s[{RDBG}:{RDBG+3}], 0 sc1", "v_cmp_eq_u32 vcc, 0, v3"), f"v_readfirstlane_b32 s{S_TAG}, v2"]
    fin = ["v_lshrrev_b32 v26, 16, v26", "v_lshrrev_b32 v28, 16, v28", "v_or_b32 v26, v26, v27", "v_or_b32 v28, v28, v29",
           f"v_mov_b32 v27, s{S_TAG}", f"v_mov_b32 v29, s{S_TAG}", f"buffer_store_dwordx4 v[26:29], off, s[{RWS}:{RWS+3}], s70 sc1"]
    segment(E, 0, dict(cfg, dma_end=104 + 3 * len(small) - 8), 2, d13, addr, extra_hi=60)
    k_ = max(i for i, x in enumerate(E.L) if x == addr[-1]); assert all("a[216:219]" not in x for x in E.L[l1:k_])
    segment(E, 1, cfg, len(small), dma1(1, cfg), gs[:h], extra_lo=30, pin=(29, lambda E: E(f"s_waitcnt vmcnt({E.vm('small')})")))
    segment(E, 0, cfg, 0, (), tagchk + gs[h:] + fin + [x for x in param_stream() if not x.startswith("s_nop")], last=True)
    E.drain()
    pt(E, cfg, "loop1")
    E.vq = []
    epilogue1(E, cfg)
    gemm2(E, cfg)
    pt(E, cfg, "end")
    if cfg.get("stamps"): E("s_waitcnt vmcnt(0)")
    pt(E, cfg, "drained")
    diag_tail(E, cfg)
    E("KF_end:\ns_endpgm")
    E.L[l1:] = fix_hazards(E.L[l1:], "tail")
    errs = check(pro + body + body + E.L[l1:], "kf") + flag_check(E.L)
    for c in COLD:
        errs += check(c.split("\n"), "cold"); E(c)
    E.L.insert(len(E.L) - 1, "KF_last:")
    if cfg.get("align", True): E.L = align8(E.L)
    return E.text(), errs

def flag_check(L):
    errs = []; lastv = None; prev = ""; scc = None
    SW = ("s_add_", "s_sub_", "s_addc", "s_lshl", "s_lshr", "s_and_", "s_or_", "s_xor", "s_bfe", "s_cmp", "s_min", "s_max")
    for x in L:
        if x.endswith(":"): continue
        if x.startswith("v_cmp") and " vcc," in x:
            if lastv: errs.append(f"vcc overwritten before use: {lastv} / {x}")
            lastv = x
        if "vcc" in x and not x.startswith("v_cmp"): lastv = None
        if x.startswith(("s_cselect", "s_cbranch_scc")) and not (scc or "").startswith("s_cmp"): errs.append(f"SCC for [{x}] comes from [{scc}]")
        if x.startswith("s_addc") and not (scc or "").startswith("s_add_u32"): errs.append(f"SCC for [{x}] comes from [{scc}]")
        if x.startswith("s_addc") and scc and scc.split()[1].rstrip(",")[1:] != str(int(x.split()[1].rstrip(",")[1:]) - 1): errs.append(f"carry for [{x}] comes from [{scc}]")
        if x.startswith(SW): scc = x
    return errs

def diag_tail(E, cfg):
    if cfg.get("gspin"): E("KF_hold:\ns_sleep 16\ns_memrealtime s[44:45]\ns_waitcnt lgkmcnt(0)\ns_sub_u32 s44, s44, s86\ns_cmp_lt_u32 s44, 9000\ns_cbranch_scc1 KF_hold")
    stamp_flush(E, cfg, 62, 0, S_W)
    if cfg.get("gspin"):
        ia, opa, ib, opb, mult = cfg["gspin"]
        E("s_waitcnt vmcnt(0)\nbuffer_wbl2 sc1\ns_waitcnt vmcnt(0)\nv_mov_b32 v1, 0\nv_mov_b32 v10, 1\ns_mov_b64 exec, 1\nglobal_atomic_add v11, v1, v10, s[60:61] offset:60 sc0 sc1\ns_waitcnt vmcnt(0)\ns_mov_b64 exec, -1")
        E("v_readfirstlane_b32 s40, v11\ns_cmp_lg_u32 s40, 1023\ns_cbranch_scc1 KF_end\nv_lshlrev_b32 v1, 5, v0")
        for k in range(16):
            E(f"global_load_dword v{32+k}, v1, s[82:83] offset:{4*ia} sc1\nglobal_load_dword v{48+k}, v1, s[82:83] offset:{4*ib} sc1\nv_add_u32 v1, 2048, v1")
        E("s_waitcnt vmcnt(0)")
        for k in range(1, 16): E(f"v_{opa}_u32 v32, v32, v{32+k}\nv_{opb}_u32 v48, v48, v{48+k}")
        E("s_nop 1\nv_readlane_b32 s40, v32, 0\nv_readlane_b32 s41, v48, 0")
        for l in range(1, 64): E(f"v_readlane_b32 s42, v32, {l}\nv_readlane_b32 s43, v48, {l}\ns_nop 0\ns_{opa}_u32 s40, s40, s42\ns_{opb}_u32 s41, s41, s43")
        E(f"s_sub_u32 s40, s41, s40\nv_mov_b32 v1, 0\nv_mov_b32 v10, s40\nglobal_store_dword v1, v10, s[60:61] offset:56\ns_memrealtime s[42:43]\ns_mul_i32 s40, s40, {mult}\ns_min_u32 s40, s40, 100000\ns_waitcnt lgkmcnt(0)")
        E("KF_spin:\ns_memrealtime s[44:45]\ns_waitcnt lgkmcnt(0)\ns_sub_u32 s44, s44, s42\ns_cmp_lt_u32 s44, s40\ns_cbranch_scc1 KF_spin")

def acc2(i, jt): return 32 + (i * 4 + jt) * 4
def acc1(i, jt): return ("v", 160 + (i * 4 + jt) * 4) if i < 6 else ("a", ((i - 6) * 4 + jt) * 4)
def accs(st, i, jt):
    if st >= ND: return vr(acc2(i, jt), 4)
    k, r = acc1(i, jt); return vr(r, 4, k)
def wf(st, jt, s): return A_WF + (st & 1) * 32 + (jt * 2 + s) * 4
def af(k, s): return A_AF + (k & 3) * 8 + s * 4
def dma2(st, va=V_A, vd=V_D):
    b = st % 3
    if st >= ND:
        c = st - ND
        sa, sw = f"s_add_u32 s{S_SA}, s{S_AC}, {((c&1)*128 + (c>>1)*8)*32768}", f"s_add_u32 s{S_SW}, s{S_WC}, {(c>>1)*128}"
        R, V = (RC1 if c & 1 else RC0), V_C
    else:
        oc, row = (28 * (st & 3) + 2 * (st >> 2), 224 * (st & 3) + 16 * (st >> 2)) if st < 12 else (56 * (st - 12), 448 * (st - 12))
        sa, sw = f"s_add_u32 s{S_SA}, s{S_AD}, {oc*32768}", f"s_add_u32 s{S_SW}, s{S_WD}, {row*2048}"
        R, V = RWD, vd
    w = [sw, f"s_add_u32 m0, s{S_MW2}, {b*16384}"] + [f"buffer_load_dwordx4 v{V+j}, s[{R}:{R+3}], s{S_SW} offen offset:{j*1024} lds @st{st}" for j in range(4)]
    a = [sa]
    for j in range(8):
        if j & 3 == 0: a.append(f"s_add_u32 m0, s{S_MA}, {b*32768 + (j>>2)*4096}")
        a.append(f"buffer_load_dwordx4 v{va + (j>>2)*2 + (j&1)}, s[{RWS}:{RWS+3}], s{S_SA} offen offset:{(j&3)*1024} lds @st{st}")
    return w, a
def plain(ops):
    return [x + ("\ns_nop 0" if " m0," in x else "") for x in ops]
def rd_a(st, i, k):
    b = st % 3
    return [(f"ds_read_b128 {ar(af(k,s),4)}, v{V_RA + (b==2)} offset:{(b&1)*32768 + s*16384 + i*256}", ("a", k & 3, s)) for s in (0, 1)]
def rd_w(st, jt):
    b = st % 3; out = []
    for s in (0, 1):
        r = wf(st, jt, s)
        if st >= ND: out.append((f"ds_read_b128 {ar(r,4)}, v{V_RC+s} offset:{b*16384 + jt*2048}", ("w2", st & 1, jt, s, 0)))
        else: out += [(f"ds_read_b64_tr_b16 {ar(r+2*h,2)}, v{V_RD+jt} offset:{b*16384 + s*8192 + h*1024}", ("w2", st & 1, jt, s, h)) for h in (0, 1)]
    return out
def group2(S, st, i, k):
    for jt in range(4):
        for s in (0, 1):
            a = accs(st, i, jt)
            S.mfma(f"{MF} {a}, {ar(wf(st,jt,s),4)}, {ar(af(k,s),4)}, {'0' if st in (0, ND) and s == 0 else a}", [("a", k & 3, s), ("w2", st & 1, jt, s, 0), ("w2", st & 1, jt, s, 1)])

def epilogue1(E, cfg):
    LAM, L16, SA = 2, 4, 10
    re_ = lambda n: 32 + 2 * n
    im_ = lambda n: 64 + 2 * n
    unstash(E, LAM, A_LAM); unstash(E, L16, A_L16)
    E("v_and_b32 v25, 15, v0\nv_lshrrev_b32 v26, 4, v0")
    hr, hi = re_(0), im_(0)
    for n in range(1, 16):
        nr, ni = (6, 8) if n & 1 else (12, 14)
        E(pkf(nr, hr, LAM, re_(n), 0)); E(pkf(ni, hi, LAM, im_(n), 0))
        E(pkf(nr, hi, LAM, nr, 1, True)); E(pkf(ni, hr, LAM, ni, 1))
        hr, hi = nr, ni
    E(f"v_mov_b32 v{SA}, v{hr}\nv_mov_b32 v{SA+1}, v{hi}")
    cfma(E, 12, 13, L16, L16 + 1, hr, hi, hr + 1, hi + 1)
    E(f"s_lshl_b32 s{T0}, s{S_WM}, 10\ns_lshl_b32 s{T1}, s{S_WN}, 7\ns_add_u32 s{T0}, s{T0}, s{T1}\ns_add_u32 s{T0}, s{T0}, {SCR}")
    E(f"v_lshlrev_b32 v27, 8, v26\nv_lshl_add_u32 v27, v25, 3, v27\nv_add_u32 v27, s{T0}, v27\nds_write_b64 v27, v[12:13]")
    E(f"s_lshl_b32 s{T0}, s{S_MT}, 12\ns_lshl_b32 s{T1}, s{S_WM}, 11\ns_add_u32 s70, s{T0}, s{T1}\ns_add_u32 s70, s70, {ACT_OFF}")
    E(f"s_mul_i32 s{T0}, s{S_NT}, 14\ns_mul_i32 s{T1}, s{S_WN}, 7\ns_add_u32 s{T0}, s{T0}, s{T1}\ns_add_u32 s{T0}, s{T0}, 256\ns_lshl_b32 s{T0}, s{T0}, 15\ns_add_u32 s71, s70, s{T0}")
    E("v_lshrrev_b32 v28, 1, v26\nv_and_b32 v29, 1, v26\nv_lshlrev_b32 v1, 15, v28\nv_lshl_add_u32 v1, v29, 8, v1\nv_lshl_add_u32 v1, v25, 4, v1\nv_add_u32 v16, s71, v1")
    E(f"v_lshl_add_u32 v1, v29, 1, v28\nv_lshlrev_b32 v1, 8, v1\nv_lshl_add_u32 v1, v25, 4, v1\nv_add_u32 v1, s71, v1\nv_add_u32 v17, {6*32768}, v1")
    E(f"s_lshl_b32 s{T0}, s{S_NT}, 2\ns_lshl_b32 s{T1}, s{S_WN}, 1\ns_add_u32 s{T0}, s{T0}, s{T1}\ns_lshl_b32 s{T0}, s{T0}, 15\ns_add_u32 s72, s70, s{T0}")
    E("v_lshl_add_u32 v1, v28, 7, v29\nv_lshlrev_b32 v1, 15, v1\nv_lshl_add_u32 v1, v25, 4, v1\nv_add_u32 v18, s72, v1")
    E(f"v_mov_b32 v30, {hexf(-2*0.7978845608028654*LOG2E)}\nv_mov_b32 v31, {hexf(-2*0.7978845608028654*LOG2E*0.044715)}\nv_mov_b32 v19, s{S_TAG}")
    E(f"s_lshl_b32 s{T0}, s{S_NB}, 4\ns_lshl_b32 s{T1}, s{S_W}, 2\ns_add_u32 s{T0}, s{T0}, s{T1}\nv_and_b32 v27, 7, v0\nv_lshlrev_b32 v27, 9, v27\nv_add_u32 v24, s{T0}, v27")
    E("s_waitcnt lgkmcnt(0)\ns_barrier")
    E(f"s_cmp_eq_u32 s{S_MT}, 7\ns_cselect_b32 s73, 1, s{S_W}\ns_cmp_lg_u32 s73, 0\ns_cbranch_scc1 KF_nopub")
    E(f"v_and_b32 v1, 31, v0\nv_lshlrev_b32 v1, 3, v1\nv_add_u32 v27, {SCR}, v1")
    slot = [12, 14, 20, 22]
    E("ds_read_b64 v[6:7], v27")
    for s in range(1, 5): E(f"ds_read_b64 {vr(slot[s-1],2)}, v27 offset:{256*s}")
    unstash(E, 28, A_L32P)
    a, b = 6, 8
    for s in range(1, 8):
        E(f"s_waitcnt lgkmcnt({min(3, 7-s)})")
        cur = slot[(s - 1) & 3]
        cfma(E, b, b + 1, 28, 29, a, a + 1, cur, cur + 1); a, b = b, a
        if s + 4 < 8: E(f"ds_read_b64 {vr(cur,2)}, v27 offset:{256*(s+4)}")
    E(f"s_lshl_b32 s{T0}, s{S_MT}, 14\ns_lshl_b32 s{T1}, s{S_NT}, 9\ns_add_u32 s{T0}, s{T0}, s{T1}")
    E(f"v_mov_b32 v12, v{a}\nv_mov_b32 v13, s{S_TAG}\nv_mov_b32 v14, v{a+1}\nv_mov_b32 v15, s{S_TAG}\nv_lshlrev_b32 v1, 1, v1")
    E(f"buffer_store_dwordx4 v[12:15], v1, s[{RAGG}:{RAGG+3}], s{T0} offen sc1\ns_nop 1")
    E("KF_nopub:")
    pt(E, cfg, "pub")
    def setup2():
        srd(E, RWD, 56, 3584 * 2048); srd(E, RC0, 46, 1024 * 2048); srd(E, RC1, 48, 1024 * 2048)
        E(f"s_lshl_b32 s{S_AC}, s{S_KQ}, 20\ns_mul_i32 s{S_AD}, s{S_KQ}, {112*32768}\ns_add_u32 s{S_AD}, s{S_AD}, {256*32768}")
        E(f"s_lshl_b32 s{S_WC}, s{S_KQ}, 9\ns_mul_i32 s{S_WD}, s{S_KQ}, {896*2048}")
        E(f"s_lshl_b32 s{S_MA}, s{S_W}, 13\ns_lshl_b32 s{S_MW2}, s{S_W}, 12\ns_add_u32 s{S_MW2}, s{S_MW2}, {WOFF}")
        E(f"s_sub_u32 s{S_RECV}, s{S_FILL}, 12288\ns_mul_i32 s{T1}, s{S_KQ}, 49152\ns_sub_u32 s{T0}, s{S_RECV}, s{T1}")
        for sp in range(3): E(f"s_xor_b32 s{T1}, s{S_KXR}, {sp}\ns_mul_i32 s{T1}, s{T1}, 49152\ns_add_u32 s{T1}, s{T1}, {(2-sp)*4096}\ns_add_u32 s{S_SEND+sp}, s{T0}, s{T1}")
        E(f"s_lshl_b32 s{T0}, s{S_MT}, 2\ns_add_u32 s{T0}, s{T0}, s{S_KQ}\ns_lshl_b32 s{T0}, s{T0}, 12\ns_add_u32 s{S_FGRP}, s{T0}, {FLG_OFF}")
        E(f"s_lshl_b32 s{T0}, s{S_NB}, 9\ns_add_u32 s{S_FOWN}, s{S_FGRP}, s{T0}")
        E(f"v_and_b32 v1, 3, v0\nv_min_u32 v1, 2, v1\nv_add_u32 v28, 1, v1\nv_xor_b32 v28, s{S_KQ}, v28\nv_subrev_u32 v28, s{S_KQ}, v28\nv_lshlrev_b32 v28, 12, v28\nv_lshl_add_u32 v28, v1, 4, v28")
        E(f"s_lshl_b32 s{T1}, s{S_W}, 2\ns_add_u32 s{T0}, s{T0}, s{T1}\ns_add_u32 s{T0}, s{T0}, 384\nv_add_u32 v28, s{T0}, v28\nv_and_b32 v1, 8, v0\nv_cmp_eq_u32 vcc, 0, v1")
        E(f"v_and_b32 v143, 31, v0\nv_lshlrev_b32 v143, 2, v143\nv_cndmask_b32 v28, v28, v24, vcc\nv_add_u32 v29, s{S_FGRP}, v28")
        E(f"s_lshl_b32 s{S_GSRC}, s{S_MT}, 11\ns_lshl_b32 s{T1}, s{S_WN}, 10\ns_add_u32 s{S_GSRC}, s{S_GSRC}, s{T1}\ns_add_u32 s{S_GSRC}, s{S_GSRC}, {G_OFF}\ns_add_u32 s{S_GLDS}, s{T1}, {GLDS}")
        E(f"s_lshl_b32 s{T0}, s{S_KXR}, 1\ns_and_b32 s{T1}, s{T0}, 2\ns_and_b32 s{T2}, s{T0}, 4")
        E(f"v_xor_b32 v1, s{T1}, v26\nv_lshlrev_b32 v1, 8, v1\nv_lshl_add_u32 v1, v25, 4, v1")
        E(f"s_mul_i32 s{T0}, s{S_W}, {7*32768}\ns_lshl_b32 s{T1}, s{S_MT}, 12\ns_add_u32 s{T0}, s{T0}, s{T1}\ns_add_u32 s{T0}, s{T0}, {ACT_OFF}\ns_lshl_b32 s{T2}, s{T2}, 8")
        E(f"s_add_u32 s{T1}, s{T0}, s{T2}\ns_sub_u32 s{T3}, s{T0}, s{T2}")
        E(f"v_add_u32 v{H_A}, s{T1}, v1\nv_add_u32 v{H_A+1}, s{T3}, v1\nv_add_u32 v{H_A+2}, 0x8000, v{H_A}\nv_add_u32 v{H_A+3}, 0x8000, v{H_A+1}")
        E(f"v_lshlrev_b32 v1, 1, v26\nv_xor_b32 v1, v1, v25\nv_lshlrev_b32 v1, 4, v1\ns_mul_i32 s{T0}, s{S_W}, 56\nv_add_u32 v28, s{T0}, v26\nv_lshlrev_b32 v28, 11, v28")
        E(f"s_lshl_b32 s{T0}, s{S_NB}, 8\nv_add_u32 v28, s{T0}, v28\nv_add_u32 v{H_D}, v28, v1\nv_add_u32 v{H_D+1}, {4*2048 - 1024}, v{H_D}")
        E(f"v_xor_b32 v1, 128, v1\nv_add_u32 v{H_D+2}, v28, v1\nv_add_u32 v{H_D+2}, {8*2048 - 2048}, v{H_D+2}\nv_add_u32 v{H_D+3}, {4*2048 - 1024}, v{H_D+2}")
    def store_quad(R, voff, soff, imm, tag):
        E(f"buffer_store_dwordx4 v[{R}:{R+3}], v{voff}, s[{RWS}:{RWS+3}], {soff} offen offset:{imm} {cfg.get('act_aux', 'sc1')} @{tag}")
    POLL = lambda off: f"buffer_load_dword v27, v143, s[{RWS}:{RWS+3}], s{S_FOWN} offen offset:{off} sc1"
    wq = [x for st in range(3) for x in plain(dma2(st, H_A, H_D)[0])]
    def some(q, n):
        while q and n:
            x = q.pop(0); E(x); n -= x.startswith("buffer")
    aq = [x for st in range(3) for x in plain(dma2(st, H_A, H_D)[1])]
    AG = 192
    agg = [f"buffer_load_dwordx4 v[{AG+4*k}:{AG+4*k+3}], v{136+k}, s[{RAGG}:{RAGG+3}], 0 offen sc1" for k in range(7)]
    for j in range(3):
        G = 96 + 64 * j; U = G + 32
        if j == 2:
            U = 96
            for r in range(32): E(f"v_accvgpr_read_b32 v{U+r}, a{r}")
        E(f"s_mov_b32 s74, {2*j*32768}")
        for i in range(0, 8, 2):
            R = G + 4 * i
            R_ = Rec(); gelu_quads(R_, [(G + 4 * i + 2 * k, U + 4 * i + 2 * k) for k in range(4)])
            for k, x in enumerate(R_.L):
                E(x)
                if j >= 1 and k in (11, 27): some(wq, 1)
            for k in range(4): E(f"v_cvt_pk_bf16_f32 v{R+k}, v{U+4*i+2*k}, v{U+4*i+2*k+1}")
            E(f"s_nop 1\nv_permlane16_swap_b32 v{R}, v{R+2}\nv_permlane16_swap_b32 v{R+1}, v{R+3}")
            if j == 1 and i == cfg.get("f1_at", 2):
                pt(E, cfg, "f1pre")
                E(f"s_waitcnt vmcnt({E.vm('glu0')})")
                pt(E, cfg, "f1post")
                E(f"buffer_store_dword v19, v29, s[{RWS}:{RWS+3}], 0 offen sc1")
            store_quad(R, 16, "s74", i * 256, f"glu{j}")
        if j == 0: pt(E, cfg, "p0"); setup2(); code_touch(E, "KF_k2")
        if j == 1: pt(E, cfg, "p1")
    pt(E, cfg, "glu")
    E(f"s_sub_u32 s{T0}, s{S_MT}, 7\ns_lshl_b32 s{T0}, s{T0}, 14\ns_lshl_b32 s{T1}, s{S_NT}, 9\ns_add_u32 s{T0}, s{T0}, s{T1}\ns_lshl_b32 s{T1}, s{S_WN}, 8\ns_add_u32 s{T0}, s{T0}, s{T1}")
    E(f"v_lshlrev_b32 v136, 4, v25\nv_add_u32 v136, s{T0}, v136")
    for k in range(1, 7): E(f"v_add_u32 v{136+k}, {0x4000*k}, v136")
    E(POLL(0) + " @poll")
    M = 96
    for r in range(32):
        E(f"v_accvgpr_read_b32 v{M+r}, a{32+r}")
        if r % 4 == 3 and r < 28: E(agg[r >> 2] + " @agg")
    for i in range(0, 8, 2):
        for r in range(4): E(f"v_permlane32_swap_b32 v{M+4*i+r}, v{M+4*i+4+r}")
    for i in (0, 4):
        R = M + 4 * i
        q = [(M + 4 * ii + 2 * k, M + 4 * ii + 4 + 2 * k) for ii in (i, i + 2) for k in (0, 1)]
        gelu_quads(E, q)
        for k in range(4): E(f"v_cvt_pk_bf16_f32 v{R+k}, v{q[k][1]}, v{q[k][1]+1}")
        E(f"s_nop 1\nv_permlane16_swap_b32 v{R}, v{R+2}\nv_permlane16_swap_b32 v{R+1}, v{R+3}")
        store_quad(R, 17, "0", i * 256, "glu3")
    pt(E, cfg, "mix")
    E(f"s_waitcnt vmcnt({E.vm('poll')})\nv_cmp_ne_u32 vcc, s{S_TAG}, v27")
    SG = 144
    E(f"s_lshl_b32 s{T1}, s{S_WN}, 7\ns_add_u32 s{T1}, s{T1}, {SCR}\nv_lshlrev_b32 v1, 3, v25\nv_add_u32 v1, s{T1}, v1")
    for s in range(7): E(f"ds_read_b64 v[{SG+2*s}:{SG+2*s+1}], v1 offset:{256*s}")
    E(cold_poll("KF_f1", POLL(0), f"v_cmp_ne_u32 vcc, s{S_TAG}, v27"))
    pt(E, cfg, "f1ok")
    B = Rec()
    unstash(B, 20, A_L256); unstash(B, 22, A_L32)
    B(f"s_lshl_b32 s{T1}, s{S_WM}, 2\nv_add_u32 v28, s{T1}, v26")
    B(f"s_mul_i32 s{T1}, s{S_W}, 3072\ns_add_u32 s{T1}, s{T1}, {TRS}\nv_lshlrev_b32 v27, 7, v26\nv_lshl_add_u32 v27, v25, 3, v27\nv_add_u32 v14, s{T1}, v27")
    B("v_lshrrev_b32 v27, 5, v0\nv_lshlrev_b32 v27, 9, v27\nv_and_b32 v29, 3, v0\nv_lshl_add_u32 v27, v29, 7, v27")
    B(f"v_and_b32 v29, 1, v26\nv_lshl_add_u32 v27, v29, 6, v27\nv_bfe_u32 v29, v0, 2, 2\nv_lshl_add_u32 v27, v29, 3, v27\nv_add_u32 v15, s{T1}, v27")
    chk = "v_mov_b32 v164, 0\n" + "\n".join(f"s_cmp_gt_u32 s{S_MT}, {6-k}|s_cselect_b32 s{T3}, -1, 0\nv_xor_b32 v165, s{S_TAG}, v{AG+4*k+1}\nv_xor_b32 v166, s{S_TAG}, v{AG+4*k+3}\n"
          f"v_or_b32 v165, v165, v166\nv_and_or_b32 v164, v165, s{T3}, v164" for k in range(7)) + "\nv_cmp_ne_u32 vcc, 0, v164"
    B("@agg\n" + chk + "\ns_nop 3")
    B(cold_poll("KF_ag", "\n".join(agg), chk.replace("|", "\n")).replace("\n", "|"))
    B("s_waitcnt lgkmcnt(0)")
    srd(B, ROUT, 96, 2048 * 4096)
    B(f"v_mov_b32 v8, v{AG}\nv_mov_b32 v9, v{AG+2}")
    a, b = 8, 6
    for k in range(1, 7):
        cfma(B, b, b + 1, 20, 21, a, a + 1, AG + 4 * k, AG + 4 * k + 2); a, b = b, a
    CR, CI = 160, 162
    B(f"v_mov_b32 v{CR}, v{a}\nv_mov_b32 v{CI}, v{a+1}")
    for s in range(7):
        B(f"v_cmp_lt_u32 vcc, {s}, v28")
        cfma(B, b, b + 1, 22, 23, a, a + 1, SG + 2 * s, SG + 2 * s + 1); a, b = b, a
        B(f"v_cndmask_b32 v{CR}, v{CR}, v{a}, vcc\nv_cndmask_b32 v{CI}, v{CI}, v{a+1}, vcc")
    cfma(B, CR + 1, CI + 1, L16, L16 + 1, CR, CI, SA, SA + 1)
    unstash(B, 20, A_C2)
    B("@f2")
    hr, hi = CR, CI
    for n in range(16):
        B(pkf(re_(n), hr, LAM, re_(n), 0)); B(pkf(im_(n), hi, LAM, im_(n), 0))
        B(pkf(re_(n), hi, LAM, re_(n), 1, True)); B(pkf(im_(n), hr, LAM, im_(n), 1))
        hr, hi = re_(n), im_(n)
    step = cfg.get("a_step", 9)
    for k, x in enumerate(B.L):
        if k % step == 0: some(aq, 1)
        if x == "@agg": E(f"s_waitcnt vmcnt({E.vm('agg')})")
        elif x == "@f2": E(f"s_waitcnt vmcnt({E.vm('glu3')})\nbuffer_store_dword v19, v24, s[{RWS}:{RWS+3}], s{S_FGRP} offen offset:128 sc1")
        else: E(x.replace("|", "\n"))
    some(aq, 99)
    assert not aq and not wq
    pt(E, cfg, "f2")
    def trd(i):
        R = 192 + 4 * i
        E(f"ds_read_b64_tr_b16 v[{R}:{R+1}], v15 offset:{(i%3)*1024}\nds_read_b64_tr_b16 v[{R+2}:{R+3}], v15 offset:{(i%3)*1024+32}")
    for i in range(10):
        if i < 8:
            T = 96 + 8 * (i & 1); R = 224 + 4 * i
            for k in (0, 1):
                n = 2 * i + k
                E(pkm(T + 4 * k, re_(n), 20, 0)); E(pkm(T + 4 * k + 2, im_(n), 20, 0, True))
                E(pkf(T + 4 * k, im_(n), 20, T + 4 * k, 1, True)); E(pkf(T + 4 * k + 2, re_(n), 20, T + 4 * k + 2, 1, True))
            for k in (0, 1):
                E(f"v_cvt_pk_bf16_f32 v{R+k}, v{T+4*k}, v{T+4*k+1}\nv_cvt_pk_bf16_f32 v{R+2+k}, v{T+4*k+2}, v{T+4*k+3}")
        if i == 8: setup2b(E)
        if i >= 2:
            E(f"s_waitcnt lgkmcnt({4 if i < 9 else 0})")
            store_quad(192 + 4 * (i - 2), 18 if i < 8 else Q_ST, "0", (i - 2) * 256, "h")
        if i < 8:
            E(f"ds_write_b64 v14, v[{R}:{R+1}] offset:{(i%3)*1024}\nds_write_b64 v14, v[{R+2}:{R+3}] offset:{(i%3)*1024+512}")
            trd(i)
    pt(E, cfg, "e1end")

def code_touch(E, label, n=[0]):
    n[0] += 1
    R = Rec()
    R(f"s_getpc_b64 s[76:77]\nKF_ct{n[0]}:\ns_add_u32 s76, s76, {label}-KF_ct{n[0]}")
    out = ["\n".join(R.L), "s_addc_u32 s77, s77, 0", f"s_lshl_b32 s78, s{S_W}, 4", "v_and_b32 v1, 15, v0", "v_add_lshl_u32 v1, v1, s78, 7", f"v_min_u32 v1, KF_last-({label}), v1", "global_load_dword a255, v1, s[76:77]"]
    if E is None: return out
    for x in out: E(x)

Q_ST, Q_TAG, Q_FLG = 136, 137, 138
def setup2b(E):
    for d, v in ((Q_ST, 18), (Q_TAG, 19), (Q_FLG, 24)): E(f"v_mov_b32 v{d}, v{v}")
    for k in range(4): E(f"v_mov_b32 v{V_A+k}, v{H_A+k}\nv_mov_b32 v{V_D+k}, v{H_D+k}")
    E("v_mov_b32 v30, v26\nv_mov_b32 v31, v25\nv_mov_b32 v27, v143\nv_lshlrev_b32 v22, 4, v0")
    E(f"s_lshl_b32 s{T0}, s{S_WM}, 11\nv_lshlrev_b32 v1, 12, v30\nv_lshl_add_u32 v1, v31, 4, v1\nv_add_u32 v{V_RA}, s{T0}, v1\nv_add_u32 v{V_RA+1}, 0x10000, v{V_RA}")
    E("v_bfe_u32 v1, v0, 2, 2\nv_lshl_add_u32 v28, v30, 3, v1\nv_lshlrev_b32 v28, 8, v28\nv_and_b32 v29, 1, v0\nv_lshl_add_u32 v28, v29, 3, v28")
    E(f"v_add_u32 v28, {WOFF}, v28\nv_and_b32 v29, 1, v30\nv_lshl_add_u32 v1, v29, 2, v1\nv_lshlrev_b32 v1, 1, v1")
    E(f"v_bfe_u32 v29, v0, 1, 1\ns_lshl_b32 s{T0}, s{S_WN}, 3\nv_add_u32 v29, s{T0}, v29\nv_xor_b32 v1, v1, v29")
    for jt in range(4): E(f"v_xor_b32 v29, {2*jt}, v1\nv_lshl_add_u32 v{V_RD+jt}, v29, 4, v28")

def later_setup():
    E = Rec()
    E("v_lshrrev_b32 v28, 3, v0\nv_and_b32 v29, 7, v0\nv_lshrrev_b32 v1, 1, v28\nv_xor_b32 v29, v29, v1\nv_lshlrev_b32 v29, 4, v29")
    E(f"s_lshl_b32 s{T0}, s{S_NB}, 7\ns_lshl_b32 s{T1}, s{S_W}, 5\ns_add_u32 s{T0}, s{T0}, s{T1}\nv_add_u32 v28, s{T0}, v28\nv_lshlrev_b32 v28, 11, v28")
    E(f"v_add_u32 v{V_C}, v28, v29\nv_xor_b32 v29, 64, v29\nv_add_u32 v{V_C+1}, v28, v29\nv_add_u32 v{V_C+1}, {8*2048 - 1024}, v{V_C+1}")
    E(f"v_add_u32 v{V_C+2}, {16*2048 - 2048}, v{V_C}\nv_add_u32 v{V_C+3}, {16*2048 - 2048}, v{V_C+1}")
    E(f"v_lshrrev_b32 v1, 1, v31\nv_xor_b32 v1, v1, v30\nv_lshlrev_b32 v1, 4, v1\nv_lshl_add_u32 v1, v31, 7, v1\ns_lshl_b32 s{T0}, s{S_WN}, 13\ns_add_u32 s{T0}, s{T0}, {WOFF}")
    E(f"v_add_u32 v{V_RC}, s{T0}, v1\nv_xor_b32 v{V_RC+1}, 64, v{V_RC}")
    E("v_lshrrev_b32 v1, 2, v31\nv_lshlrev_b32 v1, 5, v1\nv_and_b32 v28, 1, v31\nv_lshl_add_u32 v1, v28, 4, v1\nv_bfe_u32 v28, v31, 1, 1\nv_add_u32 v1, v1, v28")
    E(f"s_lshl_b32 s{T0}, s{S_MT}, 8\ns_lshl_b32 s{T1}, s{S_WM}, 7\ns_add_u32 s{T0}, s{T0}, s{T1}\ns_lshl_b32 s{T1}, s{S_KQ}, 2\ns_add_u32 s{T0}, s{T0}, s{T1}\nv_add_u32 v1, s{T0}, v1")
    E(f"s_lshl_b32 s{T0}, s{S_NB}, 7\ns_lshl_b32 s{T1}, s{S_WN}, 6\ns_add_u32 s{T0}, s{T0}, s{T1}\nv_lshl_add_u32 v28, v30, 2, s{T0}")
    E("v_accvgpr_write_b32 a169, v28\nv_lshl_add_u32 v1, v1, 10, v28\nv_accvgpr_write_b32 a168, v1")
    E(f"s_lshl_b32 s{T0}, s{S_WM}, 10\ns_add_u32 s{T0}, s{T0}, {GLDS}\nv_lshlrev_b32 v23, 3, v31\nv_add_u32 v23, s{T0}, v23\ns_lshl_b32 s{T1}, s{S_KXR}, 8\nv_xor_b32 v23, s{T1}, v23")
    for k in range(1, 4): E(f"v_xor_b32 v{23+k}, {256*k}, v23")
    E("v_min_u32 v27, 43, v0\nv_lshlrev_b32 v27, 2, v27")
    return E.L

def gemm2(E, cfg):
    E.age = cfg.get("age", 6)
    every = cfg.get("dma2_every", 4)
    F2POLL = f"buffer_load_dword v29, v27, s[{RWS}:{RWS+3}], s{S_FOWN} offen offset:128 sc1"
    E(f"s_waitcnt vmcnt({E.vm('st0')})\ns_barrier")
    E("KF_k2:")
    pt(E, cfg, "k2start")
    segstamp_init(E, cfg, 1, S_W)
    def add_dma(S, st, end=58):
        w, a = dma2(st); prev = ""
        for t in w + a:
            S.add(t, 0, end, "dma", 1 if (not t.startswith("buffer") or " m0," in prev) else every); prev = t
    for it in rd_a(0, 0, 0) + rd_w(0, 0) + rd_w(0, 1) + rd_a(0, 1, 1) + rd_w(0, 2) + rd_w(0, 3) + rd_a(0, 2, 2): E.ds(*it)
    S = Stream()
    for i in range(5): group2(S, 0, i, i)
    for i in range(3, 8):
        for it in rd_a(0, i, i): S.ds(*it, 8 * (i - 3), min(8 * i, 40) - LAT)
    S.add(F2POLL + " @f2", 24, 30)
    S.emit(E)
    scale = []
    for i in range(8): scale += [f"v_accvgpr_read_b32 v{V_G+i}, a{A_G+2*i}", f"v_and_b32 v{V_G+i}, 0xffff0000, v{V_G+i}"]
    for i in range(8):
        for jt in range(4):
            k, r = acc1(i, jt)
            for e in range(4):
                if k == "v": scale.append(f"v_mul_f32 v{r+e}, v{V_G+i}, v{r+e}")
                else: scale += [f"v_accvgpr_read_b32 v30, a{r+e}", f"v_mul_f32 v30, v{V_G+i}, v30", f"v_accvgpr_write_b32 a{r+e}, v30"]
    F3POLL = f"buffer_load_dword v28, v27, s[{RWS}:{RWS+3}], s{S_FOWN} offen offset:256 sc1"
    gtest = ["v_mov_b32 v1, 0"] + [x for i in range(8) for x in (f"v_accvgpr_read_b32 v30, a{A_G+2*i+1}", f"v_xor_b32 v30, s{S_TAG}, v30", "v_or_b32 v1, v1, v30")] + ["v_cmp_ne_u32 vcc, 0, v1"]
    greload = f"s_lshl_b32 s{T3}, s{S_MT}, 11\ns_add_u32 s{T3}, s{T3}, {G_OFF - GLDS}\n" + "\n".join(
        f"buffer_load_dwordx2 {ar(A_G+2*i,2)}, v{23+(i>>1)}, s[{RWS}:{RWS+3}], s{T3} offen offset:{(i&1)*128} sc1" for i in range(8))
    ls = later_setup()
    per = -(-len(scale) // 6)
    for st in range(1, NST - 2):
        S = Stream()
        for k, (s_, i) in enumerate([(st - 1, 5), (st - 1, 6), (st - 1, 7)] + [(st, i) for i in range(5)]): group2(S, s_, i, i)
        for jt in range(4):
            for it in rd_w(st, jt): S.ds(*it, 0, 24 + 2 * jt - LAT)
        for i in range(8):
            for it in rd_a(st, i, i): S.ds(*it, 8 * i, min(24 + 8 * i, 64) - LAT)
        if st == 2:
            S.at(0, lambda E: E(f"s_waitcnt vmcnt({E.vm('f2')})\nv_cmp_ne_u32 vcc, s{S_TAG}, v29"))
            S.at(2, cold_poll("KF_f2", F2POLL, f"v_cmp_ne_u32 vcc, s{S_TAG}, v29"))
            S.add("s_nop 0", 3, 58, "dma", 1)
        if st == 10:
            for t in lines([f"s_mul_i32 s{T0}, s{S_W}, {7*32768}\ns_add_u32 s{T0}, s{T0}, {6*32768}\ns_mul_i32 s{T1}, s{S_W}, {56*2048}\ns_add_u32 s{T1}, s{T1}, {48*2048}\ns_add_u32 s{T3}, s{T1}, {48*2048}",
                            f"v_add_u32 v{V_D}, s{T1}, v{V_D}\nv_add_u32 v{V_D+1}, s{T1}, v{V_D+1}\nv_add_u32 v{V_D+2}, s{T3}, v{V_D+2}\nv_add_u32 v{V_D+3}, s{T3}, v{V_D+3}",
                            f"v_add_u32 v{V_A}, s{T0}, v{V_A}\nv_add_u32 v{V_A+1}, s{T0}, v{V_A+1}\nv_add_u32 v{V_A+2}, {7*32768}, v{V_A}\nv_add_u32 v{V_A+3}, {7*32768}, v{V_A+1}"]): S.add(t, 0, 58, "dma", 0)
        if st == 12:
            for t in lines([f"s_mul_i32 s{T0}, s{S_W}, {12*32768}\ns_add_u32 s{T0}, s{T0}, {6*32768}",
                            f"v_subrev_u32 v{V_A}, s{T0}, v{V_A}\nv_subrev_u32 v{V_A+1}, s{T0}, v{V_A+1}\nv_add_u32 v{V_A+2}, 0x8000, v{V_A}\nv_add_u32 v{V_A+3}, 0x8000, v{V_A+1}"]): S.add(t, 0, 58, "dma", 0)
        add_dma(S, st + 2, 60 if st < NST - 3 else 44)
        if st == 3: S.add(f"buffer_store_dword v{Q_TAG}, v{Q_FLG}, s[{RWS}:{RWS+3}], s{S_FGRP} offen offset:256 sc1", 0, 63, "dma", 2)
        if st in (3, 4):
            for t in (ls[:len(ls)//2] if st == 3 else ls[len(ls)//2:]): S.add(t, 0, 63, "extra", 0)
        if st == 5: S.add(f"s_mov_b32 m0, s{S_GLDS}", 0, 62, "dma", 1); S.add(f"buffer_load_dwordx4 v22, s[{RWS}:{RWS+3}], s{S_GSRC} offen sc1 lds", 0, 63, "dma", 1)
        if st == 7: S.add(F3POLL, 0, 63, "dma", 2)
        if st == 8:
            for i in range(8): S.ds(f"ds_read_b64 {ar(A_G+2*i,2)}, v{23 + (i>>1)} offset:{(i&1)*128}", ("g", i), 24, 56)
        if st == 9:
            for t in gtest: S.add(t, 0, 58, "extra", 0)
            S.add(cold_poll("KF_g", greload, "\n".join(gtest)), 0, 63, "extra", 3)
        if st == 11:
            S.add(f"v_cmp_ne_u32 vcc, s{S_TAG}, v28", 30, 50, "extra", 0)
            S.add(cold_poll("KF_f3", F3POLL, f"v_cmp_ne_u32 vcc, s{S_TAG}, v28"), 0, 63, "extra", 3)
        if st in (1, 6, 13) and cfg.get("ctouch", True):
            for t in code_touch(None, f"KF_k2+{8192 * (1 + (1, 6, 13).index(st))}"): S.add(t, 0, 63, "dma", 1 if t.startswith("global") else 0)
        if st >= ND:
            for t in scale[:per]: S.add(t, 30 if st == ND else 0, 63, "extra", 0)
            scale = scale[per:]
        E.drain(f"vmcnt({E.vm('st%d' % st)})"); E("s_barrier")
        segstamp(E, cfg, RWS)
        S.emit(E)
    assert not scale, len(scale)
    a_, b_ = NST - 2, NST - 1
    order = [(a_ - 1, 5), (a_ - 1, 6), (a_ - 1, 7)] + [(s_, 2 * p + ii) for p in range(4) for s_ in (a_, b_) for ii in (0, 1)]
    S = Stream()
    for k, (s_, i) in enumerate(order): group2(S, s_, i, k + 5)
    B21 = cfg.get("b21", 20)
    S.at(B21, lambda E: E(f"s_waitcnt vmcnt({E.vm('st%d' % b_)})\ns_barrier"))
    for jt in range(4):
        for it in rd_w(a_, jt): S.ds(*it, 0, 24 + 2 * jt - LAT)
        for it in rd_w(b_, jt): S.ds(*it, max(24, B21 + 1), 40 + 2 * jt - LAT)
    for k, (s_, i) in enumerate(order):
        if k >= 3:
            for it in rd_a(s_, i, k + 5): S.ds(*it, max(8 * (k - 3), B21 + 1 if s_ == b_ else 0), 8 * k - LAT)
    for i in range(8):
        for t in (f"v_accvgpr_read_b32 v{2+i}, a{A_G+2*i}", f"v_lshlrev_b32 v{2+i}, 16, v{2+i}"): S.add(t, 0, 50, "send", 0)
    S.add("v_lshlrev_b32 v10, 4, v0", 0, 50, "send", 0)
    for t in lines(["v_accvgpr_read_b32 v29, a168\nv_accvgpr_read_b32 v13, a169\nv_lshlrev_b32 v11, 1, v29\nv_add_u32 v12, 0x1000, v11\nv_lshlrev_b32 v13, 1, v13\nv_lshlrev_b32 v29, 2, v29"]): S.add(t, 0, 30, "xl", 0)
    for ii in (0, 1):
        for jt in range(4): S.add(f"buffer_load_dwordx2 {ar(A_X+(ii*4+jt)*2,2)}, v{11+ii}, s[{RX}:{RX+3}], 0 offen offset:{jt*32} @x", B21 + 1, 54, "xl", 2)
    for jt in range(4): S.add(f"global_load_dwordx2 {ar(A_DS+jt*2,2)}, v13, s[80:81] offset:{jt*32} @x", B21 + 1, 54, "xl", 2)
    done = {i: 8 * k for k, (s_, i) in enumerate(order) if s_ == b_}
    for i in range(6):
        for a in (0, 1):
            R = acc1(i, 2 * a)[1]; t0 = done[i] + 4 * a + 6
            for jt in (2 * a, 2 * a + 1):
                d = acc2(i, jt); c = acc1(i, jt)[1]
                for e in range(4): S.add(f"v_fma_f32 v{d+e}, v{d+e}, v{2+i}, v{c+e}", t0, t0 + 16, "send", 0)
            for k in range(4):
                d = acc2(i, 2 * a + (k >> 1)) + 2 * (k & 1)
                S.add(f"v_cvt_pk_bf16_f32 v{R+k}, v{d}, v{d+1}", t0, t0 + 16, "send", 0)
            S.add(f"buffer_store_dwordx4 {vr(R,4)}, v10, s[{RWS}:{RWS+3}], s{S_SEND+(i>>1)} offen offset:{((i&1)*2+a)*1024} sc1 @send", t0, t0 + 16, "send", 0)
    E.drain(f"vmcnt({E.vm('st%d' % a_)})"); E("s_barrier")
    segstamp(E, cfg, RWS)
    for x in S.emit(E, True): put(E, x)
    E.drain()
    pt(E, cfg, "loop2")
    epilogue2(E, cfg)

def epilogue2(E, cfg):
    P = lambda r: vr(r, 2)
    RV = lambda k, u: 64 + (k * 4 + u) * 4
    E(f"s_add_u32 s{T0}, s{S_RECV}, 4096\ns_add_u32 s{T1}, s{S_RECV}, 8192")
    so = [S_RECV, T0, T1]
    rl = lambda k: [f"buffer_load_dwordx4 {vr(RV(k,u),4)}, v10, s[{RWS}:{RWS+3}], s{so[k]} offen offset:{u*1024} sc1" for u in range(4)]
    mode = cfg.get("recv", 0)
    if mode == 0:
        for k in (2, 1):
            for x in rl(k): E(x + f" @r{k}")
    for r in range(32): E(f"v_accvgpr_read_b32 v{32+r}, a{r}")
    for i in (6, 7):
        for jt in range(4):
            d = acc2(i, jt); c = 32 + ((i - 6) * 4 + jt) * 4
            for h in (0, 2): E(f"v_pk_fma_f32 {P(d+h)}, {P(d+h)}, v[8:9], {P(c+h)} op_sel:[0,{i&1},0] op_sel_hi:[1,{i&1},1]")
    if mode == 0:
        for x in rl(0): E(x + " @r0")
    E(f"s_waitcnt vmcnt({E.vm('x')})")
    pt(E, cfg, "x")
    for jt in range(4):
        E(f"v_accvgpr_read_b32 v30, a{A_DS+2*jt}\nv_accvgpr_read_b32 v31, a{A_DS+2*jt+1}")
        E("v_lshlrev_b32 v32, 16, v30\nv_and_b32 v33, 0xffff0000, v30\nv_lshlrev_b32 v34, 16, v31\nv_and_b32 v35, 0xffff0000, v31")
        for ii in (0, 1):
            x = A_X + (ii * 4 + jt) * 2; d = acc2(6 + ii, jt)
            E(f"v_accvgpr_read_b32 v30, a{x}\nv_accvgpr_read_b32 v31, a{x+1}")
            E("v_lshlrev_b32 v36, 16, v30\nv_and_b32 v37, 0xffff0000, v30\nv_lshlrev_b32 v38, 16, v31\nv_and_b32 v39, 0xffff0000, v31")
            E("v_pk_mul_f32 v[36:37], v[36:37], v[32:33]\nv_pk_mul_f32 v[38:39], v[38:39], v[34:35]")
            E("v_cvt_pk_bf16_f32 v30, v36, v37\nv_cvt_pk_bf16_f32 v31, v38, v39")
            E("v_lshlrev_b32 v36, 16, v30\nv_and_b32 v37, 0xffff0000, v30\nv_lshlrev_b32 v38, 16, v31\nv_and_b32 v39, 0xffff0000, v31")
            for h in (0, 2): E(f"v_pk_fma_f32 {P(d+h)}, {P(36+h)}, v[8:9], {P(d+h)} op_sel:[0,{ii},0] op_sel_hi:[1,{ii},1]")
    pt(E, cfg, "skip")
    if mode == 1:
        for k in (2, 1, 0):
            for x in rl(k): E(x + f" @r{k}")
    if mode == 2 or cfg.get("ackstamp"):
        E(f"s_waitcnt vmcnt({E.vm('send')})")
        pt(E, cfg, "ack")
    if mode == 2:
        for k in (2, 1, 0):
            for x in rl(k): E(x + f" @r{k}")
    E(f"s_movk_i32 s{T3}, 0x2000")
    for k in (2, 1, 0):
        r = RV(k, 0)
        chk = f"v_max3_u32 v30, v{r}, v{r+1}, v{r+2}\nv_max3_u32 v31, v{r+3}, v{r+4}, v{r+5}\n"
        for e in range(6, 14, 4): chk += f"v_max3_u32 v30, v30, v{r+e}, v{r+e+1}\nv_max3_u32 v31, v31, v{r+e+2}, v{r+e+3}\n"
        chk += f"v_max3_u32 v30, v30, v{r+14}, v{r+15}\nv_max_u32 v30, v30, v31\nv_cmp_eq_u32 vcc, -1, v30"
        E(f"s_waitcnt vmcnt({E.vm('r%d' % k)})\n{chk}\ns_nop 3")
        E(cold_poll(f"KF_r{k}", "\n".join(rl(k)), chk))
        pt(E, cfg, f"r{k}")
        for u in range(4):
            for j2 in (0, 1):
                jt = 2 * (u & 1) + j2; d = acc2(6 + (u >> 1), jt); t = 32 + 4 * ((2 * u + j2) & 1)
                for h in (0, 1):
                    q = RV(k, u) + 2 * j2 + h
                    E(f"v_lshlrev_b32 v{t+2*h}, 16, v{q}\nv_and_b32 v{t+2*h+1}, 0xffff0000, v{q}")
                for h in (0, 2): E(f"v_pk_add_f32 {P(d+h)}, {P(d+h)}, {P(t+h)}")
                if k == 0: E(f"buffer_store_dwordx4 {vr(d,4)}, v29, s[{ROUT}:{ROUT+3}], {'s%d' % T3 if u >> 1 else '0'} offen offset:{jt*64} {cfg.get('out_aux','sc1')}")

def build(cfg=None):
    t, e = gen(cfg)
    assert not e, e[:10]
    REF = open("gated_mix__ssm_conv_s5__glu_gated_geglu__prompt.s.ref").read().split("\n")
    head = [l for l in REF if l.startswith(";") and "@launch" not in l and "Override" not in l and "grid=ceil" not in l][:18]
    ln = f"; @launch kernel={NAME} grid=(256,1,1) block=(256,1,1) lds={LDS}" if (cfg or {}).get("aslist", True) else f"; @launch grid=(256,1,1) block=(256,1,1) lds={LDS}"
    return "\n".join(head) + "\n" + ln + '\n.amdgcn_target "amdgcn-amd-amdhsa--gfx950"\n.text\n' + t + '.section .rodata,"a"\n.p2align 6\n' + kernel_desc(NAME, sgpr=102) + "\n"

if __name__ == "__main__":
    import sys, json
    cfg = json.loads(sys.argv[2]) if len(sys.argv) > 2 else {}
    s = build(cfg); open(sys.argv[1], "w").write(s); print("wrote", sys.argv[1], s.count("\n"), "lines")
```

```python
from asmlib import *
ACT_OFF = 4096
G_OFF   = 0x1700000
AGG_OFF = G_OFF + 0x4000
EPO_OFF = AGG_OFF + 0x20000
FLG_OFF = AGG_OFF + 0x21000
XCH_OFF = 0x1800000
WS_SIZE = 0x3800000
LOG2E = 1.4426950408889634
import struct
def f2u(x): return struct.unpack("<I", struct.pack("<f", x))[0]
def hexf(x): return f"0x{f2u(x):08x}"
def srd(E, d, lo, size):
    E(f"s_mov_b32 s{d}, s{lo}\ns_and_b32 s{d+1}, s{lo+1}, 0xffff\ns_mov_b32 s{d+2}, {size}\ns_mov_b32 s{d+3}, 0x20000")
def kernel_head(name):
    return f".globl {name}\n.p2align 8\n.type {name},@function\n{name}:"
def kernel_desc(name, vgpr=512, sgpr=100, acc=256):
    return (f".amdhsa_kernel {name}\n  .amdhsa_next_free_vgpr {vgpr}\n  .amdhsa_next_free_sgpr {sgpr}\n  .amdhsa_accum_offset {acc}\n"
            "  .amdhsa_group_segment_fixed_size 0\n  .amdhsa_kernarg_size 136\n  .amdhsa_user_sgpr_count 2\n"
            "  .amdhsa_user_sgpr_kernarg_segment_ptr 1\n  .amdhsa_system_sgpr_workgroup_id_x 1\n"
            "  .amdhsa_float_denorm_mode_32 3\n.end_amdhsa_kernel")
def place(gaps, start, items, step=1, room=1):
    g = start
    for it in items:
        while len(gaps[g]) > room: g += 1
        gaps[g].append(it); g += step
    return g

STAMP_OFF = 0x3900000
def stamp(E, cfg, k):
    if cfg.get("stamps"): E(f"s_memrealtime s[82:83]\ns_waitcnt lgkmcnt(0)\ns_mov_b32 s{86+k}, s82")
def stamp_flush(E, cfg, ptr, kern, wave):
    if not cfg.get("stamps"): return
    E(f"s_add_u32 s82, s{ptr}, {STAMP_OFF + kern*65536}\ns_addc_u32 s83, s{ptr+1}, 0")
    E(f"s_lshl_b32 s84, s2, 2\ns_add_u32 s84, s84, s{wave}\ns_lshl_b32 s84, s84, 5\nv_mov_b32 v1, s84")
    for k in range(8): E(f"v_mov_b32 v{2+k}, s{86+k}")
    E("s_mov_b64 exec, 1\nglobal_store_dwordx4 v1, v[2:5], s[82:83]\nglobal_store_dwordx4 v1, v[6:9], s[82:83] offset:16\ns_mov_b64 exec, -1")

def lines(text_list):
    out = []
    for t in text_list:
        out += [x.strip() for x in t.split("\n") if x.strip()]
    return out
class Rec:
    def __init__(self): self.L = []
    def __call__(self, t): self.L += [x.strip() for x in t.split("\n") if x.strip()]
def fill(gaps, items, lo, hi, cap=2):
    def cost(g): return sum(2 if it[1].startswith(("v_exp", "v_rcp", "v_sin", "v_cos", "v_permlane")) else 1 for it in g)
    items = [x for x in items if not x.startswith("s_nop")]
    g = lo
    for it in items:
        c = 2 if it.startswith(("v_exp", "v_rcp", "v_sin", "v_cos", "v_permlane")) else 1
        while cost(gaps[g]) + c > max(cap, c) or (c == 2 and cost(gaps[g]) + c > cap and gaps[g]): g += 1
        assert g < hi, (len(items), lo, hi)
        gaps[g].append(("raw", it))
    return g
def fix_hazards(L, name):
    import re
    for _ in range(200):
        errs = check(L, name)
        if not errs: return L
        m = re.match(r".*needs (\d+) has (\d+): \[(.*)\] -> \[(.*)\]", errs[0])
        need, has, a, b = int(m.group(1)), int(m.group(2)), m.group(3), m.group(4)
        for i in range(len(L)):
            if L[i].split(";")[0].strip() == b and any(L[j].split(";")[0].strip() == a for j in range(max(0, i - 24), i)):
                sub = check(L[max(0, i - 24):i + 1], name)
                if any(e.endswith(f"[{a}] -> [{b}]") for e in sub):
                    L.insert(i, f"s_nop {need - has - 1}"); break
        else: raise RuntimeError(errs[0])
    raise RuntimeError("hazard fixing did not converge")

SEG_OFF = 0x3700000
def segstamp_init(E, cfg, kern, wave):
    if cfg.get("segs"): E(f"s_lshl_b32 s94, s2, 2\ns_add_u32 s94, s94, s{wave}\ns_lshl_b32 s94, s94, 7\ns_add_u32 s94, s94, {SEG_OFF + kern*0x20000}")
def segstamp(E, cfg, rws):
    if cfg.get("segs"):
        E(f"{'s_memtime' if cfg['segs'] == 2 else 's_memrealtime'} s[82:83]\ns_waitcnt lgkmcnt(0)\nv_accvgpr_write_b32 a251, s82\ns_nop 1\nbuffer_store_dword a251, off, s[{rws}:{rws+3}], s94\ns_add_u32 s94, s94, 4")

import subprocess, tempfile, os, re as _re
WIDEN = ("v_mov_b32", "v_add_u32", "v_sub_u32", "v_subrev_u32", "v_lshlrev_b32", "v_lshrrev_b32", "v_and_b32", "v_or_b32", "v_xor_b32", "v_mul_f32",
         "v_add_f32", "v_sub_f32", "v_exp_f32", "v_rcp_f32", "v_cndmask_b32", "v_cmp_", "v_max_u32", "v_min_u32", "v_mul_u32_u24", "v_cos_f32",
         "v_sin_f32", "v_rndne_f32", "v_permlane16_swap_b32", "v_permlane32_swap_b32")
def _sizes(L):
    d = tempfile.mkdtemp()
    open(d + "/a.s", "w").write('.amdgcn_target "amdgcn-amd-amdhsa--gfx950"\n.text\n' + "\n".join(x for x in L if not x.startswith(".p2align 12")) + "\n")
    r = subprocess.run(["clang", "-x", "assembler", "-target", "amdgcn-amd-amdhsa", "-mcpu=gfx950", "-c", d + "/a.s", "-o", d + "/a.o"], capture_output=True, text=True)
    assert r.returncode == 0, r.stderr[:2000]
    o = subprocess.run(["llvm-objdump", "-d", "--mcpu=gfx950", d + "/a.o"], capture_output=True, text=True).stdout
    return [4 * len(m.group(1).split()) for m in _re.finditer(r"// [0-9A-F]{12}: ((?:[0-9A-F]{8} ?)+)", o)]
def align8(L):
    isin = lambda x: not (x.endswith(":") or x.startswith("."))
    sz = _sizes(L); ins = [x for x in L if isin(x)]
    assert len(sz) == len(ins)
    out = []; off = 0; last4 = None; k = -1
    for x in L:
        if not isin(x):
            out.append(x)
            if x.startswith(".p2align 12"): off = 0
            continue
        k += 1; n = sz[k]
        if n == 8 and off % 8 == 4:
            p = out[last4]
            run = 0
            while k + run < len(ins) and sz[k + run] == 8 and not ins[k + run].startswith("v_mfma"): run += 1
            if p.startswith(WIDEN) and "_e64" not in p and "_dpp" not in p:
                mn, rest = p.split(None, 1); out[last4] = mn.replace("_e32", "") + "_e64 " + rest; off += 4
            elif run >= 6: out.append("s_nop 0"); off += 4
        out.append(x)
        if n == 4: last4 = len(out) - 1
        off += n
    return out

def add_pads(L, start, prefix):
    isin = lambda x: not (x.endswith(":") or x.startswith("."))
    k0 = L.index(start + ":")
    tail = L[k0 + 1:]
    sz = _sizes(L)[sum(map(isin, L[:k0 + 1])):]
    out = L[:k0 + 1]; off = 0; n = 0; k = 0; prev = ""
    for x in tail:
        if isin(x):
            if off >= 4096 * n and not prev.startswith("s_getpc"):
                assert off - 4096 * n < 48
                out += [f"{prefix}{n}:", f"s_cbranch_execz {prefix}s{n}"]; off += 4; n += 1
                if not x.startswith("v_mfma") and not prev.startswith("v_mfma"): out.append("s_nop 0"); off += 4
            off += sz[k]; k += 1; prev = x
        out.append(x)
    return out, n
```

```python
from common import *
from sched import Stream, Item, put
import re
from k1 import cmul as k1_cmul
from k1 import gate_stream, param_stream, gelu_quads, pkf, pkm, cfma, stash, unstash, A_LAM, A_C2, A_L16, A_L32, A_L256, A_L32P
NAME = "gated_mix__ssm_conv_s5__glu_gated_geglu__prompt_kernel"
MF = "v_mfma_f32_16x16x32_bf16"
GOFF = 65536; WBUF = 28688; UOFF = 14352; BOFF = GOFF + 2 * WBUF
WOFF = 98304; GLDS = 147456; SCR = GLDS + 2048; TRS = SCR + 2048; LDS = TRS + 12288
S_W, S_MT, S_NT, S_WM, S_WN = 3, 4, 5, 6, 7
RX, RW, RB, RWS, RDBG, RAGG = 8, 12, 16, 20, 24, 28
S_KX, S_KW, S_MX, S_MW, S_MB, S_CNT = 32, 33, 34, 35, 64, 65
T0, T1, T2, T3 = 66, 67, 68, 69
S_KQ, S_NB, S_KXR, S_FILL, S_TAG = 98, 99, 100, 101, 75
RWD, RC0, RC1, ROUT = RW, RB, RDBG, RAGG
S_AC, S_AD, S_WC, S_WD, S_MA, S_MW2, S_SA, S_SW = 38, 39, 40, 41, 42, 43, 44, 45
S_SEND, S_RECV, S_FOWN, S_FGRP, S_GSRC, S_GLDS = 50, 53, 54, 55, 58, 59
V_X, V_W, V_B, V_RX, V_RW, V_RM, V_RB = 2, 10, 17, 19, 21, 22, 23
V_A, V_C, V_D, V_RA, V_RC, V_RD, V_G = 2, 6, 10, 14, 16, 18, 22
H_A, H_D = 128, 132
A_XF, A_WF1 = 64, 192
A_WF, A_AF, A_G, A_X, A_DS = 32, 96, 128, 144, 160
ND, NST = 14, 22
SPIN = 0x100000
LAT = 7
TOUCH = "global_load_dword a254, v[26:27], off"
TOUCH_ADV = "v_lshl_add_u64 v[26:27], v[28:29], 0, v[26:27]"
PTS = "start,bar0,loop1,e1end,k2start,loop2,end,drained"
def pt(E, cfg, name):
    pts = cfg.get("pts", PTS).split(",")
    if name in pts: stamp(E, cfg, pts.index(name))
SLEEP = [3]
COLD = []
def cold_poll(name, reload, recheck):
    COLD.append(f"{name}_slow:\ns_mov_b32 s{T2}, {SPIN}\n{name}_again:\ns_sleep {SLEEP[0]}\n{reload}\ns_waitcnt vmcnt(0)\n{recheck}\ns_sub_u32 s{T2}, s{T2}, 1\ns_nop 3\n"
                f"s_cbranch_vccz {name}_ok\ns_cmp_lg_u32 s{T2}, 0\ns_cbranch_scc1 {name}_again\ns_branch {name}_ok")
    return f"s_cbranch_vccnz {name}_slow\n{name}_ok:"

def acc(g, i): return vr(32 + g * 32 + 4 * i, 4) if g < 7 else ar((g - 7) * 32 + 4 * i, 4)
def xf(b, s, i): return A_XF + b * 64 + (s * 8 + i) * 4
def wf1(g, s): return A_WF1 + (g % 3) * 8 + s * 4
def dma1(buf, cfg, first=False):
    dw, dx = cfg.get("dma_w", 6), cfg.get("dma_x", 4)
    W = lambda j: (f"buffer_load_dwordx4 v{V_W+j}, s[{RW}:{RW+3}], s{S_KW} offen offset:{(j&3)*1024} lds @w", dw)
    X = lambda j: (f"buffer_load_dwordx4 v{V_X+j}, s[{RX}:{RX+3}], s{S_KX} offen offset:{(j&3)*1024} lds @x", dx)
    B = lambda j: (f"buffer_load_dwordx4 v{V_B+j}, s[{RB}:{RB+3}], s{S_KX} offen offset:{j*1024} lds @x", dx)
    def blk(m, loads): return [(m, loads[0][1] - 1), (loads[0][0], 1)] + loads[1:]
    w0 = blk(f"s_add_u32 m0, s{S_MW}, {buf*WBUF}", [W(j) for j in range(4)]); w1 = blk(f"s_add_u32 m0, s{S_MW}, {buf*WBUF + 4096}", [W(j) for j in range(4, 7)])
    x0 = blk(f"s_add_u32 m0, s{S_MX}, {buf*32768}", [X(j) for j in range(4)]); x1 = blk(f"s_add_u32 m0, s{S_MX}, {buf*32768 + 4096}", [X(j) for j in range(4, 8)])
    b0 = blk(f"s_add_u32 m0, s{S_MB}, {buf*8192}", [B(0), B(1)])
    aw, ax = [(f"s_add_u32 s{S_KW}, s{S_KW}, {64*7168}", 1)], [(f"s_add_u32 s{S_KX}, s{S_KX}, 128", 1)]
    return b0 + x0 + x1 + ax + w0 + w1 + aw if first else w0 + x0 + b0 + w1 + aw + x1 + ax
def rd_x(b, s, i): return (f"ds_read_b128 {ar(xf(b,s,i),4)}, v{V_RX+s} offset:{b*32768 + i*2048}", ("x", b, s, i))
def rd_w1(b, g):
    out = []
    for s in (0, 1):
        r = wf1(g, s)
        if g < 2: out.append((f"ds_read_b128 {ar(r,4)}, v{V_RB+s} offset:{b*8192 + g*4096}", ("w", g % 3, s, 0))); continue
        if g < 8: base, off = V_RW, b * WBUF + ((g - 2) & 1) * UOFF + s * 7168 + ((g - 2) >> 1) * 32
        else: base, off = V_RM, b * WBUF + s * 7168
        out += [(f"ds_read_b64_tr_b16 {ar(r+2*h,2)}, v{base} offset:{off + h*1792}", ("w", g % 3, s, h)) for h in (0, 1)]
    return out
SNAKE = [True]
def group1(S, b, g, first=False):
    for i in range(8):
        for n_, s in enumerate((1, 0) if SNAKE[0] and i & 1 else (0, 1)):
            a = acc(g, i); w_ = ar(wf1(g, s), 4); x_ = ar(xf(b, s, i), 4); c = "0" if first and n_ == 0 else a
            S.mfma(f"{MF} {a}, {x_}, {w_}, {c}" if g < 2 else f"{MF} {a}, {w_}, {x_}, {c}", [("w", g % 3, s, 0), ("w", g % 3, s, 1), ("x", b, s, i)])
def segment(E, prev, cfg, vm, dma=(), extra=(), last=False, extra_hi=None, extra_lo=0, pin=None):
    nxt = 1 - prev; S = Stream()
    seq = [(prev, 7), (prev, 8)] + [(nxt, g) for g in range(9 if last else 7)]
    for b, g in seq: group1(S, b, g)
    for i in range(8):
        for s in (0, 1): S.ds(*rd_x(nxt, s, i), 0, 32 + 2 * i - LAT)
    for p in range(9):
        for it in rd_w1(nxt, p): S.ds(*it, 16 * p, min(16 * (p + 2), 10**6 if last else 144) - LAT)
    for k, (t, d) in enumerate(dma): S.add(t, 0, cfg.get("dma_end", 104), "dma", d if k else 1)
    for t in extra: S.add(t, extra_lo, extra_hi or len(S.mf) - 1, "extra", 0)
    if pin: S.at(*pin)
    E.drain(f"vmcnt({vm})"); E("s_barrier")
    segstamp(E, cfg, RWS)
    S.emit(E)

NPROJ = 26
def tmask(E, cfg):
    lvl = cfg.get("touch", "l2")
    if lvl == "l2": E("s_mov_b64 s[84:85], -1"); return
    if lvl == "none": E(f"s_mov_b32 s84, {hex(0xffffffff & ~((1 << NPROJ) - 1))}\ns_mov_b32 s85, -1"); return
    E(f"s_lshl_b32 s70, s{S_KQ}, 1\ns_lshl_b32 s84, 3, s70\ns_lshr_b32 s70, s{S_MT}, 2\ns_lshl_b32 s71, 0x500, s70\ns_or_b32 s84, s84, s71")
    E(f"s_mul_i32 s70, s70, 7\ns_lshl_b32 s71, 0x7f000, s70\ns_or_b32 s84, s84, s71\ns_or_b32 s84, s84, {hex(0xffffffff & ~((1 << NPROJ) - 1))}\ns_mov_b32 s85, -1")
T1ST = f"s_mov_b64 exec, {hex((1 << NPROJ) - 1)}\n{TOUCH}\n{TOUCH_ADV}\ns_mov_b64 exec, -1"
def touch_offsets(E):
    E(f"s_and_b32 s76, s{S_MT}, 3\ns_lshl_b32 s76, s76, 3\ns_add_u32 s76, s76, s{S_NB}\ns_lshl_b32 s76, s76, 2\ns_add_u32 s76, s76, s{S_W}")
    E(f"s_lshl_b32 s75, s76, 1\ns_lshl_b32 s77, s{S_KQ}, 8\ns_add_u32 s75, s75, s77\ns_lshl_b32 s75, s75, 11")
    E(f"s_lshr_b32 s77, s76, 1\ns_mul_i32 s77, s77, 7168\ns_mul_i32 s78, s{S_KQ}, 1792\ns_add_u32 s77, s77, s78\ns_sub_u32 s77, s77, {12*128}")
    E(f"s_and_b32 s79, s{S_MT}, 4\ns_lshl_b32 s79, s79, 8\ns_lshl_b32 s78, s76, 3\ns_add_u32 s79, s79, s78\ns_lshl_b32 s79, s79, 11\ns_and_b32 s76, s76, 1")
    E("v_cmp_gt_u32 vcc, 42, v0\nv_mov_b32 v28, 128\nv_mov_b32 v29, 0\nv_cndmask_b32 v24, 0, v0, vcc")
    E("v_lshlrev_b32 v30, 11, v24\nv_add_u32 v30, s79, v30\nv_cmp_le_u32 s[70:71], 8, v24\nv_cmp_le_u32 s[72:73], 10, v24\nv_cmp_le_u32 vcc, 12, v24")
    E("v_and_b32 v31, 1, v24\nv_lshlrev_b32 v31, 11, v31\nv_add_u32 v31, s75, v31\nv_cndmask_b32 v30, v30, v31, s[70:71]")
    E(f"v_lshlrev_b32 v31, 7, v24\nv_add_u32 v31, s77, v31\nv_cndmask_b32 v30, v30, v31, vcc\nv_mov_b32 v31, {64*7168}\nv_cndmask_b32 v28, v28, v31, vcc\nv_mov_b32 v31, 0")
def touch_bases(E):
    E("s_cmp_eq_u32 s76, 0\ns_cselect_b32 s78, s52, s54\ns_cselect_b32 s79, s53, s55\nv_mov_b32 v26, s36\nv_mov_b32 v27, s37")
    for m, lo in (("s[70:71]", 42), ("s[72:73]", 44), ("vcc", 78)):
        E(f"v_mov_b32 v1, s{lo}\nv_mov_b32 v25, s{lo+1}\nv_cndmask_b32 v26, v26, v1, {m}\nv_cndmask_b32 v27, v27, v25, {m}")
    E("v_lshl_add_u64 v[26:27], v[30:31], 0, v[26:27]")
def touch_rest(E):
    def sel(first, lo, off, step=None):
        E(f"v_cmp_le_u32 vcc, {first}, v24\n{off}\nv_mov_b32 v32, s{lo}\nv_mov_b32 v33, s{lo+1}\nv_lshl_add_u64 v[32:33], v[30:31], 0, v[32:33]")
        E("v_cndmask_b32 v26, v26, v32, vcc\nv_cndmask_b32 v27, v27, v33, vcc")
        if step is not None: E(f"v_mov_b32 v1, {step}\nv_cndmask_b32 v28, v28, v1, vcc")
    E(f"s_lshl_b32 s74, s2, 2\ns_add_u32 s74, s74, s{S_W}")
    E(f"s_mul_i32 s75, s74, {56*128}\ns_sub_u32 s75, s75, {26*11*128}\ns_lshl_b32 s76, s74, 11\ns_sub_u32 s77, s76, {31*512}\ns_sub_u32 s76, s76, {33*512}")
    sel(26, 56, f"v_mul_u32_u24 v30, {11*128}, v24\nv_add_u32 v30, s75, v30", 128)
    sel(31, 46, "v_lshlrev_b32 v30, 9, v24\nv_add_u32 v30, s77, v30")
    sel(33, 48, "v_lshlrev_b32 v30, 9, v24\nv_add_u32 v30, s76, v30")
    sel(35, 58, f"v_lshlrev_b32 v30, 9, v24\nv_subrev_u32 v30, {35*512}, v30")
    E(f"s_lshl_b32 s75, s{S_NT}, 6\ns_lshl_b32 s76, s{S_MT}, 20")
    sel(37, 38, "v_mov_b32 v30, s75", "0")
    sel(38, 40, "s_nop 0")
    sel(39, 50, "s_nop 0")
    sel(40, 96, "v_mov_b32 v30, s76")
    sel(41, 80, "v_mov_b32 v30, 0", 128)
    E("v_cmp_le_u32 vcc, 42, v0\nv_readlane_b32 s75, v26, 41\nv_readlane_b32 s76, v27, 41\ns_nop 1\nv_mov_b32 v32, s75\nv_mov_b32 v33, s76")
    E("v_cndmask_b32 v26, v26, v32, vcc\nv_cndmask_b32 v27, v27, v33, vcc")

def gen(cfg=None):
    cfg = cfg or {}
    SNAKE[0] = cfg.get('snake', True)
    COLD.clear(); SLEEP[0] = cfg.get("sleep", 4)
    E = Em()
    E(kernel_head(NAME))
    E("s_cmp_ge_u32 s2, 256\ns_cbranch_scc1 KF_end")
    pt(E, cfg, "start")
    E("s_load_dwordx16 s[36:51], s[0:1], 0\ns_load_dwordx8 s[52:59], s[0:1], 80\ns_load_dwordx4 s[60:63], s[0:1], 120\ns_load_dwordx2 s[80:81], s[0:1], 64\ns_load_dwordx2 s[96:97], s[0:1], 112")
    E(f"v_lshrrev_b32 v1, 6, v0\nv_and_b32 v0, 63, v0\nv_readfirstlane_b32 s{S_W}, v1")
    E(f"s_and_b32 s{S_KQ}, s2, 3\ns_and_b32 s{T0}, s2, 4\ns_bfe_u32 s{T1}, s2, 0x20003\ns_add_u32 s{S_MT}, s{T0}, s{T1}\ns_lshr_b32 s{S_NB}, s2, 5")
    E(f"s_lshl_b32 s{S_NT}, s{S_KQ}, 3\ns_add_u32 s{S_NT}, s{S_NT}, s{S_NB}\ns_xor_b32 s{S_KXR}, s{S_KQ}, 3")
    E(f"s_lshr_b32 s{S_WM}, s{S_W}, 1\ns_and_b32 s{S_WN}, s{S_W}, 1")
    E("v_lshrrev_b32 v25, 3, v0\nv_and_b32 v26, 7, v0")
    E("v_lshrrev_b32 v27, 2, v25\nv_lshlrev_b32 v27, 5, v27")
    E("v_and_b32 v28, 1, v25\nv_lshl_add_u32 v27, v28, 4, v27")
    E("v_lshrrev_b32 v28, 1, v25\nv_and_b32 v29, 1, v28\nv_add_u32 v27, v27, v29")
    E("v_xor_b32 v29, v26, v28\nv_lshlrev_b32 v29, 4, v29")
    E("v_xor_b32 v30, 64, v29")
    E(f"s_lshl_b32 s{T0}, s{S_MT}, 8\ns_lshl_b32 s{T1}, s{S_WM}, 7\ns_add_u32 s{T0}, s{T0}, s{T1}")
    E(f"s_lshl_b32 s{T1}, s{S_WN}, 3\ns_add_u32 s{T0}, s{T0}, s{T1}")
    E(f"v_add_u32 v27, s{T0}, v27\nv_lshlrev_b32 v27, 11, v27\nv_add_u32 v{V_X}, v27, v29\nv_add_u32 v31, v27, v30")
    for j in range(1, 8): E(f"v_add_u32 v{V_X+j}, {(j&1)*64*2048 + (j>>1)*4096 - (j&3)*1024}, v{31 if j & 1 else V_X}")
    E(f"s_lshl_b32 s{T0}, s{S_NT}, 5\ns_lshl_b32 s{T1}, s{S_WN}, 4\ns_add_u32 s{T0}, s{T0}, s{T1}")
    E(f"v_add_u32 v27, s{T0}, v25\nv_lshlrev_b32 v27, 11, v27")
    E(f"v_add_u32 v{V_B}, v27, v29\nv_add_u32 v{V_B+1}, v27, v30\nv_add_u32 v{V_B+1}, {8*2048 - 1024}, v{V_B+1}")
    E(f"s_mul_i32 s{T1}, s{S_NT}, 224\ns_mul_i32 s{T2}, s{S_WN}, {32*7168}\ns_add_u32 s{T1}, s{T1}, s{T2}\ns_movk_i32 s{T2}, 7168")
    for j in range(7):
        E(f"v_add_u32 v25, {64*j}, v0\nv_mul_u32_u24 v26, 4682, v25\nv_lshrrev_b32 v26, 16, v26")
        E("v_mul_u32_u24 v27, 14, v26\nv_sub_u32 v27, v25, v27")
        E("v_and_b32 v28, 19, v26\nv_and_b32 v29, 4, v26\nv_lshl_or_b32 v28, v29, 1, v28")
        E("v_and_b32 v29, 8, v26\nv_lshrrev_b32 v29, 1, v29\nv_or_b32 v28, v28, v29")
        E(f"s_sub_u32 s{T3}, s{T1}, {(j&3)*1024}\nv_mul_u32_u24 v28, s{T2}, v28\nv_lshl_add_u32 v28, v27, 4, v28\nv_add_u32 v{V_W+j}, s{T3}, v28")
    E(f"s_lshl_b32 s{S_MX}, s{S_W}, 13")
    E(f"s_mul_i32 s{S_MW}, s{S_WM}, {UOFF}\ns_mul_i32 s{T1}, s{S_WN}, 7168\ns_add_u32 s{S_MW}, s{S_MW}, s{T1}\ns_add_u32 s{S_MW}, s{S_MW}, {GOFF}")
    E(f"s_lshl_b32 s{S_MB}, s{S_W}, 11\ns_add_u32 s{S_MB}, s{S_MB}, {BOFF}")
    E(f"s_mov_b32 s{S_KX}, 0\ns_mov_b32 s{S_KW}, 0")
    touch_offsets(E)
    E("s_waitcnt lgkmcnt(0)")
    if cfg.get("wsbase"): E(f"s_add_u32 s62, s62, {cfg['wsbase']}\ns_addc_u32 s63, s63, 0")
    npre = cfg.get("npre", 0)
    if npre: touch_bases(E)
    for _ in range(npre): E(T1ST)
    srd(E, RX, 36, 2048 * 2048)
    E(f"s_cmp_eq_u32 s{S_WM}, 0\ns_cselect_b32 s{T2}, s42, s44\ns_cselect_b32 s{T3}, s43, s45")
    srd(E, RB, T2, 1024 * 2048)
    E(f"s_cmp_eq_u32 s{S_WM}, 0\ns_cselect_b32 s{T2}, s52, s54\ns_cselect_b32 s{T3}, s53, s55")
    srd(E, RW, T2, 1024 * 7168)
    d0 = [t + ("\ns_nop 0" if "m0" in t else "") for t, _ in dma1(0, cfg, True)]
    nfirst = cfg.get("nfirst", 14)
    for t in d0[:nfirst]: E(t)
    if cfg.get("walk"): E("KF_walk:")
    if not npre: touch_bases(E); E(TOUCH_ADV)
    touch_rest(E)
    if cfg.get("walk"): E("s_branch KF_al\nKF_stubs:\n.p2align 12\nKF_al:")
    E("v_and_b32 v34, 15, v0\nv_lshrrev_b32 v35, 4, v0")
    E("v_lshrrev_b32 v36, 1, v34\nv_xor_b32 v36, v36, v35\nv_lshlrev_b32 v36, 4, v36\nv_lshl_add_u32 v36, v34, 7, v36")
    E(f"s_lshl_b32 s{T1}, s{S_WM}, 14\nv_add_u32 v{V_RX}, s{T1}, v36\nv_xor_b32 v{V_RX+1}, 64, v{V_RX}")
    E(f"s_lshl_b32 s{T1}, s{S_WN}, 11\ns_add_u32 s{T1}, s{T1}, {BOFF}\nv_xor_b32 v37, 64, v36\nv_add_u32 v{V_RB}, s{T1}, v36\nv_add_u32 v{V_RB+1}, s{T1}, v37")
    E("v_lshrrev_b32 v36, 5, v0\nv_lshlrev_b32 v36, 4, v36\nv_and_b32 v37, 1, v35\nv_lshl_add_u32 v36, v37, 2, v36")
    E("v_bfe_u32 v37, v0, 2, 2\nv_add_u32 v36, v36, v37\nv_mul_u32_u24 v36, 224, v36")
    E(f"s_mul_i32 s{T1}, s{S_WN}, 112\ns_add_u32 s{T1}, s{T1}, {GOFF}\nv_add_u32 v36, s{T1}, v36")
    E(f"v_and_b32 v37, 3, v0\nv_lshl_add_u32 v{V_RW}, v37, 3, v36")
    E(f"v_and_b32 v37, 1, v0\nv_lshl_add_u32 v36, v37, 3, v36\nv_bfe_u32 v37, v0, 1, 1\nv_mul_u32_u24 v37, {UOFF}, v37")
    E(f"v_add_u32 v36, 96, v36\nv_add_u32 v{V_RM}, v36, v37")
    srd(E, RWS, 62, WS_SIZE)
    srd(E, RDBG, 60, 256)
    E(f"s_add_u32 s{T2}, s62, {AGG_OFF}\ns_addc_u32 s{T3}, s63, 0")
    srd(E, RAGG, T2, 131072)
    if cfg.get("touch", "l2") != "l2": tmask(E, cfg)
    E(f"s_lshl_b32 s70, s{S_MT}, 8\ns_lshl_b32 s{T1}, s{S_NT}, 3\ns_add_u32 s70, s70, s{T1}\ns_lshl_b32 s{T1}, s{S_W}, 1\ns_add_u32 s70, s70, s{T1}")
    E(f"s_and_b32 s73, s70, 0xff80\ns_bfe_u32 s{T1}, s70, 0x30004\ns_lshl_b32 s{T1}, s{T1}, 1\ns_add_u32 s73, s73, s{T1}")
    E(f"s_bfe_u32 s{T1}, s70, 0x20002\ns_lshl_b32 s{T1}, s{T1}, 5\ns_add_u32 s73, s73, s{T1}")
    E(f"s_bfe_u32 s{T1}, s70, 0x10001\ns_add_u32 s73, s73, s{T1}\ns_lshl_b32 s73, s73, 11\ns_add_u32 s72, s73, {16*2048}")
    E(f"s_lshl_b32 s70, s70, 3\ns_add_u32 s70, s70, {G_OFF}")
    E(f"s_lshl_b32 s{T0}, s{S_MT}, 3\ns_add_u32 s{T0}, s{T0}, s{S_NB}\ns_lshl_b32 s{T0}, s{T0}, 2\ns_add_u32 s{T0}, s{T0}, s{S_KQ}\ns_lshl_b32 s{T0}, s{T0}, 2\ns_add_u32 s{T0}, s{T0}, s{S_W}")
    E(f"s_mul_i32 s{S_FILL}, s{T0}, 12288\ns_add_u32 s{S_FILL}, s{S_FILL}, {XCH_OFF}\nv_lshlrev_b32 v25, 4, v0")
    for r in range(64): E(f"v_accvgpr_write_b32 a{r}, 0")
    for r in range(4): E(f"v_accvgpr_write_b32 a{246+r}, -1")
    E(f"s_mov_b32 s77, {EPO_OFF}\ns_lshl_b32 s78, s2, 2\ns_add_u32 s78, s78, s{S_W}")
    E(f"s_getpc_b64 s[74:75]\nKF_pc0:\ns_lshl_b32 s76, s{S_W}, 13\nv_lshlrev_b32 v1, 7, v0\nv_add_u32 v1, s76, v1")
    for t in d0[nfirst:]: E(t)
    pt(E, cfg, "issued")
    for _ in range(3 - max(npre, 1)): E(T1ST)
    E(f"buffer_load_dword a250, off, s[{RWS}:{RWS+3}], s77 sc1")
    E("global_load_dword a255, v1, s[74:75]\ns_add_u32 s74, s74, 0x8000\ns_addc_u32 s75, s75, 0\nv_min_u32 v1, KF_end-KF_pc0-0x8000, v1")
    pt(E, cfg, "prep")
    E(f"s_waitcnt vmcnt({E.vm('x')})\ns_barrier")
    pt(E, cfg, "bar0")
    segstamp_init(E, cfg, 0, S_W)
    E.vq = [("w0" if t == "w" else t) for t in E.vq]
    for g in (0, 1):
        for it in rd_w1(0, g): E.ds(*it)
        for i in range(4 * g, 4 * g + 4):
            for s in (0, 1): E.ds(*rd_x(0, s, i))
    S = Stream()
    for g in range(7): group1(S, 0, g, True)
    def midbar(E):
        pt(E, cfg, "wpre"); E(f"s_waitcnt vmcnt({E.vm('w0')})"); pt(E, cfg, "wpost"); E("s_barrier"); pt(E, cfg, "wbar")
    S.at(15, midbar)
    for g in range(2, 9):
        for it in rd_w1(0, g): S.ds(*it, max(16, 16 * (g - 2)), min(16 * g, 112) - LAT)
    d1 = [(t, min(d, 4)) for t, d in dma1(1, cfg)] + [("global_load_dword a255, v1, s[74:75]", 3), (f"buffer_load_dword a255, off, s[{RWS}:{RWS+3}], s{S_FILL} sc1", 3)]
    late = [(T1ST, 2)]
    d1 = d1[:cfg.get("late_at", 16)] + late + d1[cfg.get("late_at", 16):]
    for k, (t, d) in enumerate(d1): S.add(t, 0, 84, "dma", d if k else 1)
    S.emit(E)
    pt(E, cfg, "seg0")
    if "st1" in cfg.get("pts", ""): E("s_waitcnt vmcnt(2)"); pt(E, cfg, "st1")
    E.L = fix_hazards(E.L, "pro")
    pro = list(E.L)
    COLD.append(f"KF_tag:\nv_accvgpr_read_b32 v30, a250\ns_mov_b32 s78, 0x9e3779b1\nv_mul_lo_u32 v30, v30, s78\nv_mov_b32 v31, 1\nv_add_u32 v30, 0x7f4a7c15, v30\n"
                f"buffer_store_dword v30, off, s[{RWS}:{RWS+3}], s77 sc1\nbuffer_store_dwordx2 v[30:31], off, s[{RDBG}:{RDBG+3}], 0 sc1\ns_branch KF_notag")
    TS = TOUCH if cfg.get("touch", "l2") == "l2" else f"s_mov_b64 exec, s[84:85]\n{TOUCH}\ns_mov_b64 exec, -1"
    side = [(TS, 4), (TOUCH_ADV, 1), (f"buffer_store_dwordx4 a[246:249], v25, s[{RWS}:{RWS+3}], s{S_FILL} offen sc1", 3), (f"s_add_u32 s{S_FILL}, s{S_FILL}, 1024", 1)]
    E(f"s_mov_b32 s{S_CNT}, 6\nKF_loop:")
    l0 = len(E.L)
    segment(E, 0, cfg, 2, dma1(0, cfg) + side)
    segment(E, 1, cfg, 2, [("s_cmp_eq_u32 s78, 0\ns_cbranch_scc1 KF_tag\nKF_notag:", 1)] + dma1(1, cfg) + side + [(f"s_sub_u32 s{S_CNT}, s{S_CNT}, 1", 1), (f"s_cmp_lg_u32 s{S_CNT}, 0", 1)])
    body = E.L[l0:]
    E("s_cbranch_scc1 KF_loop")
    l1 = len(E.L)
    gs = [x for x in gate_stream() if not x.startswith("s_nop")]; h = cfg.get("gate_split", 90)
    addr = lines([f"s_lshl_b32 s{T1}, s{S_NT}, 5\ns_lshl_b32 s{T0}, s{S_WN}, 4\ns_add_u32 s{T0}, s{T0}, s{T1}",
        f"v_and_b32 v25, 15, v0\nv_add_u32 v25, s{T0}, v25\nv_lshlrev_b32 v25, 1, v25",
        f"v_and_b32 v30, 31, v0\nv_add_u32 v30, s{T1}, v30\nv_lshlrev_b32 v30, 1, v30\nv_lshlrev_b32 v31, 4, v0"])
    small = lines(["global_load_dwordx4 a[216:219], v31, s[58:59]\nglobal_load_dwordx4 a[220:223], v31, s[58:59] offset:1024",
        f"buffer_load_dwordx4 a[224:227], v31, s[{RX}:{RX+3}], s73 offen\nbuffer_load_dwordx4 a[228:231], v31, s[{RX}:{RX+3}], s73 offen offset:1024",
        f"buffer_load_dwordx4 a[232:235], v31, s[{RX}:{RX+3}], s72 offen\nbuffer_load_dwordx4 a[236:239], v31, s[{RX}:{RX+3}], s72 offen offset:1024",
        "global_load_ushort a240, v25, s[38:39]\nglobal_load_ushort a241, v25, s[40:41]\nglobal_load_ushort a242, v25, s[50:51]",
        "global_load_ushort a243, v30, s[38:39]\nglobal_load_ushort a244, v30, s[40:41]\nglobal_load_ushort a245, v30, s[50:51]",
        f"buffer_load_dwordx2 a[252:253], off, s[{RDBG}:{RDBG+3}], 0 sc1"])
    d13 = dma1(0, cfg) + [(x, 3) for x in small]
    for k in range(len(small)): small[k] += ' @small'
    d13 = dma1(0, cfg) + [(x, 3) for x in small]
    tagchk = ["v_accvgpr_read_b32 v3, a253", "v_accvgpr_read_b32 v2, a252", "v_cmp_eq_u32 vcc, 0, v3", "s_nop 0", "s_nop 0",
              cold_poll("KF_tg", f"buffer_load_dwordx2 v[2:3], off, s[{RDBG}:{RDBG+3}], 0 sc1", "v_cmp_eq_u32 vcc, 0, v3"), f"v_readfirstlane_b32 s{S_TAG}, v2"]
    fin = ["v_lshrrev_b32 v26, 16, v26", "v_lshrrev_b32 v28, 16, v28", "v_or_b32 v26, v26, v27", "v_or_b32 v28, v28, v29",
           f"v_mov_b32 v27, s{S_TAG}", f"v_mov_b32 v29, s{S_TAG}", f"buffer_store_dwordx4 v[26:29], off, s[{RWS}:{RWS+3}], s70 sc1"]
    segment(E, 0, dict(cfg, dma_end=104 + 3 * len(small) - 8), 2, d13, addr, extra_hi=60)
    k_ = max(i for i, x in enumerate(E.L) if x == addr[-1]); assert all("a[216:219]" not in x for x in E.L[l1:k_])
    segment(E, 1, cfg, len(small), dma1(1, cfg), gs[:h], extra_lo=30, pin=(29, lambda E: E(f"s_waitcnt vmcnt({E.vm('small')})")))
    segment(E, 0, cfg, 0, (), tagchk + gs[h:] + fin + [x for x in param_stream() if not x.startswith("s_nop")], last=True)
    E.drain()
    pt(E, cfg, "loop1")
    E.vq = []
    epilogue1(E, cfg)
    gemm2(E, cfg)
    pt(E, cfg, "end")
    if cfg.get("stamps"): E("s_waitcnt vmcnt(0)")
    pt(E, cfg, "drained")
    diag_tail(E, cfg)
    E("KF_end:\ns_endpgm")
    E.L[l1:] = fix_hazards(E.L[l1:], "tail")
    errs = check(pro + body + body + E.L[l1:], "kf") + flag_check(E.L)
    for c in COLD:
        errs += check(c.split("\n"), "cold"); E(c)
    E.L.insert(len(E.L) - 1, "KF_last:")
    if cfg.get("align", True): E.L = align8(E.L)
    if cfg.get("walk"):
        for _ in range(2):
            L, n = add_pads([x for x in E.L], "KF_al", "KF_p")
        k = L.index("KF_stubs:")
        stubs = []
        for p in range(n):
            nx = p + 4 if p + 4 < n else p % 4
            stubs += [f"KF_ps{p}:", "s_sub_u32 s75, s75, 1", "s_cmp_eq_u32 s75, 0", "s_cbranch_scc1 KF_walked", f"s_branch KF_p{nx}"]
        L[k + 1:k + 1] = stubs
        k = L.index("KF_walk:")
        head = [f"s_bfe_u32 s74, s2, 0x20003", "s_lshl_b32 s74, s74, 2", f"s_add_u32 s74, s74, s{S_W}", f"s_sub_u32 s75, {n + 3}, s{S_W}", "s_lshr_b32 s75, s75, 2",
                f"s_cmp_ge_u32 s74, {n}", f"s_cselect_b32 s74, s{S_W}, s74", "s_mov_b64 exec, 0"]
        for p in range(n - 1): head += [f"s_cmp_eq_u32 s74, {p}", f"s_cbranch_scc1 KF_p{p}"]
        head += [f"s_branch KF_p{n-1}", "KF_walked:", "s_mov_b64 exec, -1"]
        L[k + 1:k + 1] = head
        E.L = L
    return E.text(), errs

def flag_check(L):
    errs = []; lastv = None; prev = ""; scc = None
    SW = ("s_add_", "s_sub_", "s_addc", "s_lshl", "s_lshr", "s_and_", "s_or_", "s_xor", "s_bfe", "s_cmp", "s_min", "s_max")
    for x in L:
        if x.endswith(":"): continue
        if x.startswith("v_cmp") and " vcc," in x:
            if lastv: errs.append(f"vcc overwritten before use: {lastv} / {x}")
            lastv = x
        if "vcc" in x and not x.startswith("v_cmp"): lastv = None
        if x.startswith(("s_cselect", "s_cbranch_scc")) and not (scc or "").startswith("s_cmp"): errs.append(f"SCC for [{x}] comes from [{scc}]")
        if x.startswith("s_addc") and not (scc or "").startswith("s_add_u32"): errs.append(f"SCC for [{x}] comes from [{scc}]")
        if x.startswith("s_addc") and scc and scc.split()[1].rstrip(",")[1:] != str(int(x.split()[1].rstrip(",")[1:]) - 1): errs.append(f"carry for [{x}] comes from [{scc}]")
        if x.startswith(SW): scc = x
    return errs

def diag_tail(E, cfg):
    if cfg.get("gspin"): E("KF_hold:\ns_sleep 16\ns_memrealtime s[44:45]\ns_waitcnt lgkmcnt(0)\ns_sub_u32 s44, s44, s86\ns_cmp_lt_u32 s44, 9000\ns_cbranch_scc1 KF_hold")
    stamp_flush(E, cfg, 62, 0, S_W)
    if cfg.get("gspin"):
        ia, opa, ib, opb, mult = cfg["gspin"]
        E("s_waitcnt vmcnt(0)\nbuffer_wbl2 sc1\ns_waitcnt vmcnt(0)\nv_mov_b32 v1, 0\nv_mov_b32 v10, 1\ns_mov_b64 exec, 1\nglobal_atomic_add v11, v1, v10, s[60:61] offset:60 sc0 sc1\ns_waitcnt vmcnt(0)\ns_mov_b64 exec, -1")
        E("v_readfirstlane_b32 s40, v11\ns_cmp_lg_u32 s40, 1023\ns_cbranch_scc1 KF_end\nv_lshlrev_b32 v1, 5, v0")
        for k in range(16):
            E(f"global_load_dword v{32+k}, v1, s[82:83] offset:{4*ia} sc1\nglobal_load_dword v{48+k}, v1, s[82:83] offset:{4*ib} sc1\nv_add_u32 v1, 2048, v1")
        E("s_waitcnt vmcnt(0)")
        for k in range(1, 16): E(f"v_{opa}_u32 v32, v32, v{32+k}\nv_{opb}_u32 v48, v48, v{48+k}")
        E("s_nop 1\nv_readlane_b32 s40, v32, 0\nv_readlane_b32 s41, v48, 0")
        for l in range(1, 64): E(f"v_readlane_b32 s42, v32, {l}\nv_readlane_b32 s43, v48, {l}\ns_nop 0\ns_{opa}_u32 s40, s40, s42\ns_{opb}_u32 s41, s41, s43")
        E(f"s_sub_u32 s40, s41, s40\nv_mov_b32 v1, 0\nv_mov_b32 v10, s40\nglobal_store_dword v1, v10, s[60:61] offset:56\ns_memrealtime s[42:43]\ns_mul_i32 s40, s40, {mult}\ns_min_u32 s40, s40, 100000\ns_waitcnt lgkmcnt(0)")
        E("KF_spin:\ns_memrealtime s[44:45]\ns_waitcnt lgkmcnt(0)\ns_sub_u32 s44, s44, s42\ns_cmp_lt_u32 s44, s40\ns_cbranch_scc1 KF_spin")

def acc2(i, jt): return 32 + (i * 4 + jt) * 4
def acc1(i, jt): return ("v", 160 + (i * 4 + jt) * 4) if i < 6 else ("a", ((i - 6) * 4 + jt) * 4)
def accs(st, i, jt):
    if st >= ND: return vr(acc2(i, jt), 4)
    k, r = acc1(i, jt); return vr(r, 4, k)
def wf(st, jt, s): return A_WF + (st & 1) * 32 + (jt * 2 + s) * 4
def af(k, s): return A_AF + (k & 3) * 8 + s * 4
def dma2(st, va=V_A, vd=V_D):
    b = st % 3
    if st >= ND:
        c = st - ND
        sa, sw = f"s_add_u32 s{S_SA}, s{S_AC}, {((c&1)*128 + (c>>1)*8)*32768}", f"s_add_u32 s{S_SW}, s{S_WC}, {(c>>1)*128}"
        R, V = (RC1 if c & 1 else RC0), V_C
    else:
        oc, row = (28 * (st & 3) + 2 * (st >> 2), 224 * (st & 3) + 16 * (st >> 2)) if st < 12 else (56 * (st - 12), 448 * (st - 12))
        sa, sw = f"s_add_u32 s{S_SA}, s{S_AD}, {oc*32768}", f"s_add_u32 s{S_SW}, s{S_WD}, {row*2048}"
        R, V = RWD, vd
    w = [sw, f"s_add_u32 m0, s{S_MW2}, {b*16384}"] + [f"buffer_load_dwordx4 v{V+j}, s[{R}:{R+3}], s{S_SW} offen offset:{j*1024} lds @st{st}" for j in range(4)]
    a = [sa]
    for j in range(8):
        if j & 3 == 0: a.append(f"s_add_u32 m0, s{S_MA}, {b*32768 + (j>>2)*4096}")
        a.append(f"buffer_load_dwordx4 v{va + (j>>2)*2 + (j&1)}, s[{RWS}:{RWS+3}], s{S_SA} offen offset:{(j&3)*1024} lds @st{st}")
    return w, a
def plain(ops):
    return [x + ("\ns_nop 0" if " m0," in x else "") for x in ops]
def rd_a(st, i, k):
    b = st % 3
    return [(f"ds_read_b128 {ar(af(k,s),4)}, v{V_RA + (b==2)} offset:{(b&1)*32768 + s*16384 + i*256}", ("a", k & 3, s)) for s in (0, 1)]
def rd_w(st, jt):
    b = st % 3; out = []
    for s in (0, 1):
        r = wf(st, jt, s)
        if st >= ND: out.append((f"ds_read_b128 {ar(r,4)}, v{V_RC+s} offset:{b*16384 + jt*2048}", ("w2", st & 1, jt, s, 0)))
        else: out += [(f"ds_read_b64_tr_b16 {ar(r+2*h,2)}, v{V_RD+jt} offset:{b*16384 + s*8192 + h*1024}", ("w2", st & 1, jt, s, h)) for h in (0, 1)]
    return out
def group2(S, st, i, k):
    for jt in range(4):
        for n_, s in enumerate((1, 0) if SNAKE[0] and jt & 1 else (0, 1)):
            a = accs(st, i, jt)
            S.mfma(f"{MF} {a}, {ar(wf(st,jt,s),4)}, {ar(af(k,s),4)}, {'0' if st in (0, ND) and n_ == 0 else a}", [("a", k & 3, s), ("w2", st & 1, jt, s, 0), ("w2", st & 1, jt, s, 1)])

def epilogue1(E, cfg):
    LAM, L16, SA = 2, 4, 10
    re_ = lambda n: 32 + 2 * n
    im_ = lambda n: 64 + 2 * n
    unstash(E, LAM, A_LAM); unstash(E, L16, A_L16)
    E("v_and_b32 v25, 15, v0\nv_lshrrev_b32 v26, 4, v0")
    hr, hi = re_(0), im_(0)
    for n in range(1, 16):
        nr, ni = (6, 8) if n & 1 else (12, 14)
        E(pkf(nr, hr, LAM, re_(n), 0)); E(pkf(ni, hi, LAM, im_(n), 0))
        E(pkf(nr, hi, LAM, nr, 1, True)); E(pkf(ni, hr, LAM, ni, 1))
        hr, hi = nr, ni
    E(f"v_mov_b32 v{SA}, v{hr}\nv_mov_b32 v{SA+1}, v{hi}")
    cfma(E, 12, 13, L16, L16 + 1, hr, hi, hr + 1, hi + 1)
    E(f"s_lshl_b32 s{T0}, s{S_WM}, 10\ns_lshl_b32 s{T1}, s{S_WN}, 7\ns_add_u32 s{T0}, s{T0}, s{T1}\ns_add_u32 s{T0}, s{T0}, {SCR}")
    E(f"v_lshlrev_b32 v27, 8, v26\nv_lshl_add_u32 v27, v25, 3, v27\nv_add_u32 v27, s{T0}, v27\nds_write_b64 v27, v[12:13]")
    E(f"s_lshl_b32 s{T0}, s{S_MT}, 12\ns_lshl_b32 s{T1}, s{S_WM}, 11\ns_add_u32 s70, s{T0}, s{T1}\ns_add_u32 s70, s70, {ACT_OFF}")
    E(f"s_mul_i32 s{T0}, s{S_NT}, 14\ns_mul_i32 s{T1}, s{S_WN}, 7\ns_add_u32 s{T0}, s{T0}, s{T1}\ns_add_u32 s{T0}, s{T0}, 256\ns_lshl_b32 s{T0}, s{T0}, 15\ns_add_u32 s71, s70, s{T0}")
    E("v_lshrrev_b32 v28, 1, v26\nv_and_b32 v29, 1, v26\nv_lshlrev_b32 v1, 15, v28\nv_lshl_add_u32 v1, v29, 8, v1\nv_lshl_add_u32 v1, v25, 4, v1\nv_add_u32 v16, s71, v1")
    E(f"v_lshl_add_u32 v1, v29, 1, v28\nv_lshlrev_b32 v1, 8, v1\nv_lshl_add_u32 v1, v25, 4, v1\nv_add_u32 v1, s71, v1\nv_add_u32 v17, {6*32768}, v1")
    E(f"s_lshl_b32 s{T0}, s{S_NT}, 2\ns_lshl_b32 s{T1}, s{S_WN}, 1\ns_add_u32 s{T0}, s{T0}, s{T1}\ns_lshl_b32 s{T0}, s{T0}, 15\ns_add_u32 s72, s70, s{T0}")
    E("v_lshl_add_u32 v1, v28, 7, v29\nv_lshlrev_b32 v1, 15, v1\nv_lshl_add_u32 v1, v25, 4, v1\nv_add_u32 v18, s72, v1")
    E(f"v_mov_b32 v30, {hexf(-2*0.7978845608028654*LOG2E)}\nv_mov_b32 v31, {hexf(-2*0.7978845608028654*LOG2E*0.044715)}\nv_mov_b32 v19, s{S_TAG}")
    E(f"s_lshl_b32 s{T0}, s{S_NB}, 4\ns_lshl_b32 s{T1}, s{S_W}, 2\ns_add_u32 s{T0}, s{T0}, s{T1}\nv_and_b32 v27, 7, v0\nv_lshlrev_b32 v27, 9, v27\nv_add_u32 v24, s{T0}, v27")
    E("s_waitcnt lgkmcnt(0)\ns_barrier")
    E(f"s_cmp_eq_u32 s{S_MT}, 7\ns_cselect_b32 s73, 1, s{S_W}\ns_cmp_lg_u32 s73, 0\ns_cbranch_scc1 KF_nopub")
    E(f"v_and_b32 v1, 31, v0\nv_lshlrev_b32 v1, 3, v1\nv_add_u32 v27, {SCR}, v1")
    slot = [12, 14, 20, 22]
    E("ds_read_b64 v[6:7], v27")
    for s in range(1, 5): E(f"ds_read_b64 {vr(slot[s-1],2)}, v27 offset:{256*s}")
    unstash(E, 28, A_L32P)
    a, b = 6, 8
    for s in range(1, 8):
        E(f"s_waitcnt lgkmcnt({min(3, 7-s)})")
        cur = slot[(s - 1) & 3]
        cfma(E, b, b + 1, 28, 29, a, a + 1, cur, cur + 1); a, b = b, a
        if s + 4 < 8: E(f"ds_read_b64 {vr(cur,2)}, v27 offset:{256*(s+4)}")
    E(f"s_lshl_b32 s{T0}, s{S_MT}, 14\ns_lshl_b32 s{T1}, s{S_NT}, 9\ns_add_u32 s{T0}, s{T0}, s{T1}")
    E(f"v_mov_b32 v12, v{a}\nv_mov_b32 v13, s{S_TAG}\nv_mov_b32 v14, v{a+1}\nv_mov_b32 v15, s{S_TAG}\nv_lshlrev_b32 v1, 1, v1")
    E(f"buffer_store_dwordx4 v[12:15], v1, s[{RAGG}:{RAGG+3}], s{T0} offen sc1\ns_nop 1")
    E("KF_nopub:")
    pt(E, cfg, "pub")
    def setup2():
        srd(E, RWD, 56, 3584 * 2048); srd(E, RC0, 46, 1024 * 2048); srd(E, RC1, 48, 1024 * 2048)
        E(f"s_lshl_b32 s{S_AC}, s{S_KQ}, 20\ns_mul_i32 s{S_AD}, s{S_KQ}, {112*32768}\ns_add_u32 s{S_AD}, s{S_AD}, {256*32768}")
        E(f"s_lshl_b32 s{S_WC}, s{S_KQ}, 9\ns_mul_i32 s{S_WD}, s{S_KQ}, {896*2048}")
        E(f"s_lshl_b32 s{S_MA}, s{S_W}, 13\ns_lshl_b32 s{S_MW2}, s{S_W}, 12\ns_add_u32 s{S_MW2}, s{S_MW2}, {WOFF}")
        E(f"s_sub_u32 s{S_RECV}, s{S_FILL}, 12288\ns_mul_i32 s{T1}, s{S_KQ}, 49152\ns_sub_u32 s{T0}, s{S_RECV}, s{T1}")
        for sp in range(3): E(f"s_xor_b32 s{T1}, s{S_KXR}, {sp}\ns_mul_i32 s{T1}, s{T1}, 49152\ns_add_u32 s{T1}, s{T1}, {(2-sp)*4096}\ns_add_u32 s{S_SEND+sp}, s{T0}, s{T1}")
        E(f"s_lshl_b32 s{T0}, s{S_MT}, 2\ns_add_u32 s{T0}, s{T0}, s{S_KQ}\ns_lshl_b32 s{T0}, s{T0}, 12\ns_add_u32 s{S_FGRP}, s{T0}, {FLG_OFF}")
        E(f"s_lshl_b32 s{T0}, s{S_NB}, 9\ns_add_u32 s{S_FOWN}, s{S_FGRP}, s{T0}")
        E(f"v_and_b32 v1, 3, v0\nv_min_u32 v1, 2, v1\nv_add_u32 v28, 1, v1\nv_xor_b32 v28, s{S_KQ}, v28\nv_subrev_u32 v28, s{S_KQ}, v28\nv_lshlrev_b32 v28, 12, v28\nv_lshl_add_u32 v28, v1, 4, v28")
        E(f"s_lshl_b32 s{T1}, s{S_W}, 2\ns_add_u32 s{T0}, s{T0}, s{T1}\ns_add_u32 s{T0}, s{T0}, 384\nv_add_u32 v28, s{T0}, v28\nv_and_b32 v1, 8, v0\nv_cmp_eq_u32 vcc, 0, v1")
        E(f"v_and_b32 v143, 31, v0\nv_lshlrev_b32 v143, 2, v143\nv_cndmask_b32 v28, v28, v24, vcc\nv_add_u32 v29, s{S_FGRP}, v28")
        E(f"s_lshl_b32 s{S_GSRC}, s{S_MT}, 11\ns_lshl_b32 s{T1}, s{S_WN}, 10\ns_add_u32 s{S_GSRC}, s{S_GSRC}, s{T1}\ns_add_u32 s{S_GSRC}, s{S_GSRC}, {G_OFF}\ns_add_u32 s{S_GLDS}, s{T1}, {GLDS}")
        E(f"s_lshl_b32 s{T0}, s{S_KXR}, 1\ns_and_b32 s{T1}, s{T0}, 2\ns_and_b32 s{T2}, s{T0}, 4")
        E(f"v_xor_b32 v1, s{T1}, v26\nv_lshlrev_b32 v1, 8, v1\nv_lshl_add_u32 v1, v25, 4, v1")
        E(f"s_mul_i32 s{T0}, s{S_W}, {7*32768}\ns_lshl_b32 s{T1}, s{S_MT}, 12\ns_add_u32 s{T0}, s{T0}, s{T1}\ns_add_u32 s{T0}, s{T0}, {ACT_OFF}\ns_lshl_b32 s{T2}, s{T2}, 8")
        E(f"s_add_u32 s{T1}, s{T0}, s{T2}\ns_sub_u32 s{T3}, s{T0}, s{T2}")
        E(f"v_add_u32 v{H_A}, s{T1}, v1\nv_add_u32 v{H_A+1}, s{T3}, v1\nv_add_u32 v{H_A+2}, 0x8000, v{H_A}\nv_add_u32 v{H_A+3}, 0x8000, v{H_A+1}")
        E(f"v_lshlrev_b32 v1, 1, v26\nv_xor_b32 v1, v1, v25\nv_lshlrev_b32 v1, 4, v1\ns_mul_i32 s{T0}, s{S_W}, 56\nv_add_u32 v28, s{T0}, v26\nv_lshlrev_b32 v28, 11, v28")
        E(f"s_lshl_b32 s{T0}, s{S_NB}, 8\nv_add_u32 v28, s{T0}, v28\nv_add_u32 v{H_D}, v28, v1\nv_add_u32 v{H_D+1}, {4*2048 - 1024}, v{H_D}")
        E(f"v_xor_b32 v1, 128, v1\nv_add_u32 v{H_D+2}, v28, v1\nv_add_u32 v{H_D+2}, {8*2048 - 2048}, v{H_D+2}\nv_add_u32 v{H_D+3}, {4*2048 - 1024}, v{H_D+2}")
    def store_quad(R, voff, soff, imm, tag):
        E(f"buffer_store_dwordx4 v[{R}:{R+3}], v{voff}, s[{RWS}:{RWS+3}], {soff} offen offset:{imm} {cfg.get('act_aux', 'sc1')} @{tag}")
    POLL = lambda off: f"buffer_load_dword v27, v143, s[{RWS}:{RWS+3}], s{S_FOWN} offen offset:{off} sc1"
    wq = [x for st in range(3) for x in plain(dma2(st, H_A, H_D)[0])]
    def some(q, n):
        while q and n:
            x = q.pop(0); E(x); n -= x.startswith("buffer")
    aq = [x for st in range(3) for x in plain(dma2(st, H_A, H_D)[1])]
    AG = 192
    agg = [f"buffer_load_dwordx4 v[{AG+4*k}:{AG+4*k+3}], v{136+k}, s[{RAGG}:{RAGG+3}], 0 offen sc1" for k in range(7)]
    for j in range(3):
        G = 96 + 64 * j; U = G + 32
        if j == 2:
            U = 96
            for r in range(32): E(f"v_accvgpr_read_b32 v{U+r}, a{r}")
        E(f"s_mov_b32 s74, {2*j*32768}")
        for i in range(0, 8, 2):
            R = G + 4 * i
            R_ = Rec(); gelu_quads(R_, [(G + 4 * i + 2 * k, U + 4 * i + 2 * k) for k in range(4)])
            for k, x in enumerate(R_.L):
                E(x)
                if j >= 1 and k in (11, 27): some(wq, 1)
            for k in range(4): E(f"v_cvt_pk_bf16_f32 v{R+k}, v{U+4*i+2*k}, v{U+4*i+2*k+1}")
            E(f"s_nop 1\nv_permlane16_swap_b32 v{R}, v{R+2}\nv_permlane16_swap_b32 v{R+1}, v{R+3}")
            if j == 1 and i == cfg.get("f1_at", 2):
                pt(E, cfg, "f1pre")
                E(f"s_waitcnt vmcnt({E.vm('glu0')})")
                pt(E, cfg, "f1post")
                E(f"buffer_store_dword v19, v29, s[{RWS}:{RWS+3}], 0 offen sc1")
            store_quad(R, 16, "s74", i * 256, f"glu{j}")
        if j == 0:
            pt(E, cfg, "p0"); setup2()
            if cfg.get("ctouch"): code_touch(E, "KF_k2")
        if j == 1: pt(E, cfg, "p1")
    pt(E, cfg, "glu")
    E(f"s_sub_u32 s{T0}, s{S_MT}, 7\ns_lshl_b32 s{T0}, s{T0}, 14\ns_lshl_b32 s{T1}, s{S_NT}, 9\ns_add_u32 s{T0}, s{T0}, s{T1}\ns_lshl_b32 s{T1}, s{S_WN}, 8\ns_add_u32 s{T0}, s{T0}, s{T1}")
    E(f"v_lshlrev_b32 v136, 4, v25\nv_add_u32 v136, s{T0}, v136")
    for k in range(1, 7): E(f"v_add_u32 v{136+k}, {0x4000*k}, v136")
    E(POLL(0) + " @poll")
    M = 96
    for r in range(32):
        E(f"v_accvgpr_read_b32 v{M+r}, a{32+r}")
        if r % 4 == 3 and r < 28: E(agg[r >> 2] + " @agg")
    for i in range(0, 8, 2):
        for r in range(4): E(f"v_permlane32_swap_b32 v{M+4*i+r}, v{M+4*i+4+r}")
    for i in (0, 4):
        R = M + 4 * i
        q = [(M + 4 * ii + 2 * k, M + 4 * ii + 4 + 2 * k) for ii in (i, i + 2) for k in (0, 1)]
        gelu_quads(E, q)
        for k in range(4): E(f"v_cvt_pk_bf16_f32 v{R+k}, v{q[k][1]}, v{q[k][1]+1}")
        E(f"s_nop 1\nv_permlane16_swap_b32 v{R}, v{R+2}\nv_permlane16_swap_b32 v{R+1}, v{R+3}")
        store_quad(R, 17, "0", i * 256, "glu3")
    pt(E, cfg, "mix")
    E(f"s_waitcnt vmcnt({E.vm('poll')})\nv_cmp_ne_u32 vcc, s{S_TAG}, v27")
    SG = 144
    E(f"s_lshl_b32 s{T1}, s{S_WN}, 7\ns_add_u32 s{T1}, s{T1}, {SCR}\nv_lshlrev_b32 v1, 3, v25\nv_add_u32 v1, s{T1}, v1")
    for s in range(7): E(f"ds_read_b64 v[{SG+2*s}:{SG+2*s+1}], v1 offset:{256*s}")
    E(cold_poll("KF_f1", POLL(0), f"v_cmp_ne_u32 vcc, s{S_TAG}, v27"))
    pt(E, cfg, "f1ok")
    B = Rec()
    unstash(B, 20, A_L256); unstash(B, 22, A_L32)
    B(f"s_lshl_b32 s{T1}, s{S_WM}, 2\nv_add_u32 v28, s{T1}, v26")
    B(f"s_mul_i32 s{T1}, s{S_W}, 3072\ns_add_u32 s{T1}, s{T1}, {TRS}\nv_lshlrev_b32 v27, 7, v26\nv_lshl_add_u32 v27, v25, 3, v27\nv_add_u32 v14, s{T1}, v27")
    B("v_lshrrev_b32 v27, 5, v0\nv_lshlrev_b32 v27, 9, v27\nv_and_b32 v29, 3, v0\nv_lshl_add_u32 v27, v29, 7, v27")
    B(f"v_and_b32 v29, 1, v26\nv_lshl_add_u32 v27, v29, 6, v27\nv_bfe_u32 v29, v0, 2, 2\nv_lshl_add_u32 v27, v29, 3, v27\nv_add_u32 v15, s{T1}, v27")
    chk = "v_mov_b32 v164, 0\n" + "\n".join(f"s_cmp_gt_u32 s{S_MT}, {6-k}|s_cselect_b32 s{T3}, -1, 0\nv_xor_b32 v165, s{S_TAG}, v{AG+4*k+1}\nv_xor_b32 v166, s{S_TAG}, v{AG+4*k+3}\n"
          f"v_or_b32 v165, v165, v166\nv_and_or_b32 v164, v165, s{T3}, v164" for k in range(7)) + "\nv_cmp_ne_u32 vcc, 0, v164"
    B("@agg\n" + chk + "\ns_nop 3")
    B(cold_poll("KF_ag", "\n".join(agg), chk.replace("|", "\n")).replace("\n", "|"))
    B("s_waitcnt lgkmcnt(0)")
    srd(B, ROUT, 96, 2048 * 4096)
    B(f"v_mov_b32 v8, v{AG}\nv_mov_b32 v9, v{AG+2}")
    a, b = 8, 6
    for k in range(1, 7):
        cfma(B, b, b + 1, 20, 21, a, a + 1, AG + 4 * k, AG + 4 * k + 2); a, b = b, a
    CR, CI = 160, 162
    B(f"v_mov_b32 v{CR}, v{a}\nv_mov_b32 v{CI}, v{a+1}")
    for s in range(7):
        B(f"v_cmp_lt_u32 vcc, {s}, v28")
        cfma(B, b, b + 1, 22, 23, a, a + 1, SG + 2 * s, SG + 2 * s + 1); a, b = b, a
        B(f"v_cndmask_b32 v{CR}, v{CR}, v{a}, vcc\nv_cndmask_b32 v{CI}, v{CI}, v{a+1}, vcc")
    cfma(B, CR + 1, CI + 1, L16, L16 + 1, CR, CI, SA, SA + 1)
    unstash(B, 20, A_C2)
    B("@f2")
    hr, hi = CR, CI
    for n in range(16):
        B(pkf(re_(n), hr, LAM, re_(n), 0)); B(pkf(im_(n), hi, LAM, im_(n), 0))
        B(pkf(re_(n), hi, LAM, re_(n), 1, True)); B(pkf(im_(n), hr, LAM, im_(n), 1))
        hr, hi = re_(n), im_(n)
    step = cfg.get("a_step", 9)
    for k, x in enumerate(B.L):
        if k % step == 0: some(aq, 1)
        if x == "@agg": E(f"s_waitcnt vmcnt({E.vm('agg')})")
        elif x == "@f2": E(f"s_waitcnt vmcnt({E.vm('glu3')})\nbuffer_store_dword v19, v24, s[{RWS}:{RWS+3}], s{S_FGRP} offen offset:128 sc1")
        else: E(x.replace("|", "\n"))
    some(aq, 99)
    assert not aq and not wq
    pt(E, cfg, "f2")
    def trd(i):
        R = 192 + 4 * i
        E(f"ds_read_b64_tr_b16 v[{R}:{R+1}], v15 offset:{(i%3)*1024}\nds_read_b64_tr_b16 v[{R+2}:{R+3}], v15 offset:{(i%3)*1024+32}")
    for i in range(10):
        if i < 8:
            T = 96 + 8 * (i & 1); R = 224 + 4 * i
            for k in (0, 1):
                n = 2 * i + k
                E(pkm(T + 4 * k, re_(n), 20, 0)); E(pkm(T + 4 * k + 2, im_(n), 20, 0, True))
                E(pkf(T + 4 * k, im_(n), 20, T + 4 * k, 1, True)); E(pkf(T + 4 * k + 2, re_(n), 20, T + 4 * k + 2, 1, True))
            for k in (0, 1):
                E(f"v_cvt_pk_bf16_f32 v{R+k}, v{T+4*k}, v{T+4*k+1}\nv_cvt_pk_bf16_f32 v{R+2+k}, v{T+4*k+2}, v{T+4*k+3}")
        if i == 8: setup2b(E)
        if i >= 2:
            E(f"s_waitcnt lgkmcnt({4 if i < 9 else 0})")
            store_quad(192 + 4 * (i - 2), 18 if i < 8 else Q_ST, "0", (i - 2) * 256, "h")
        if i < 8:
            E(f"ds_write_b64 v14, v[{R}:{R+1}] offset:{(i%3)*1024}\nds_write_b64 v14, v[{R+2}:{R+3}] offset:{(i%3)*1024+512}")
            trd(i)
    pt(E, cfg, "e1end")

def code_touch(E, label, n=[0]):
    n[0] += 1
    R = Rec()
    R(f"s_getpc_b64 s[76:77]\nKF_ct{n[0]}:\ns_add_u32 s76, s76, {label}-KF_ct{n[0]}")
    out = ["\n".join(R.L), "s_addc_u32 s77, s77, 0", f"s_lshl_b32 s78, s{S_W}, 4", "v_and_b32 v1, 15, v0", "v_add_lshl_u32 v1, v1, s78, 7", f"v_min_u32 v1, KF_last-({label}), v1", "global_load_dword a255, v1, s[76:77]"]
    if E is None: return out
    for x in out: E(x)

Q_ST, Q_TAG, Q_FLG = 136, 137, 138
def setup2b(E):
    for d, v in ((Q_ST, 18), (Q_TAG, 19), (Q_FLG, 24)): E(f"v_mov_b32 v{d}, v{v}")
    for k in range(4): E(f"v_mov_b32 v{V_A+k}, v{H_A+k}\nv_mov_b32 v{V_D+k}, v{H_D+k}")
    E("v_mov_b32 v30, v26\nv_mov_b32 v31, v25\nv_mov_b32 v27, v143\nv_lshlrev_b32 v22, 4, v0")
    E(f"s_lshl_b32 s{T0}, s{S_WM}, 11\nv_lshlrev_b32 v1, 12, v30\nv_lshl_add_u32 v1, v31, 4, v1\nv_add_u32 v{V_RA}, s{T0}, v1\nv_add_u32 v{V_RA+1}, 0x10000, v{V_RA}")
    E("v_bfe_u32 v1, v0, 2, 2\nv_lshl_add_u32 v28, v30, 3, v1\nv_lshlrev_b32 v28, 8, v28\nv_and_b32 v29, 1, v0\nv_lshl_add_u32 v28, v29, 3, v28")
    E(f"v_add_u32 v28, {WOFF}, v28\nv_and_b32 v29, 1, v30\nv_lshl_add_u32 v1, v29, 2, v1\nv_lshlrev_b32 v1, 1, v1")
    E(f"v_bfe_u32 v29, v0, 1, 1\ns_lshl_b32 s{T0}, s{S_WN}, 3\nv_add_u32 v29, s{T0}, v29\nv_xor_b32 v1, v1, v29")
    for jt in range(4): E(f"v_xor_b32 v29, {2*jt}, v1\nv_lshl_add_u32 v{V_RD+jt}, v29, 4, v28")

def later_setup():
    E = Rec()
    E("v_lshrrev_b32 v28, 3, v0\nv_and_b32 v29, 7, v0\nv_lshrrev_b32 v1, 1, v28\nv_xor_b32 v29, v29, v1\nv_lshlrev_b32 v29, 4, v29")
    E(f"s_lshl_b32 s{T0}, s{S_NB}, 7\ns_lshl_b32 s{T1}, s{S_W}, 5\ns_add_u32 s{T0}, s{T0}, s{T1}\nv_add_u32 v28, s{T0}, v28\nv_lshlrev_b32 v28, 11, v28")
    E(f"v_add_u32 v{V_C}, v28, v29\nv_xor_b32 v29, 64, v29\nv_add_u32 v{V_C+1}, v28, v29\nv_add_u32 v{V_C+1}, {8*2048 - 1024}, v{V_C+1}")
    E(f"v_add_u32 v{V_C+2}, {16*2048 - 2048}, v{V_C}\nv_add_u32 v{V_C+3}, {16*2048 - 2048}, v{V_C+1}")
    E(f"v_lshrrev_b32 v1, 1, v31\nv_xor_b32 v1, v1, v30\nv_lshlrev_b32 v1, 4, v1\nv_lshl_add_u32 v1, v31, 7, v1\ns_lshl_b32 s{T0}, s{S_WN}, 13\ns_add_u32 s{T0}, s{T0}, {WOFF}")
    E(f"v_add_u32 v{V_RC}, s{T0}, v1\nv_xor_b32 v{V_RC+1}, 64, v{V_RC}")
    E("v_lshrrev_b32 v1, 2, v31\nv_lshlrev_b32 v1, 5, v1\nv_and_b32 v28, 1, v31\nv_lshl_add_u32 v1, v28, 4, v1\nv_bfe_u32 v28, v31, 1, 1\nv_add_u32 v1, v1, v28")
    E(f"s_lshl_b32 s{T0}, s{S_MT}, 8\ns_lshl_b32 s{T1}, s{S_WM}, 7\ns_add_u32 s{T0}, s{T0}, s{T1}\ns_lshl_b32 s{T1}, s{S_KQ}, 2\ns_add_u32 s{T0}, s{T0}, s{T1}\nv_add_u32 v1, s{T0}, v1")
    E(f"s_lshl_b32 s{T0}, s{S_NB}, 7\ns_lshl_b32 s{T1}, s{S_WN}, 6\ns_add_u32 s{T0}, s{T0}, s{T1}\nv_lshl_add_u32 v28, v30, 2, s{T0}")
    E("v_accvgpr_write_b32 a169, v28\nv_lshl_add_u32 v1, v1, 10, v28\nv_accvgpr_write_b32 a168, v1")
    E(f"s_lshl_b32 s{T0}, s{S_WM}, 10\ns_add_u32 s{T0}, s{T0}, {GLDS}\nv_lshlrev_b32 v23, 3, v31\nv_add_u32 v23, s{T0}, v23\ns_lshl_b32 s{T1}, s{S_KXR}, 8\nv_xor_b32 v23, s{T1}, v23")
    for k in range(1, 4): E(f"v_xor_b32 v{23+k}, {256*k}, v23")
    E("v_min_u32 v27, 43, v0\nv_lshlrev_b32 v27, 2, v27")
    return E.L

def gemm2(E, cfg):
    E.age = cfg.get("age", 6)
    every = cfg.get("dma2_every", 4)
    F2POLL = f"buffer_load_dword v29, v27, s[{RWS}:{RWS+3}], s{S_FOWN} offen offset:128 sc1"
    E(f"s_waitcnt vmcnt({E.vm('st0')})\ns_barrier")
    E("KF_k2:")
    pt(E, cfg, "k2start")
    segstamp_init(E, cfg, 1, S_W)
    def add_dma(S, st, end=58):
        w, a = dma2(st); prev = ""
        for t in w + a:
            S.add(t, 0, end, "dma", 1 if (not t.startswith("buffer") or " m0," in prev) else every); prev = t
    for it in rd_a(0, 0, 0) + rd_w(0, 0) + rd_w(0, 1) + rd_a(0, 1, 1) + rd_w(0, 2) + rd_w(0, 3) + rd_a(0, 2, 2): E.ds(*it)
    S = Stream()
    for i in range(5): group2(S, 0, i, i)
    for i in range(3, 8):
        for it in rd_a(0, i, i): S.ds(*it, 8 * (i - 3), min(8 * i, 40) - LAT)
    S.add(F2POLL + " @f2", 24, 30)
    S.emit(E)
    scale = []
    for i in range(8): scale += [f"v_accvgpr_read_b32 v{V_G+i}, a{A_G+2*i}", f"v_and_b32 v{V_G+i}, 0xffff0000, v{V_G+i}"]
    for i in range(8):
        for jt in range(4):
            k, r = acc1(i, jt)
            for e in range(4):
                if k == "v": scale.append(f"v_mul_f32 v{r+e}, v{V_G+i}, v{r+e}")
                else: scale += [f"v_accvgpr_read_b32 v30, a{r+e}", f"v_mul_f32 v30, v{V_G+i}, v30", f"v_accvgpr_write_b32 a{r+e}, v30"]
    F3POLL = f"buffer_load_dword v28, v27, s[{RWS}:{RWS+3}], s{S_FOWN} offen offset:256 sc1"
    gtest = ["v_mov_b32 v1, 0"] + [x for i in range(8) for x in (f"v_accvgpr_read_b32 v30, a{A_G+2*i+1}", f"v_xor_b32 v30, s{S_TAG}, v30", "v_or_b32 v1, v1, v30")] + ["v_cmp_ne_u32 vcc, 0, v1"]
    greload = f"s_lshl_b32 s{T3}, s{S_MT}, 11\ns_add_u32 s{T3}, s{T3}, {G_OFF - GLDS}\n" + "\n".join(
        f"buffer_load_dwordx2 {ar(A_G+2*i,2)}, v{23+(i>>1)}, s[{RWS}:{RWS+3}], s{T3} offen offset:{(i&1)*128} sc1" for i in range(8))
    ls = later_setup()
    per = -(-len(scale) // 6)
    for st in range(1, NST - 2):
        S = Stream()
        for k, (s_, i) in enumerate([(st - 1, 5), (st - 1, 6), (st - 1, 7)] + [(st, i) for i in range(5)]): group2(S, s_, i, i)
        for jt in range(4):
            for it in rd_w(st, jt): S.ds(*it, 0, 24 + 2 * jt - LAT)
        for i in range(8):
            for it in rd_a(st, i, i): S.ds(*it, 8 * i, min(24 + 8 * i, 64) - LAT)
        if st == 2:
            S.at(0, lambda E: E(f"s_waitcnt vmcnt({E.vm('f2')})\nv_cmp_ne_u32 vcc, s{S_TAG}, v29"))
            S.at(2, cold_poll("KF_f2", F2POLL, f"v_cmp_ne_u32 vcc, s{S_TAG}, v29"))
            S.add("s_nop 0", 3, 58, "dma", 1)
        if st == 10:
            for t in lines([f"s_mul_i32 s{T0}, s{S_W}, {7*32768}\ns_add_u32 s{T0}, s{T0}, {6*32768}\ns_mul_i32 s{T1}, s{S_W}, {56*2048}\ns_add_u32 s{T1}, s{T1}, {48*2048}\ns_add_u32 s{T3}, s{T1}, {48*2048}",
                            f"v_add_u32 v{V_D}, s{T1}, v{V_D}\nv_add_u32 v{V_D+1}, s{T1}, v{V_D+1}\nv_add_u32 v{V_D+2}, s{T3}, v{V_D+2}\nv_add_u32 v{V_D+3}, s{T3}, v{V_D+3}",
                            f"v_add_u32 v{V_A}, s{T0}, v{V_A}\nv_add_u32 v{V_A+1}, s{T0}, v{V_A+1}\nv_add_u32 v{V_A+2}, {7*32768}, v{V_A}\nv_add_u32 v{V_A+3}, {7*32768}, v{V_A+1}"]): S.add(t, 0, 58, "dma", 0)
        if st == 12:
            for t in lines([f"s_mul_i32 s{T0}, s{S_W}, {12*32768}\ns_add_u32 s{T0}, s{T0}, {6*32768}",
                            f"v_subrev_u32 v{V_A}, s{T0}, v{V_A}\nv_subrev_u32 v{V_A+1}, s{T0}, v{V_A+1}\nv_add_u32 v{V_A+2}, 0x8000, v{V_A}\nv_add_u32 v{V_A+3}, 0x8000, v{V_A+1}"]): S.add(t, 0, 58, "dma", 0)
        add_dma(S, st + 2, 60 if st < NST - 3 else 44)
        if st == 3: S.add(f"buffer_store_dword v{Q_TAG}, v{Q_FLG}, s[{RWS}:{RWS+3}], s{S_FGRP} offen offset:256 sc1", 0, 63, "dma", 2)
        if st in (3, 4):
            for t in (ls[:len(ls)//2] if st == 3 else ls[len(ls)//2:]): S.add(t, 0, 63, "extra", 0)
        if st == 5: S.add(f"s_mov_b32 m0, s{S_GLDS}", 0, 62, "dma", 1); S.add(f"buffer_load_dwordx4 v22, s[{RWS}:{RWS+3}], s{S_GSRC} offen sc1 lds", 0, 63, "dma", 1)
        if st == 7: S.add(F3POLL, 0, 63, "dma", 2)
        if st == 8:
            for i in range(8): S.ds(f"ds_read_b64 {ar(A_G+2*i,2)}, v{23 + (i>>1)} offset:{(i&1)*128}", ("g", i), 24, 56)
        if st == 9:
            for t in gtest: S.add(t, 0, 58, "extra", 0)
            S.add(cold_poll("KF_g", greload, "\n".join(gtest)), 0, 63, "extra", 3)
        if st == 11:
            S.add(f"v_cmp_ne_u32 vcc, s{S_TAG}, v28", 30, 50, "extra", 0)
            S.add(cold_poll("KF_f3", F3POLL, f"v_cmp_ne_u32 vcc, s{S_TAG}, v28"), 0, 63, "extra", 3)
        if st in (1, 6, 13) and cfg.get("ctouch"):
            for t in code_touch(None, f"KF_k2+{8192 * (1 + (1, 6, 13).index(st))}"): S.add(t, 0, 63, "dma", 1 if t.startswith("global") else 0)
        if st >= ND:
            for t in scale[:per]: S.add(t, 30 if st == ND else 0, 63, "extra", 0)
            scale = scale[per:]
        E.drain(f"vmcnt({E.vm('st%d' % st)})"); E("s_barrier")
        segstamp(E, cfg, RWS)
        S.emit(E)
    assert not scale, len(scale)
    a_, b_ = NST - 2, NST - 1
    order = [(a_ - 1, 5), (a_ - 1, 6), (a_ - 1, 7)] + [(s_, 2 * p + ii) for p in range(4) for s_ in (a_, b_) for ii in (0, 1)]
    S = Stream()
    for k, (s_, i) in enumerate(order): group2(S, s_, i, k + 5)
    B21 = cfg.get("b21", 20)
    S.at(B21, lambda E: E(f"s_waitcnt vmcnt({E.vm('st%d' % b_)})\ns_barrier"))
    for jt in range(4):
        for it in rd_w(a_, jt): S.ds(*it, 0, 24 + 2 * jt - LAT)
        for it in rd_w(b_, jt): S.ds(*it, max(24, B21 + 1), 40 + 2 * jt - LAT)
    for k, (s_, i) in enumerate(order):
        if k >= 3:
            for it in rd_a(s_, i, k + 5): S.ds(*it, max(8 * (k - 3), B21 + 1 if s_ == b_ else 0), 8 * k - LAT)
    for i in range(8):
        for t in (f"v_accvgpr_read_b32 v{2+i}, a{A_G+2*i}", f"v_lshlrev_b32 v{2+i}, 16, v{2+i}"): S.add(t, 0, 50, "send", 0)
    S.add("v_lshlrev_b32 v10, 4, v0", 0, 50, "send", 0)
    for t in lines(["v_accvgpr_read_b32 v29, a168\nv_accvgpr_read_b32 v13, a169\nv_lshlrev_b32 v11, 1, v29\nv_add_u32 v12, 0x1000, v11\nv_lshlrev_b32 v13, 1, v13\nv_lshlrev_b32 v29, 2, v29"]): S.add(t, 0, 30, "xl", 0)
    for ii in (0, 1):
        for jt in range(4): S.add(f"buffer_load_dwordx2 {ar(A_X+(ii*4+jt)*2,2)}, v{11+ii}, s[{RX}:{RX+3}], 0 offen offset:{jt*32} @x", B21 + 1, 54, "xl", 2)
    for jt in range(4): S.add(f"global_load_dwordx2 {ar(A_DS+jt*2,2)}, v13, s[80:81] offset:{jt*32} @x", B21 + 1, 54, "xl", 2)
    done = {i: 8 * k for k, (s_, i) in enumerate(order) if s_ == b_}
    for i in range(6):
        for a in (0, 1):
            R = acc1(i, 2 * a)[1]; t0 = done[i] + 4 * a + 6
            for jt in (2 * a, 2 * a + 1):
                d = acc2(i, jt); c = acc1(i, jt)[1]
                for e in range(4): S.add(f"v_fma_f32 v{d+e}, v{d+e}, v{2+i}, v{c+e}", t0, t0 + 16, "send", 0)
            for k in range(4):
                d = acc2(i, 2 * a + (k >> 1)) + 2 * (k & 1)
                S.add(f"v_cvt_pk_bf16_f32 v{R+k}, v{d}, v{d+1}", t0, t0 + 16, "send", 0)
            S.add(f"buffer_store_dwordx4 {vr(R,4)}, v10, s[{RWS}:{RWS+3}], s{S_SEND+(i>>1)} offen offset:{((i&1)*2+a)*1024} sc1 @send", t0, t0 + 16, "send", 0)
    E.drain(f"vmcnt({E.vm('st%d' % a_)})"); E("s_barrier")
    segstamp(E, cfg, RWS)
    for x in S.emit(E, True): put(E, x)
    E.drain()
    pt(E, cfg, "loop2")
    epilogue2(E, cfg)

def epilogue2(E, cfg):
    P = lambda r: vr(r, 2)
    RV = lambda k, u: 64 + (k * 4 + u) * 4
    E(f"s_add_u32 s{T0}, s{S_RECV}, 4096\ns_add_u32 s{T1}, s{S_RECV}, 8192")
    so = [S_RECV, T0, T1]
    rl = lambda k: [f"buffer_load_dwordx4 {vr(RV(k,u),4)}, v10, s[{RWS}:{RWS+3}], s{so[k]} offen offset:{u*1024} sc1" for u in range(4)]
    mode = cfg.get("recv", 0)
    if mode == 0:
        for k in (2, 1):
            for x in rl(k): E(x + f" @r{k}")
    for r in range(32): E(f"v_accvgpr_read_b32 v{32+r}, a{r}")
    for i in (6, 7):
        for jt in range(4):
            d = acc2(i, jt); c = 32 + ((i - 6) * 4 + jt) * 4
            for h in (0, 2): E(f"v_pk_fma_f32 {P(d+h)}, {P(d+h)}, v[8:9], {P(c+h)} op_sel:[0,{i&1},0] op_sel_hi:[1,{i&1},1]")
    if mode == 0:
        for x in rl(0): E(x + " @r0")
    E(f"s_waitcnt vmcnt({E.vm('x')})")
    pt(E, cfg, "x")
    for jt in range(4):
        E(f"v_accvgpr_read_b32 v30, a{A_DS+2*jt}\nv_accvgpr_read_b32 v31, a{A_DS+2*jt+1}")
        E("v_lshlrev_b32 v32, 16, v30\nv_and_b32 v33, 0xffff0000, v30\nv_lshlrev_b32 v34, 16, v31\nv_and_b32 v35, 0xffff0000, v31")
        for ii in (0, 1):
            x = A_X + (ii * 4 + jt) * 2; d = acc2(6 + ii, jt)
            E(f"v_accvgpr_read_b32 v30, a{x}\nv_accvgpr_read_b32 v31, a{x+1}")
            E("v_lshlrev_b32 v36, 16, v30\nv_and_b32 v37, 0xffff0000, v30\nv_lshlrev_b32 v38, 16, v31\nv_and_b32 v39, 0xffff0000, v31")
            E("v_pk_mul_f32 v[36:37], v[36:37], v[32:33]\nv_pk_mul_f32 v[38:39], v[38:39], v[34:35]")
            E("v_cvt_pk_bf16_f32 v30, v36, v37\nv_cvt_pk_bf16_f32 v31, v38, v39")
            E("v_lshlrev_b32 v36, 16, v30\nv_and_b32 v37, 0xffff0000, v30\nv_lshlrev_b32 v38, 16, v31\nv_and_b32 v39, 0xffff0000, v31")
            for h in (0, 2): E(f"v_pk_fma_f32 {P(d+h)}, {P(36+h)}, v[8:9], {P(d+h)} op_sel:[0,{ii},0] op_sel_hi:[1,{ii},1]")
    pt(E, cfg, "skip")
    if mode == 1:
        for k in (2, 1, 0):
            for x in rl(k): E(x + f" @r{k}")
    if mode == 2 or cfg.get("ackstamp"):
        E(f"s_waitcnt vmcnt({E.vm('send')})")
        pt(E, cfg, "ack")
    if mode == 2:
        for k in (2, 1, 0):
            for x in rl(k): E(x + f" @r{k}")
    E(f"s_movk_i32 s{T3}, 0x2000")
    for k in (2, 1, 0):
        r = RV(k, 0)
        chk = f"v_max3_u32 v30, v{r}, v{r+1}, v{r+2}\nv_max3_u32 v31, v{r+3}, v{r+4}, v{r+5}\n"
        for e in range(6, 14, 4): chk += f"v_max3_u32 v30, v30, v{r+e}, v{r+e+1}\nv_max3_u32 v31, v31, v{r+e+2}, v{r+e+3}\n"
        chk += f"v_max3_u32 v30, v30, v{r+14}, v{r+15}\nv_max_u32 v30, v30, v31\nv_cmp_eq_u32 vcc, -1, v30"
        E(f"s_waitcnt vmcnt({E.vm('r%d' % k)})\n{chk}\ns_nop 3")
        E(cold_poll(f"KF_r{k}", "\n".join(rl(k)), chk))
        pt(E, cfg, f"r{k}")
        for u in range(4):
            for j2 in (0, 1):
                jt = 2 * (u & 1) + j2; d = acc2(6 + (u >> 1), jt); t = 32 + 4 * ((2 * u + j2) & 1)
                for h in (0, 1):
                    q = RV(k, u) + 2 * j2 + h
                    E(f"v_lshlrev_b32 v{t+2*h}, 16, v{q}\nv_and_b32 v{t+2*h+1}, 0xffff0000, v{q}")
                for h in (0, 2): E(f"v_pk_add_f32 {P(d+h)}, {P(d+h)}, {P(t+h)}")
                if k == 0: E(f"buffer_store_dwordx4 {vr(d,4)}, v29, s[{ROUT}:{ROUT+3}], {'s%d' % T3 if u >> 1 else '0'} offen offset:{jt*64} {cfg.get('out_aux','sc1')}")

def build(cfg=None):
    t, e = gen(cfg)
    assert not e, e[:10]
    REF = open("gated_mix__ssm_conv_s5__glu_gated_geglu__prompt.s.ref").read().split("\n")
    head = [l for l in REF if l.startswith(";") and "@launch" not in l and "Override" not in l and "grid=ceil" not in l][:18]
    ln = f"; @launch kernel={NAME} grid=(256,1,1) block=(256,1,1) lds={LDS}" if (cfg or {}).get("aslist", True) else f"; @launch grid=(256,1,1) block=(256,1,1) lds={LDS}"
    return "\n".join(head) + "\n" + ln + '\n.amdgcn_target "amdgcn-amd-amdhsa--gfx950"\n.text\n.p2align 12\n' + t + '.section .rodata,"a"\n.p2align 6\n' + kernel_desc(NAME, sgpr=102) + "\n"

if __name__ == "__main__":
    import sys, json
    cfg = json.loads(sys.argv[2]) if len(sys.argv) > 2 else {}
    s = build(cfg); open(sys.argv[1], "w").write(s); print("wrote", sys.argv[1], s.count("\n"), "lines")
```

```python
from common import *
from sched import Stream, Item, put
import re
from k1 import cmul as k1_cmul
from k1 import gate_stream, param_stream, gelu_quads, pkf, pkm, cfma, stash, unstash, A_LAM, A_C2, A_L16, A_L32, A_L256, A_L32P
NAME = "gated_mix__ssm_conv_s5__glu_gated_geglu__prompt_kernel"
MF = "v_mfma_f32_16x16x32_bf16"
GOFF = 65536; WBUF = 28688; UOFF = 14352; BOFF = GOFF + 2 * WBUF
WOFF = 98304; GLDS = 147456; SCR = GLDS + 2048; TRS = SCR + 2048; LDS = TRS + 12288
S_W, S_MT, S_NT, S_WM, S_WN = 3, 4, 5, 6, 7
RX, RW, RB, RWS, RDBG, RAGG = 8, 12, 16, 20, 24, 28
S_KX, S_KW, S_MX, S_MW, S_MB, S_CNT = 32, 33, 34, 35, 64, 65
T0, T1, T2, T3 = 66, 67, 68, 69
S_KQ, S_NB, S_KXR, S_FILL, S_TAG = 98, 99, 100, 101, 75
RWD, RC0, RC1, ROUT = RW, RB, RDBG, RAGG
S_AC, S_AD, S_WC, S_WD, S_MA, S_MW2, S_SA, S_SW = 38, 39, 40, 41, 42, 43, 44, 45
S_SEND, S_RECV, S_FOWN, S_FGRP, S_GSRC, S_GLDS = 50, 53, 54, 55, 58, 59
V_X, V_W, V_B, V_RX, V_RW, V_RM, V_RB = 2, 10, 17, 19, 21, 22, 23
V_A, V_C, V_D, V_RA, V_RC, V_RD, V_G = 2, 6, 10, 14, 16, 18, 22
H_A, H_D = 128, 20
A_XF, A_WF1 = 64, 192
A_WF, A_AF, A_G, A_X, A_DS = 32, 96, 128, 144, 160
ND, NST = 14, 22
SPIN = 0x100000
LAT = 7
TOUCH = "global_load_dword a254, v[26:27], off"
TOUCH_ADV = "v_lshl_add_u64 v[26:27], v[28:29], 0, v[26:27]"
PTS = "start,bar0,loop1,e1end,k2start,loop2,end,drained"
def pt(E, cfg, name):
    pts = cfg.get("pts", PTS).split(",")
    if name in pts: stamp(E, cfg, pts.index(name))
SLEEP = [3]
COLD = []
def cold_poll(name, reload, recheck):
    COLD.append(f"{name}_slow:\ns_mov_b32 s{T2}, {SPIN}\n{name}_again:\ns_sleep {SLEEP[0]}\n{reload}\ns_waitcnt vmcnt(0)\n{recheck}\ns_sub_u32 s{T2}, s{T2}, 1\ns_nop 3\n"
                f"s_cbranch_vccz {name}_ok\ns_cmp_lg_u32 s{T2}, 0\ns_cbranch_scc1 {name}_again\ns_branch {name}_ok")
    return f"s_cbranch_vccnz {name}_slow\n{name}_ok:"

def acc(g, i): return vr(32 + g * 32 + 4 * i, 4) if g < 7 else ar((g - 7) * 32 + 4 * i, 4)
def xf(b, s, i): return A_XF + b * 64 + (s * 8 + i) * 4
def wf1(g, s): return A_WF1 + (g % 3) * 8 + s * 4
def dma1(buf, cfg, first=False):
    dw, dx = cfg.get("dma_w", 6), cfg.get("dma_x", 4)
    W = lambda j: (f"buffer_load_dwordx4 v{V_W+j}, s[{RW}:{RW+3}], s{S_KW} offen offset:{(j&3)*1024} lds @w", dw)
    X = lambda j: (f"buffer_load_dwordx4 v{V_X+j}, s[{RX}:{RX+3}], s{S_KX} offen offset:{(j&3)*1024} lds @x", dx)
    B = lambda j: (f"buffer_load_dwordx4 v{V_B+j}, s[{RB}:{RB+3}], s{S_KX} offen offset:{j*1024} lds @x", dx)
    def blk(m, loads): return [(m, loads[0][1] - 1), (loads[0][0], 1)] + loads[1:]
    w0 = blk(f"s_add_u32 m0, s{S_MW}, {buf*WBUF}", [W(j) for j in range(4)]); w1 = blk(f"s_add_u32 m0, s{S_MW}, {buf*WBUF + 4096}", [W(j) for j in range(4, 7)])
    x0 = blk(f"s_add_u32 m0, s{S_MX}, {buf*32768}", [X(j) for j in range(4)]); x1 = blk(f"s_add_u32 m0, s{S_MX}, {buf*32768 + 4096}", [X(j) for j in range(4, 8)])
    b0 = blk(f"s_add_u32 m0, s{S_MB}, {buf*8192}", [B(0), B(1)])
    aw, ax = [(f"s_add_u32 s{S_KW}, s{S_KW}, {64*7168}", 1)], [(f"s_add_u32 s{S_KX}, s{S_KX}, 128", 1)]
    return b0 + x0 + x1 + ax + w0 + w1 + aw if first else w0 + x0 + b0 + w1 + aw + x1 + ax
def rd_x(b, s, i): return (f"ds_read_b128 {ar(xf(b,s,i),4)}, v{V_RX+s} offset:{b*32768 + i*2048}", ("x", b, s, i))
def rd_w1(b, g):
    out = []
    for s in (0, 1):
        r = wf1(g, s)
        if g < 2: out.append((f"ds_read_b128 {ar(r,4)}, v{V_RB+s} offset:{b*8192 + g*4096}", ("w", g % 3, s, 0))); continue
        if g < 8: base, off = V_RW, b * WBUF + ((g - 2) & 1) * UOFF + s * 7168 + ((g - 2) >> 1) * 32
        else: base, off = V_RM, b * WBUF + s * 7168
        out += [(f"ds_read_b64_tr_b16 {ar(r+2*h,2)}, v{base} offset:{off + h*1792}", ("w", g % 3, s, h)) for h in (0, 1)]
    return out
SNAKE = [True]
def group1(S, b, g, first=False):
    for i in range(8):
        for n_, s in enumerate((1, 0) if SNAKE[0] and i & 1 else (0, 1)):
            a = acc(g, i); w_ = ar(wf1(g, s), 4); x_ = ar(xf(b, s, i), 4); c = "0" if first and n_ == 0 else a
            S.mfma(f"{MF} {a}, {x_}, {w_}, {c}" if g < 2 else f"{MF} {a}, {w_}, {x_}, {c}", [("w", g % 3, s, 0), ("w", g % 3, s, 1), ("x", b, s, i)])
def segment(E, prev, cfg, vm, dma=(), extra=(), last=False, extra_hi=None, extra_lo=0, pin=None):
    nxt = 1 - prev; S = Stream()
    seq = [(prev, 7), (prev, 8)] + [(nxt, g) for g in range(9 if last else 7)]
    for b, g in seq: group1(S, b, g)
    for i in range(8):
        for s in (0, 1): S.ds(*rd_x(nxt, s, i), 0, 32 + 2 * i - LAT)
    for p in range(9):
        for it in rd_w1(nxt, p): S.ds(*it, 16 * p, min(16 * (p + 2), 10**6 if last else 144) - LAT)
    for k, (t, d) in enumerate(dma): S.add(t, 0, cfg.get("dma_end", 104), "dma", d if k else 1)
    for t in extra: S.add(t, extra_lo, extra_hi or len(S.mf) - 1, "extra", 0)
    if pin: S.at(*pin)
    E.drain(f"vmcnt({vm})"); E("s_barrier")
    segstamp(E, cfg, RWS)
    S.emit(E)

NPROJ = 26
def tmask(E, cfg):
    lvl = cfg.get("touch", "mall")
    if lvl == "l2": E("s_mov_b64 s[84:85], -1"); return
    if lvl == "none": E(f"s_mov_b32 s84, {hex(0xffffffff & ~((1 << NPROJ) - 1))}\ns_mov_b32 s85, -1"); return
    E(f"s_lshl_b32 s70, s{S_KQ}, 1\ns_lshl_b32 s84, 3, s70\ns_lshr_b32 s70, s{S_MT}, 2\ns_lshl_b32 s71, 0x500, s70\ns_or_b32 s84, s84, s71")
    E(f"s_mul_i32 s70, s70, 7\ns_lshl_b32 s71, 0x7f000, s70\ns_or_b32 s84, s84, s71\ns_or_b32 s84, s84, {hex(0xffffffff & ~((1 << NPROJ) - 1))}\ns_mov_b32 s85, -1")
T1ST = f"s_mov_b64 exec, {hex((1 << NPROJ) - 1)}\n{TOUCH}\n{TOUCH_ADV}\ns_mov_b64 exec, -1"
def touch_offsets(E):
    E(f"s_and_b32 s76, s{S_MT}, 3\ns_lshl_b32 s76, s76, 3\ns_add_u32 s76, s76, s{S_NB}\ns_lshl_b32 s76, s76, 2\ns_add_u32 s76, s76, s{S_W}")
    E(f"s_lshl_b32 s75, s76, 1\ns_lshl_b32 s77, s{S_KQ}, 8\ns_add_u32 s75, s75, s77\ns_lshl_b32 s75, s75, 11")
    E(f"s_lshr_b32 s77, s76, 1\ns_mul_i32 s77, s77, 7168\ns_mul_i32 s78, s{S_KQ}, 1792\ns_add_u32 s77, s77, s78\ns_sub_u32 s77, s77, {12*128}")
    E(f"s_and_b32 s79, s{S_MT}, 4\ns_lshl_b32 s79, s79, 8\ns_lshl_b32 s78, s76, 3\ns_add_u32 s79, s79, s78\ns_lshl_b32 s79, s79, 11\ns_and_b32 s76, s76, 1")
    E("v_cmp_gt_u32 vcc, 42, v0\nv_mov_b32 v28, 128\nv_mov_b32 v29, 0\nv_cndmask_b32 v24, 0, v0, vcc")
    E("v_lshlrev_b32 v30, 11, v24\nv_add_u32 v30, s79, v30\nv_cmp_le_u32 s[70:71], 8, v24\nv_cmp_le_u32 s[72:73], 10, v24\nv_cmp_le_u32 vcc, 12, v24")
    E("v_and_b32 v31, 1, v24\nv_lshlrev_b32 v31, 11, v31\nv_add_u32 v31, s75, v31\nv_cndmask_b32 v30, v30, v31, s[70:71]")
    E(f"v_lshlrev_b32 v31, 7, v24\nv_add_u32 v31, s77, v31\nv_cndmask_b32 v30, v30, v31, vcc\nv_mov_b32 v31, {64*7168}\nv_cndmask_b32 v28, v28, v31, vcc\nv_mov_b32 v31, 0")
def touch_bases(E):
    E("s_cmp_eq_u32 s76, 0\ns_cselect_b32 s78, s52, s54\ns_cselect_b32 s79, s53, s55\nv_mov_b32 v26, s36\nv_mov_b32 v27, s37")
    for m, lo in (("s[70:71]", 42), ("s[72:73]", 44), ("vcc", 78)):
        E(f"v_mov_b32 v1, s{lo}\nv_mov_b32 v25, s{lo+1}\nv_cndmask_b32 v26, v26, v1, {m}\nv_cndmask_b32 v27, v27, v25, {m}")
    E("v_lshl_add_u64 v[26:27], v[30:31], 0, v[26:27]")
def touch_rest(E):
    def sel(first, lo, off, step=None):
        E(f"v_cmp_le_u32 vcc, {first}, v24\n{off}\nv_mov_b32 v32, s{lo}\nv_mov_b32 v33, s{lo+1}\nv_lshl_add_u64 v[32:33], v[30:31], 0, v[32:33]")
        E("v_cndmask_b32 v26, v26, v32, vcc\nv_cndmask_b32 v27, v27, v33, vcc")
        if step is not None: E(f"v_mov_b32 v1, {step}\nv_cndmask_b32 v28, v28, v1, vcc")
    E(f"s_lshl_b32 s74, s2, 2\ns_add_u32 s74, s74, s{S_W}")
    E(f"s_mul_i32 s75, s74, {56*128}\ns_sub_u32 s75, s75, {26*11*128}\ns_lshl_b32 s76, s74, 11\ns_sub_u32 s77, s76, {31*512}\ns_sub_u32 s76, s76, {33*512}")
    sel(26, 56, f"v_mul_u32_u24 v30, {11*128}, v24\nv_add_u32 v30, s75, v30", 128)
    sel(31, 46, "v_lshlrev_b32 v30, 9, v24\nv_add_u32 v30, s77, v30")
    sel(33, 48, "v_lshlrev_b32 v30, 9, v24\nv_add_u32 v30, s76, v30")
    sel(35, 58, f"v_lshlrev_b32 v30, 9, v24\nv_subrev_u32 v30, {35*512}, v30")
    E(f"s_lshl_b32 s75, s{S_NT}, 6\ns_lshl_b32 s76, s{S_MT}, 20")
    sel(37, 38, "v_mov_b32 v30, s75", "0")
    sel(38, 40, "s_nop 0")
    sel(39, 50, "s_nop 0")
    sel(40, 96, "v_mov_b32 v30, s76")
    sel(41, 80, "v_mov_b32 v30, 0", 128)
    E("v_cmp_le_u32 vcc, 42, v0\nv_readlane_b32 s75, v26, 41\nv_readlane_b32 s76, v27, 41\ns_nop 1\nv_mov_b32 v32, s75\nv_mov_b32 v33, s76")
    E("v_cndmask_b32 v26, v26, v32, vcc\nv_cndmask_b32 v27, v27, v33, vcc")

def gen(cfg=None):
    cfg = cfg or {}
    SNAKE[0] = cfg.get('snake', True)
    COLD.clear(); SLEEP[0] = cfg.get("sleep", 4)
    E = Em()
    E(kernel_head(NAME))
    E("s_cmp_ge_u32 s2, 256\ns_cbranch_scc1 KF_end")
    pt(E, cfg, "start")
    E("s_load_dwordx16 s[36:51], s[0:1], 0\ns_load_dwordx8 s[52:59], s[0:1], 80\ns_load_dwordx4 s[60:63], s[0:1], 120\ns_load_dwordx2 s[80:81], s[0:1], 64\ns_load_dwordx2 s[96:97], s[0:1], 112")
    E(f"v_lshrrev_b32 v1, 6, v0\nv_and_b32 v0, 63, v0\nv_readfirstlane_b32 s{S_W}, v1")
    E(f"s_and_b32 s{S_KQ}, s2, 3\ns_and_b32 s{T0}, s2, 4\ns_bfe_u32 s{T1}, s2, 0x20003\ns_add_u32 s{S_MT}, s{T0}, s{T1}\ns_lshr_b32 s{S_NB}, s2, 5")
    E(f"s_lshl_b32 s{S_NT}, s{S_KQ}, 3\ns_add_u32 s{S_NT}, s{S_NT}, s{S_NB}\ns_xor_b32 s{S_KXR}, s{S_KQ}, 3")
    E(f"s_lshr_b32 s{S_WM}, s{S_W}, 1\ns_and_b32 s{S_WN}, s{S_W}, 1")
    E("v_lshrrev_b32 v25, 3, v0\nv_and_b32 v26, 7, v0")
    E("v_lshrrev_b32 v27, 2, v25\nv_lshlrev_b32 v27, 5, v27")
    E("v_and_b32 v28, 1, v25\nv_lshl_add_u32 v27, v28, 4, v27")
    E("v_lshrrev_b32 v28, 1, v25\nv_and_b32 v29, 1, v28\nv_add_u32 v27, v27, v29")
    E("v_xor_b32 v29, v26, v28\nv_lshlrev_b32 v29, 4, v29")
    E("v_xor_b32 v30, 64, v29")
    E(f"s_lshl_b32 s{T0}, s{S_MT}, 8\ns_lshl_b32 s{T1}, s{S_WM}, 7\ns_add_u32 s{T0}, s{T0}, s{T1}")
    E(f"s_lshl_b32 s{T1}, s{S_WN}, 3\ns_add_u32 s{T0}, s{T0}, s{T1}")
    E(f"v_add_u32 v27, s{T0}, v27\nv_lshlrev_b32 v27, 11, v27\nv_add_u32 v{V_X}, v27, v29\nv_add_u32 v31, v27, v30")
    for j in range(1, 8): E(f"v_add_u32 v{V_X+j}, {(j&1)*64*2048 + (j>>1)*4096 - (j&3)*1024}, v{31 if j & 1 else V_X}")
    E(f"s_lshl_b32 s{T0}, s{S_NT}, 5\ns_lshl_b32 s{T1}, s{S_WN}, 4\ns_add_u32 s{T0}, s{T0}, s{T1}")
    E(f"v_add_u32 v27, s{T0}, v25\nv_lshlrev_b32 v27, 11, v27")
    E(f"v_add_u32 v{V_B}, v27, v29\nv_add_u32 v{V_B+1}, v27, v30\nv_add_u32 v{V_B+1}, {8*2048 - 1024}, v{V_B+1}")
    E(f"s_mul_i32 s{T1}, s{S_NT}, 224\ns_mul_i32 s{T2}, s{S_WN}, {32*7168}\ns_add_u32 s{T1}, s{T1}, s{T2}\ns_movk_i32 s{T2}, 7168")
    for j in range(7):
        E(f"v_add_u32 v25, {64*j}, v0\nv_mul_u32_u24 v26, 4682, v25\nv_lshrrev_b32 v26, 16, v26")
        E("v_mul_u32_u24 v27, 14, v26\nv_sub_u32 v27, v25, v27")
        E("v_and_b32 v28, 19, v26\nv_and_b32 v29, 4, v26\nv_lshl_or_b32 v28, v29, 1, v28")
        E("v_and_b32 v29, 8, v26\nv_lshrrev_b32 v29, 1, v29\nv_or_b32 v28, v28, v29")
        E(f"s_sub_u32 s{T3}, s{T1}, {(j&3)*1024}\nv_mul_u32_u24 v28, s{T2}, v28\nv_lshl_add_u32 v28, v27, 4, v28\nv_add_u32 v{V_W+j}, s{T3}, v28")
    E(f"s_lshl_b32 s{S_MX}, s{S_W}, 13")
    E(f"s_mul_i32 s{S_MW}, s{S_WM}, {UOFF}\ns_mul_i32 s{T1}, s{S_WN}, 7168\ns_add_u32 s{S_MW}, s{S_MW}, s{T1}\ns_add_u32 s{S_MW}, s{S_MW}, {GOFF}")
    E(f"s_lshl_b32 s{S_MB}, s{S_W}, 11\ns_add_u32 s{S_MB}, s{S_MB}, {BOFF}")
    E(f"s_mov_b32 s{S_KX}, 0\ns_mov_b32 s{S_KW}, 0")
    touch_offsets(E)
    E("s_waitcnt lgkmcnt(0)")
    if cfg.get("wsbase"): E(f"s_add_u32 s62, s62, {cfg['wsbase']}\ns_addc_u32 s63, s63, 0")
    npre = cfg.get("npre", 0)
    if npre: touch_bases(E)
    for _ in range(npre): E(T1ST)
    srd(E, RX, 36, 2048 * 2048)
    E(f"s_cmp_eq_u32 s{S_WM}, 0\ns_cselect_b32 s{T2}, s42, s44\ns_cselect_b32 s{T3}, s43, s45")
    srd(E, RB, T2, 1024 * 2048)
    E(f"s_cmp_eq_u32 s{S_WM}, 0\ns_cselect_b32 s{T2}, s52, s54\ns_cselect_b32 s{T3}, s53, s55")
    srd(E, RW, T2, 1024 * 7168)
    d0 = [t + ("\ns_nop 0" if "m0" in t else "") for t, _ in dma1(0, cfg, True)]
    nfirst = cfg.get("nfirst", 14)
    for t in d0[:nfirst]: E(t)
    if cfg.get("walk"): E("KF_walk:")
    if not npre: touch_bases(E); E(TOUCH_ADV)
    touch_rest(E)
    if cfg.get("walk"): E("s_branch KF_al\nKF_stubs:\n.p2align 12\nKF_al:")
    E("v_and_b32 v34, 15, v0\nv_lshrrev_b32 v35, 4, v0")
    E("v_lshrrev_b32 v36, 1, v34\nv_xor_b32 v36, v36, v35\nv_lshlrev_b32 v36, 4, v36\nv_lshl_add_u32 v36, v34, 7, v36")
    E(f"s_lshl_b32 s{T1}, s{S_WM}, 14\nv_add_u32 v{V_RX}, s{T1}, v36\nv_xor_b32 v{V_RX+1}, 64, v{V_RX}")
    E(f"s_lshl_b32 s{T1}, s{S_WN}, 11\ns_add_u32 s{T1}, s{T1}, {BOFF}\nv_xor_b32 v37, 64, v36\nv_add_u32 v{V_RB}, s{T1}, v36\nv_add_u32 v{V_RB+1}, s{T1}, v37")
    E("v_lshrrev_b32 v36, 5, v0\nv_lshlrev_b32 v36, 4, v36\nv_and_b32 v37, 1, v35\nv_lshl_add_u32 v36, v37, 2, v36")
    E("v_bfe_u32 v37, v0, 2, 2\nv_add_u32 v36, v36, v37\nv_mul_u32_u24 v36, 224, v36")
    E(f"s_mul_i32 s{T1}, s{S_WN}, 112\ns_add_u32 s{T1}, s{T1}, {GOFF}\nv_add_u32 v36, s{T1}, v36")
    E(f"v_and_b32 v37, 3, v0\nv_lshl_add_u32 v{V_RW}, v37, 3, v36")
    E(f"v_and_b32 v37, 1, v0\nv_lshl_add_u32 v36, v37, 3, v36\nv_bfe_u32 v37, v0, 1, 1\nv_mul_u32_u24 v37, {UOFF}, v37")
    E(f"v_add_u32 v36, 96, v36\nv_add_u32 v{V_RM}, v36, v37")
    srd(E, RWS, 62, WS_SIZE)
    srd(E, RDBG, 60, 256)
    E(f"s_add_u32 s{T2}, s62, {AGG_OFF}\ns_addc_u32 s{T3}, s63, 0")
    srd(E, RAGG, T2, 131072)
    if cfg.get("touch", "mall") != "l2": tmask(E, cfg)
    E(f"s_lshl_b32 s70, s{S_MT}, 8\ns_lshl_b32 s{T1}, s{S_NT}, 3\ns_add_u32 s70, s70, s{T1}\ns_lshl_b32 s{T1}, s{S_W}, 1\ns_add_u32 s70, s70, s{T1}")
    E(f"s_and_b32 s73, s70, 0xff80\ns_bfe_u32 s{T1}, s70, 0x30004\ns_lshl_b32 s{T1}, s{T1}, 1\ns_add_u32 s73, s73, s{T1}")
    E(f"s_bfe_u32 s{T1}, s70, 0x20002\ns_lshl_b32 s{T1}, s{T1}, 5\ns_add_u32 s73, s73, s{T1}")
    E(f"s_bfe_u32 s{T1}, s70, 0x10001\ns_add_u32 s73, s73, s{T1}\ns_lshl_b32 s73, s73, 11\ns_add_u32 s72, s73, {16*2048}")
    E(f"s_lshl_b32 s70, s70, 3\ns_add_u32 s70, s70, {G_OFF}")
    E(f"s_lshl_b32 s{T0}, s{S_MT}, 3\ns_add_u32 s{T0}, s{T0}, s{S_NB}\ns_lshl_b32 s{T0}, s{T0}, 2\ns_add_u32 s{T0}, s{T0}, s{S_KQ}\ns_lshl_b32 s{T0}, s{T0}, 2\ns_add_u32 s{T0}, s{T0}, s{S_W}")
    E(f"s_mul_i32 s{S_FILL}, s{T0}, 12288\ns_add_u32 s{S_FILL}, s{S_FILL}, {XCH_OFF}\nv_lshlrev_b32 v25, 4, v0")
    for r in range(64): E(f"v_accvgpr_write_b32 a{r}, 0")
    for r in range(4): E(f"v_accvgpr_write_b32 a{246+r}, -1")
    E(f"s_mov_b32 s77, {EPO_OFF}\ns_lshl_b32 s78, s2, 2\ns_add_u32 s78, s78, s{S_W}")
    E(f"s_getpc_b64 s[74:75]\nKF_pc0:\ns_lshl_b32 s76, s{S_W}, 13\nv_lshlrev_b32 v1, 7, v0\nv_add_u32 v1, s76, v1")
    for t in d0[nfirst:]: E(t)
    pt(E, cfg, "issued")
    pat = cfg.get("tpat", "LLL")
    def tfirst(c):
        if c == "L": return T1ST
        adv = f"s_mov_b64 exec, {hex((1 << NPROJ) - 1)}\n{TOUCH_ADV}\ns_mov_b64 exec, -1"
        return adv if c == "-" else f"s_and_b32 exec_lo, s84, {hex((1 << NPROJ) - 1)}\ns_mov_b32 exec_hi, 0\n{TOUCH}\n{adv}"
    for c in pat[max(npre, 1) - 1:2]: E(tfirst(c))
    E(f"buffer_load_dword a250, off, s[{RWS}:{RWS+3}], s77 sc1")
    E("global_load_dword a255, v1, s[74:75]\ns_add_u32 s74, s74, 0x8000\ns_addc_u32 s75, s75, 0\nv_min_u32 v1, KF_end-KF_pc0-0x8000, v1")
    pt(E, cfg, "prep")
    E(f"s_waitcnt vmcnt({E.vm('x')})\ns_barrier")
    pt(E, cfg, "bar0")
    segstamp_init(E, cfg, 0, S_W)
    E.vq = [("w0" if t == "w" else t) for t in E.vq]
    for g in (0, 1):
        for it in rd_w1(0, g): E.ds(*it)
        for i in range(4 * g, 4 * g + 4):
            for s in (0, 1): E.ds(*rd_x(0, s, i))
    S = Stream()
    for g in range(7): group1(S, 0, g, True)
    def midbar(E):
        pt(E, cfg, "wpre"); E(f"s_waitcnt vmcnt({E.vm('w0')})"); pt(E, cfg, "wpost"); E("s_barrier"); pt(E, cfg, "wbar")
    S.at(15, midbar)
    for g in range(2, 9):
        for it in rd_w1(0, g): S.ds(*it, max(16, 16 * (g - 2)), min(16 * g, 112) - LAT)
    d1 = [(t, min(d, 4)) for t, d in dma1(1, cfg)] + [("global_load_dword a255, v1, s[74:75]", 3), (f"buffer_load_dword a255, off, s[{RWS}:{RWS+3}], s{S_FILL} sc1", 3)]
    late = [(tfirst(pat[2]), 2)]
    d1 = d1[:cfg.get("late_at", 16)] + late + d1[cfg.get("late_at", 16):]
    for k, (t, d) in enumerate(d1): S.add(t, 0, 84, "dma", d if k else 1)
    S.emit(E)
    pt(E, cfg, "seg0")
    if "st1" in cfg.get("pts", ""): E("s_waitcnt vmcnt(2)"); pt(E, cfg, "st1")
    E.L = fix_hazards(E.L, "pro")
    pro = list(E.L)
    COLD.append(f"KF_tag:\nv_accvgpr_read_b32 v30, a250\ns_mov_b32 s78, 0x9e3779b1\nv_mul_lo_u32 v30, v30, s78\nv_mov_b32 v31, 1\nv_add_u32 v30, 0x7f4a7c15, v30\n"
                f"buffer_store_dword v30, off, s[{RWS}:{RWS+3}], s77 sc1\nbuffer_store_dwordx2 v[30:31], off, s[{RDBG}:{RDBG+3}], 0 sc1\ns_branch KF_notag")
    TS = TOUCH if cfg.get("touch", "mall") == "l2" else f"s_mov_b64 exec, s[84:85]\n{TOUCH}\ns_mov_b64 exec, -1"
    side = [(TS, 4), (TOUCH_ADV, 1), (f"buffer_store_dwordx4 a[246:249], v25, s[{RWS}:{RWS+3}], s{S_FILL} offen sc1", 3), (f"s_add_u32 s{S_FILL}, s{S_FILL}, 1024", 1)]
    E(f"s_mov_b32 s{S_CNT}, 6\nKF_loop:")
    l0 = len(E.L)
    segment(E, 0, cfg, 2, dma1(0, cfg) + side)
    segment(E, 1, cfg, 2, [("s_cmp_eq_u32 s78, 0\ns_cbranch_scc1 KF_tag\nKF_notag:", 1)] + dma1(1, cfg) + side + [(f"s_sub_u32 s{S_CNT}, s{S_CNT}, 1", 1), (f"s_cmp_lg_u32 s{S_CNT}, 0", 1)])
    body = E.L[l0:]
    E("s_cbranch_scc1 KF_loop")
    l1 = len(E.L)
    gs = [x for x in gate_stream() if not x.startswith("s_nop")]; h = cfg.get("gate_split", 90)
    addr = lines([f"s_lshl_b32 s{T1}, s{S_NT}, 5\ns_lshl_b32 s{T0}, s{S_WN}, 4\ns_add_u32 s{T0}, s{T0}, s{T1}",
        f"v_and_b32 v25, 15, v0\nv_add_u32 v25, s{T0}, v25\nv_lshlrev_b32 v25, 1, v25",
        f"v_and_b32 v30, 31, v0\nv_add_u32 v30, s{T1}, v30\nv_lshlrev_b32 v30, 1, v30\nv_lshlrev_b32 v31, 4, v0"])
    small = lines(["global_load_dwordx4 a[216:219], v31, s[58:59]\nglobal_load_dwordx4 a[220:223], v31, s[58:59] offset:1024",
        f"buffer_load_dwordx4 a[224:227], v31, s[{RX}:{RX+3}], s73 offen\nbuffer_load_dwordx4 a[228:231], v31, s[{RX}:{RX+3}], s73 offen offset:1024",
        f"buffer_load_dwordx4 a[232:235], v31, s[{RX}:{RX+3}], s72 offen\nbuffer_load_dwordx4 a[236:239], v31, s[{RX}:{RX+3}], s72 offen offset:1024",
        "global_load_ushort a240, v25, s[38:39]\nglobal_load_ushort a241, v25, s[40:41]\nglobal_load_ushort a242, v25, s[50:51]",
        "global_load_ushort a243, v30, s[38:39]\nglobal_load_ushort a244, v30, s[40:41]\nglobal_load_ushort a245, v30, s[50:51]",
        f"buffer_load_dwordx2 a[252:253], off, s[{RDBG}:{RDBG+3}], 0 sc1"])
    d13 = dma1(0, cfg) + [(x, 3) for x in small]
    for k in range(len(small)): small[k] += ' @small'
    d13 = dma1(0, cfg) + [(x, 3) for x in small]
    tagchk = ["v_accvgpr_read_b32 v3, a253", "v_accvgpr_read_b32 v2, a252", "v_cmp_eq_u32 vcc, 0, v3", "s_nop 0", "s_nop 0",
              cold_poll("KF_tg", f"buffer_load_dwordx2 v[2:3], off, s[{RDBG}:{RDBG+3}], 0 sc1", "v_cmp_eq_u32 vcc, 0, v3"), f"v_readfirstlane_b32 s{S_TAG}, v2"]
    fin = ["v_lshrrev_b32 v26, 16, v26", "v_lshrrev_b32 v28, 16, v28", "v_or_b32 v26, v26, v27", "v_or_b32 v28, v28, v29",
           f"v_mov_b32 v27, s{S_TAG}", f"v_mov_b32 v29, s{S_TAG}", f"buffer_store_dwordx4 v[26:29], off, s[{RWS}:{RWS+3}], s70 sc1"]
    segment(E, 0, dict(cfg, dma_end=104 + 3 * len(small) - 8), 2, d13, addr, extra_hi=60)
    k_ = max(i for i, x in enumerate(E.L) if x == addr[-1]); assert all("a[216:219]" not in x for x in E.L[l1:k_])
    segment(E, 1, cfg, len(small), dma1(1, cfg), gs[:h], extra_lo=30, pin=(29, lambda E: E(f"s_waitcnt vmcnt({E.vm('small')})")))
    segment(E, 0, cfg, 0, (), tagchk + gs[h:] + fin + [x for x in param_stream() if not x.startswith("s_nop")], last=True)
    E.drain()
    pt(E, cfg, "loop1")
    E.vq = []
    epilogue1(E, cfg)
    gemm2(E, cfg)
    pt(E, cfg, "end")
    if cfg.get("stamps"): E("s_waitcnt vmcnt(0)")
    pt(E, cfg, "drained")
    diag_tail(E, cfg)
    E("KF_end:\ns_endpgm")
    E.L[l1:] = fix_hazards(E.L[l1:], "tail")
    errs = check(pro + body + body + E.L[l1:], "kf") + flag_check(E.L)
    for c in COLD:
        errs += check(c.split("\n"), "cold"); E(c)
    E.L.insert(len(E.L) - 1, "KF_last:")
    if cfg.get("align", True): E.L = align8(E.L)
    if cfg.get("walk"):
        for _ in range(2):
            L, n = add_pads([x for x in E.L], "KF_al", "KF_p")
        k = L.index("KF_stubs:")
        stubs = []
        for p in range(n):
            nx = p + 4 if p + 4 < n else p % 4
            stubs += [f"KF_ps{p}:", "s_sub_u32 s75, s75, 1", "s_cmp_eq_u32 s75, 0", "s_cbranch_scc1 KF_walked", f"s_branch KF_p{nx}"]
        L[k + 1:k + 1] = stubs
        k = L.index("KF_walk:")
        head = [f"s_bfe_u32 s74, s2, 0x20003", "s_lshl_b32 s74, s74, 2", f"s_add_u32 s74, s74, s{S_W}", f"s_sub_u32 s75, {n + 3}, s{S_W}", "s_lshr_b32 s75, s75, 2",
                f"s_cmp_ge_u32 s74, {n}", f"s_cselect_b32 s74, s{S_W}, s74", "s_mov_b64 exec, 0"]
        for p in range(n - 1): head += [f"s_cmp_eq_u32 s74, {p}", f"s_cbranch_scc1 KF_p{p}"]
        head += [f"s_branch KF_p{n-1}", "KF_walked:", "s_mov_b64 exec, -1"]
        L[k + 1:k + 1] = head
        E.L = L
    return E.text(), errs

def flag_check(L):
    errs = []; lastv = None; prev = ""; scc = None
    SW = ("s_add_", "s_sub_", "s_addc", "s_lshl", "s_lshr", "s_and_", "s_or_", "s_xor", "s_bfe", "s_cmp", "s_min", "s_max")
    for x in L:
        if x.endswith(":"): continue
        if x.startswith("v_cmp") and " vcc," in x:
            if lastv: errs.append(f"vcc overwritten before use: {lastv} / {x}")
            lastv = x
        if "vcc" in x and not x.startswith("v_cmp"): lastv = None
        if x.startswith(("s_cselect", "s_cbranch_scc")) and not (scc or "").startswith("s_cmp"): errs.append(f"SCC for [{x}] comes from [{scc}]")
        if x.startswith("s_addc") and not (scc or "").startswith("s_add_u32"): errs.append(f"SCC for [{x}] comes from [{scc}]")
        if x.startswith("s_addc") and scc and scc.split()[1].rstrip(",")[1:] != str(int(x.split()[1].rstrip(",")[1:]) - 1): errs.append(f"carry for [{x}] comes from [{scc}]")
        if x.startswith(SW): scc = x
    return errs

def diag_tail(E, cfg):
    if cfg.get("gspin"): E("KF_hold:\ns_sleep 16\ns_memrealtime s[44:45]\ns_waitcnt lgkmcnt(0)\ns_sub_u32 s44, s44, s86\ns_cmp_lt_u32 s44, 9000\ns_cbranch_scc1 KF_hold")
    stamp_flush(E, cfg, 62, 0, S_W)
    if cfg.get("gspin"):
        ia, opa, ib, opb, mult = cfg["gspin"]
        E("s_waitcnt vmcnt(0)\nbuffer_wbl2 sc1\ns_waitcnt vmcnt(0)\nv_mov_b32 v1, 0\nv_mov_b32 v10, 1\ns_mov_b64 exec, 1\nglobal_atomic_add v11, v1, v10, s[60:61] offset:60 sc0 sc1\ns_waitcnt vmcnt(0)\ns_mov_b64 exec, -1")
        E("v_readfirstlane_b32 s40, v11\ns_cmp_lg_u32 s40, 1023\ns_cbranch_scc1 KF_end\nv_lshlrev_b32 v1, 5, v0")
        for k in range(16):
            E(f"global_load_dword v{32+k}, v1, s[82:83] offset:{4*ia} sc1\nglobal_load_dword v{48+k}, v1, s[82:83] offset:{4*ib} sc1\nv_add_u32 v1, 2048, v1")
        E("s_waitcnt vmcnt(0)")
        for k in range(1, 16): E(f"v_{opa}_u32 v32, v32, v{32+k}\nv_{opb}_u32 v48, v48, v{48+k}")
        E("s_nop 1\nv_readlane_b32 s40, v32, 0\nv_readlane_b32 s41, v48, 0")
        for l in range(1, 64): E(f"v_readlane_b32 s42, v32, {l}\nv_readlane_b32 s43, v48, {l}\ns_nop 0\ns_{opa}_u32 s40, s40, s42\ns_{opb}_u32 s41, s41, s43")
        E(f"s_sub_u32 s40, s41, s40\nv_mov_b32 v1, 0\nv_mov_b32 v10, s40\nglobal_store_dword v1, v10, s[60:61] offset:56\ns_memrealtime s[42:43]\ns_mul_i32 s40, s40, {mult}\ns_min_u32 s40, s40, 100000\ns_waitcnt lgkmcnt(0)")
        E("KF_spin:\ns_memrealtime s[44:45]\ns_waitcnt lgkmcnt(0)\ns_sub_u32 s44, s44, s42\ns_cmp_lt_u32 s44, s40\ns_cbranch_scc1 KF_spin")

def acc2(i, jt): return 32 + (i * 4 + jt) * 4
def acc1(i, jt): return ("v", 160 + (i * 4 + jt) * 4) if i < 6 else ("a", ((i - 6) * 4 + jt) * 4)
def accs(st, i, jt):
    if st >= ND: return vr(acc2(i, jt), 4)
    k, r = acc1(i, jt); return vr(r, 4, k)
def wf(st, jt, s): return A_WF + (st & 1) * 32 + (jt * 2 + s) * 4
def af(k, s): return A_AF + (k & 3) * 8 + s * 4
def dma2(st, va=V_A, vd=V_D):
    b = st % 3
    if st >= ND:
        c = st - ND
        sa, sw = f"s_add_u32 s{S_SA}, s{S_AC}, {((c&1)*128 + (c>>1)*8)*32768}", f"s_add_u32 s{S_SW}, s{S_WC}, {(c>>1)*128}"
        R, V = (RC1 if c & 1 else RC0), V_C
    else:
        oc, row = (28 * (st & 3) + 2 * (st >> 2), 224 * (st & 3) + 16 * (st >> 2)) if st < 12 else (56 * (st - 12), 448 * (st - 12))
        sa, sw = f"s_add_u32 s{S_SA}, s{S_AD}, {oc*32768}", f"s_add_u32 s{S_SW}, s{S_WD}, {row*2048}"
        R, V = RWD, vd
    w = [sw, f"s_add_u32 m0, s{S_MW2}, {b*16384}"] + [f"buffer_load_dwordx4 v{V+j}, s[{R}:{R+3}], s{S_SW} offen offset:{j*1024} lds @st{st}" for j in range(4)]
    a = [sa]
    for j in range(8):
        if j & 3 == 0: a.append(f"s_add_u32 m0, s{S_MA}, {b*32768 + (j>>2)*4096}")
        a.append(f"buffer_load_dwordx4 v{va + (j>>2)*2 + (j&1)}, s[{RWS}:{RWS+3}], s{S_SA} offen offset:{(j&3)*1024} lds @st{st}")
    return w, a
def plain(ops):
    return [x + ("\ns_nop 0" if " m0," in x else "") for x in ops]
def rd_a(st, i, k):
    b = st % 3
    return [(f"ds_read_b128 {ar(af(k,s),4)}, v{V_RA + (b==2)} offset:{(b&1)*32768 + s*16384 + i*256}", ("a", k & 3, s)) for s in (0, 1)]
def rd_w(st, jt):
    b = st % 3; out = []
    for s in (0, 1):
        r = wf(st, jt, s)
        if st >= ND: out.append((f"ds_read_b128 {ar(r,4)}, v{V_RC+s} offset:{b*16384 + jt*2048}", ("w2", st & 1, jt, s, 0)))
        else: out += [(f"ds_read_b64_tr_b16 {ar(r+2*h,2)}, v{V_RD+jt} offset:{b*16384 + s*8192 + h*1024}", ("w2", st & 1, jt, s, h)) for h in (0, 1)]
    return out
def group2(S, st, i, k):
    for jt in range(4):
        for n_, s in enumerate((1, 0) if SNAKE[0] and jt & 1 else (0, 1)):
            a = accs(st, i, jt)
            S.mfma(f"{MF} {a}, {ar(wf(st,jt,s),4)}, {ar(af(k,s),4)}, {'0' if st in (0, ND) and n_ == 0 else a}", [("a", k & 3, s), ("w2", st & 1, jt, s, 0), ("w2", st & 1, jt, s, 1)])

def epilogue1(E, cfg):
    LAM, L16, SA = 2, 4, 10
    re_ = lambda n: 32 + 2 * n
    im_ = lambda n: 64 + 2 * n
    unstash(E, LAM, A_LAM); unstash(E, L16, A_L16)
    E("v_and_b32 v25, 15, v0\nv_lshrrev_b32 v26, 4, v0")
    hr, hi = re_(0), im_(0)
    for n in range(1, 16):
        nr, ni = (6, 8) if n & 1 else (12, 14)
        E(pkf(nr, hr, LAM, re_(n), 0)); E(pkf(ni, hi, LAM, im_(n), 0))
        E(pkf(nr, hi, LAM, nr, 1, True)); E(pkf(ni, hr, LAM, ni, 1))
        hr, hi = nr, ni
    E(f"v_mov_b32 v{SA}, v{hr}\nv_mov_b32 v{SA+1}, v{hi}")
    cfma(E, 12, 13, L16, L16 + 1, hr, hi, hr + 1, hi + 1)
    E(f"s_lshl_b32 s{T0}, s{S_WM}, 10\ns_lshl_b32 s{T1}, s{S_WN}, 7\ns_add_u32 s{T0}, s{T0}, s{T1}\ns_add_u32 s{T0}, s{T0}, {SCR}")
    E(f"v_lshlrev_b32 v27, 8, v26\nv_lshl_add_u32 v27, v25, 3, v27\nv_add_u32 v27, s{T0}, v27\nds_write_b64 v27, v[12:13]")
    E(f"s_lshl_b32 s{T0}, s{S_MT}, 12\ns_lshl_b32 s{T1}, s{S_WM}, 11\ns_add_u32 s70, s{T0}, s{T1}\ns_add_u32 s70, s70, {ACT_OFF}")
    E(f"s_mul_i32 s{T0}, s{S_NT}, 14\ns_mul_i32 s{T1}, s{S_WN}, 7\ns_add_u32 s{T0}, s{T0}, s{T1}\ns_add_u32 s{T0}, s{T0}, 256\ns_lshl_b32 s{T0}, s{T0}, 15\ns_add_u32 s71, s70, s{T0}")
    E("v_lshrrev_b32 v28, 1, v26\nv_and_b32 v29, 1, v26\nv_lshlrev_b32 v1, 15, v28\nv_lshl_add_u32 v1, v29, 8, v1\nv_lshl_add_u32 v1, v25, 4, v1\nv_add_u32 v16, s71, v1")
    E(f"v_lshl_add_u32 v1, v29, 1, v28\nv_lshlrev_b32 v1, 8, v1\nv_lshl_add_u32 v1, v25, 4, v1\nv_add_u32 v1, s71, v1\nv_add_u32 v17, {6*32768}, v1")
    E(f"s_lshl_b32 s{T0}, s{S_NT}, 2\ns_lshl_b32 s{T1}, s{S_WN}, 1\ns_add_u32 s{T0}, s{T0}, s{T1}\ns_lshl_b32 s{T0}, s{T0}, 15\ns_add_u32 s72, s70, s{T0}")
    E("v_lshl_add_u32 v1, v28, 7, v29\nv_lshlrev_b32 v1, 15, v1\nv_lshl_add_u32 v1, v25, 4, v1\nv_add_u32 v18, s72, v1")
    E(f"v_mov_b32 v30, {hexf(-2*0.7978845608028654*LOG2E)}\nv_mov_b32 v31, {hexf(-2*0.7978845608028654*LOG2E*0.044715)}\nv_mov_b32 v19, s{S_TAG}")
    E(f"s_lshl_b32 s{T0}, s{S_NB}, 4\ns_lshl_b32 s{T1}, s{S_W}, 2\ns_add_u32 s{T0}, s{T0}, s{T1}\nv_and_b32 v27, 7, v0\nv_lshlrev_b32 v27, 9, v27\nv_add_u32 v24, s{T0}, v27")
    E("s_waitcnt lgkmcnt(0)\ns_barrier")
    E(f"s_cmp_eq_u32 s{S_MT}, 7\ns_cselect_b32 s73, 1, s{S_W}\ns_cmp_lg_u32 s73, 0\ns_cbranch_scc1 KF_nopub")
    E(f"v_and_b32 v1, 31, v0\nv_lshlrev_b32 v1, 3, v1\nv_add_u32 v27, {SCR}, v1")
    slot = [12, 14, 20, 22]
    E("ds_read_b64 v[6:7], v27")
    for s in range(1, 5): E(f"ds_read_b64 {vr(slot[s-1],2)}, v27 offset:{256*s}")
    unstash(E, 28, A_L32P)
    a, b = 6, 8
    for s in range(1, 8):
        E(f"s_waitcnt lgkmcnt({min(3, 7-s)})")
        cur = slot[(s - 1) & 3]
        cfma(E, b, b + 1, 28, 29, a, a + 1, cur, cur + 1); a, b = b, a
        if s + 4 < 8: E(f"ds_read_b64 {vr(cur,2)}, v27 offset:{256*(s+4)}")
    E(f"s_lshl_b32 s{T0}, s{S_MT}, 14\ns_lshl_b32 s{T1}, s{S_NT}, 9\ns_add_u32 s{T0}, s{T0}, s{T1}")
    E(f"v_mov_b32 v12, v{a}\nv_mov_b32 v13, s{S_TAG}\nv_mov_b32 v14, v{a+1}\nv_mov_b32 v15, s{S_TAG}\nv_lshlrev_b32 v1, 1, v1")
    E(f"buffer_store_dwordx4 v[12:15], v1, s[{RAGG}:{RAGG+3}], s{T0} offen sc1\ns_nop 1")
    E("KF_nopub:")
    pt(E, cfg, "pub")
    def setup2w():
        srd(E, RWD, 56, 3584 * 2048)
        E(f"s_mul_i32 s{S_WD}, s{S_KQ}, {896*2048}\ns_lshl_b32 s{S_MW2}, s{S_W}, 12\ns_add_u32 s{S_MW2}, s{S_MW2}, {WOFF}")
        E(f"v_lshlrev_b32 v1, 1, v26\nv_xor_b32 v1, v1, v25\nv_lshlrev_b32 v1, 4, v1\ns_mul_i32 s{T0}, s{S_W}, 56\nv_add_u32 v28, s{T0}, v26\nv_lshlrev_b32 v28, 11, v28")
        E(f"s_lshl_b32 s{T0}, s{S_NB}, 8\nv_add_u32 v28, s{T0}, v28\nv_add_u32 v{H_D}, v28, v1\nv_add_u32 v{H_D+1}, {4*2048 - 1024}, v{H_D}")
        E(f"v_xor_b32 v1, 128, v1\nv_add_u32 v{H_D+2}, v28, v1\nv_add_u32 v{H_D+2}, {8*2048 - 2048}, v{H_D+2}\nv_add_u32 v{H_D+3}, {4*2048 - 1024}, v{H_D+2}")
    def setup2():
        srd(E, RC0, 46, 1024 * 2048); srd(E, RC1, 48, 1024 * 2048)
        E(f"s_lshl_b32 s{S_AC}, s{S_KQ}, 20\ns_mul_i32 s{S_AD}, s{S_KQ}, {112*32768}\ns_add_u32 s{S_AD}, s{S_AD}, {256*32768}")
        E(f"s_lshl_b32 s{S_WC}, s{S_KQ}, 9")
        E(f"s_lshl_b32 s{S_MA}, s{S_W}, 13")
        E(f"s_sub_u32 s{S_RECV}, s{S_FILL}, 12288\ns_mul_i32 s{T1}, s{S_KQ}, 49152\ns_sub_u32 s{T0}, s{S_RECV}, s{T1}")
        for sp in range(3): E(f"s_xor_b32 s{T1}, s{S_KXR}, {sp}\ns_mul_i32 s{T1}, s{T1}, 49152\ns_add_u32 s{T1}, s{T1}, {(2-sp)*4096}\ns_add_u32 s{S_SEND+sp}, s{T0}, s{T1}")
        E(f"s_lshl_b32 s{T0}, s{S_MT}, 2\ns_add_u32 s{T0}, s{T0}, s{S_KQ}\ns_lshl_b32 s{T0}, s{T0}, 12\ns_add_u32 s{S_FGRP}, s{T0}, {FLG_OFF}")
        E(f"s_lshl_b32 s{T0}, s{S_NB}, 9\ns_add_u32 s{S_FOWN}, s{S_FGRP}, s{T0}")
        E(f"v_and_b32 v1, 3, v0\nv_min_u32 v1, 2, v1\nv_add_u32 v28, 1, v1\nv_xor_b32 v28, s{S_KQ}, v28\nv_subrev_u32 v28, s{S_KQ}, v28\nv_lshlrev_b32 v28, 12, v28\nv_lshl_add_u32 v28, v1, 4, v28")
        E(f"s_lshl_b32 s{T1}, s{S_W}, 2\ns_add_u32 s{T0}, s{T0}, s{T1}\ns_add_u32 s{T0}, s{T0}, 384\nv_add_u32 v28, s{T0}, v28\nv_and_b32 v1, 8, v0\nv_cmp_eq_u32 vcc, 0, v1")
        E(f"v_and_b32 v143, 31, v0\nv_lshlrev_b32 v143, 2, v143\nv_cndmask_b32 v28, v28, v24, vcc\nv_add_u32 v29, s{S_FGRP}, v28")
        E(f"s_lshl_b32 s{S_GSRC}, s{S_MT}, 11\ns_lshl_b32 s{T1}, s{S_WN}, 10\ns_add_u32 s{S_GSRC}, s{S_GSRC}, s{T1}\ns_add_u32 s{S_GSRC}, s{S_GSRC}, {G_OFF}\ns_add_u32 s{S_GLDS}, s{T1}, {GLDS}")
        E(f"s_lshl_b32 s{T0}, s{S_KXR}, 1\ns_and_b32 s{T1}, s{T0}, 2\ns_and_b32 s{T2}, s{T0}, 4")
        E(f"v_xor_b32 v1, s{T1}, v26\nv_lshlrev_b32 v1, 8, v1\nv_lshl_add_u32 v1, v25, 4, v1")
        E(f"s_mul_i32 s{T0}, s{S_W}, {7*32768}\ns_lshl_b32 s{T1}, s{S_MT}, 12\ns_add_u32 s{T0}, s{T0}, s{T1}\ns_add_u32 s{T0}, s{T0}, {ACT_OFF}\ns_lshl_b32 s{T2}, s{T2}, 8")
        E(f"s_add_u32 s{T1}, s{T0}, s{T2}\ns_sub_u32 s{T3}, s{T0}, s{T2}")
        E(f"v_add_u32 v{H_A}, s{T1}, v1\nv_add_u32 v{H_A+1}, s{T3}, v1\nv_add_u32 v{H_A+2}, 0x8000, v{H_A}\nv_add_u32 v{H_A+3}, 0x8000, v{H_A+1}")
    def store_quad(R, voff, soff, imm, tag):
        E(f"buffer_store_dwordx4 v[{R}:{R+3}], v{voff}, s[{RWS}:{RWS+3}], {soff} offen offset:{imm} {cfg.get('act_aux', 'sc1')} @{tag}")
    POLL = lambda off: f"buffer_load_dword v27, v143, s[{RWS}:{RWS+3}], s{S_FOWN} offen offset:{off} sc1"
    wq = [x for st in range(3) for x in plain(dma2(st, H_A, H_D)[0])]
    def some(q, n):
        while q and n:
            x = q.pop(0); E(x); n -= x.startswith("buffer")
    aq = [x for st in range(cfg.get('a_pre', 2)) for x in plain(dma2(st, H_A, H_D)[1])]
    setup2w()
    AG = 192
    agg = [f"buffer_load_dwordx4 v[{AG+4*k}:{AG+4*k+3}], v{136+k}, s[{RAGG}:{RAGG+3}], 0 offen sc1" for k in range(7)]
    for j in range(3):
        G = 96 + 64 * j; U = G + 32
        if j == 2:
            U = 96
            for r in range(32): E(f"v_accvgpr_read_b32 v{U+r}, a{r}")
        E(f"s_mov_b32 s74, {2*j*32768}")
        for i in range(0, 8, 2):
            R = G + 4 * i
            R_ = Rec(); gelu_quads(R_, [(G + 4 * i + 2 * k, U + 4 * i + 2 * k) for k in range(4)])
            for k, x in enumerate(R_.L):
                E(x)
                if k in ((5, 17, 29) if j == 0 else ()): some(wq, 1)
            for k in range(4): E(f"v_cvt_pk_bf16_f32 v{R+k}, v{U+4*i+2*k}, v{U+4*i+2*k+1}")
            E(f"s_nop 1\nv_permlane16_swap_b32 v{R}, v{R+2}\nv_permlane16_swap_b32 v{R+1}, v{R+3}")
            if j == 1 and i == cfg.get("f1_at", 2):
                pt(E, cfg, "f1pre")
                E(f"s_waitcnt vmcnt({E.vm('glu0')})")
                pt(E, cfg, "f1post")
                E(f"buffer_store_dword v19, v29, s[{RWS}:{RWS+3}], 0 offen sc1")
            if j == 2 and i == cfg.get("poll_at", 9): E(POLL(0) + " @poll")
            store_quad(R, 16, "s74", i * 256, f"glu{j}")
        if j == 0:
            pt(E, cfg, "p0"); setup2()
            for k in range(4): E(f"v_mov_b32 v{132+k}, v{H_D+k}")
            if cfg.get("ctouch", True): code_touch(E, "KF_k2")
        if j == 1: pt(E, cfg, "p1")
    pt(E, cfg, "glu")
    E(f"s_sub_u32 s{T0}, s{S_MT}, 7\ns_lshl_b32 s{T0}, s{T0}, 14\ns_lshl_b32 s{T1}, s{S_NT}, 9\ns_add_u32 s{T0}, s{T0}, s{T1}\ns_lshl_b32 s{T1}, s{S_WN}, 8\ns_add_u32 s{T0}, s{T0}, s{T1}")
    E(f"v_lshlrev_b32 v136, 4, v25\nv_add_u32 v136, s{T0}, v136")
    for k in range(1, 7): E(f"v_add_u32 v{136+k}, {0x4000*k}, v136")
    M = 96
    early = cfg.get("poll_at", 9) < 8
    def f1check(fill):
        E(f"s_waitcnt vmcnt({E.vm('poll')})\nv_cmp_ne_u32 vcc, s{S_TAG}, v27")
        fill()
        E(cold_poll("KF_f1", POLL(0), f"v_cmp_ne_u32 vcc, s{S_TAG}, v27"))
        pt(E, cfg, "f1ok")
    first6 = lambda: [E(f"v_accvgpr_read_b32 v{M+r}, a{32+r}") for r in range(6)]
    if early: f1check(first6)
    else: E(POLL(0) + " @poll"); first6()
    B = Rec()
    for r in range(6, 32): B(f"v_accvgpr_read_b32 v{M+r}, a{32+r}")
    for i in range(0, 8, 2):
        for r in range(4): B(f"v_permlane32_swap_b32 v{M+4*i+r}, v{M+4*i+4+r}")
    for i in (0, 4):
        R = M + 4 * i
        q = [(M + 4 * ii + 2 * k, M + 4 * ii + 4 + 2 * k) for ii in (i, i + 2) for k in (0, 1)]
        gelu_quads(B, q)
        for k in range(4): B(f"v_cvt_pk_bf16_f32 v{R+k}, v{q[k][1]}, v{q[k][1]+1}")
        B(f"s_nop 1\nv_permlane16_swap_b32 v{R}, v{R+2}\nv_permlane16_swap_b32 v{R+1}, v{R+3}\n@st{i}")
    aggq = list(agg)
    for k, x in enumerate(B.L):
        if k % cfg.get("m_step", 9 if early else 4) == 0:
            if aggq and (k // cfg.get("m_step", 9 if early else 4)) % 2: E(aggq.pop(0) + " @agg")
            elif early: some(aq, 1)
        if x.startswith("@st"): store_quad(M + 4 * int(x[3:]), 17, "0", int(x[3:]) * 256, "glu3")
        else: E(x)
    for x in aggq: E(x + " @agg")
    pt(E, cfg, "mix")
    SG = 144
    def sgreads():
        E(f"s_lshl_b32 s{T1}, s{S_WN}, 7\ns_add_u32 s{T1}, s{T1}, {SCR}\nv_lshlrev_b32 v1, 3, v25\nv_add_u32 v1, s{T1}, v1")
        for s in range(7): E(f"ds_read_b64 v[{SG+2*s}:{SG+2*s+1}], v1 offset:{256*s}")
    if early: sgreads()
    else: f1check(sgreads)
    B = Rec()
    unstash(B, 20, A_L256); unstash(B, 22, A_L32)
    B(f"s_lshl_b32 s{T1}, s{S_WM}, 2\nv_add_u32 v28, s{T1}, v26")
    B(f"s_mul_i32 s{T1}, s{S_W}, 3072\ns_add_u32 s{T1}, s{T1}, {TRS}\nv_lshlrev_b32 v27, 7, v26\nv_lshl_add_u32 v27, v25, 3, v27\nv_add_u32 v14, s{T1}, v27")
    B("v_lshrrev_b32 v27, 5, v0\nv_lshlrev_b32 v27, 9, v27\nv_and_b32 v29, 3, v0\nv_lshl_add_u32 v27, v29, 7, v27")
    B(f"v_and_b32 v29, 1, v26\nv_lshl_add_u32 v27, v29, 6, v27\nv_bfe_u32 v29, v0, 2, 2\nv_lshl_add_u32 v27, v29, 3, v27\nv_add_u32 v15, s{T1}, v27")
    chk = "v_mov_b32 v164, 0\n" + "\n".join(f"s_cmp_gt_u32 s{S_MT}, {6-k}|s_cselect_b32 s{T3}, -1, 0\nv_xor_b32 v165, s{S_TAG}, v{AG+4*k+1}\nv_xor_b32 v166, s{S_TAG}, v{AG+4*k+3}\n"
          f"v_or_b32 v165, v165, v166\nv_and_or_b32 v164, v165, s{T3}, v164" for k in range(7)) + "\nv_cmp_ne_u32 vcc, 0, v164"
    B("@agg\n" + chk + "\ns_nop 3")
    B(cold_poll("KF_ag", "\n".join(agg), chk.replace("|", "\n")).replace("\n", "|"))
    B("s_waitcnt lgkmcnt(0)")
    srd(B, ROUT, 96, 2048 * 4096)
    B(f"v_mov_b32 v8, v{AG}\nv_mov_b32 v9, v{AG+2}")
    a, b = 8, 6
    for k in range(1, 7):
        cfma(B, b, b + 1, 20, 21, a, a + 1, AG + 4 * k, AG + 4 * k + 2); a, b = b, a
    CR, CI = 160, 162
    B(f"v_mov_b32 v{CR}, v{a}\nv_mov_b32 v{CI}, v{a+1}")
    for s in range(7):
        B(f"v_cmp_lt_u32 vcc, {s}, v28")
        cfma(B, b, b + 1, 22, 23, a, a + 1, SG + 2 * s, SG + 2 * s + 1); a, b = b, a
        B(f"v_cndmask_b32 v{CR}, v{CR}, v{a}, vcc\nv_cndmask_b32 v{CI}, v{CI}, v{a+1}, vcc")
    cfma(B, CR + 1, CI + 1, L16, L16 + 1, CR, CI, SA, SA + 1)
    unstash(B, 20, A_C2)
    B("@f2")
    hr, hi = CR, CI
    for n in range(16):
        B(pkf(re_(n), hr, LAM, re_(n), 0)); B(pkf(im_(n), hi, LAM, im_(n), 0))
        B(pkf(re_(n), hi, LAM, re_(n), 1, True)); B(pkf(im_(n), hr, LAM, im_(n), 1))
        hr, hi = re_(n), im_(n)
    step = cfg.get("a_step", 12)
    for k, x in enumerate(B.L):
        if k % step == 0: some(aq, 1)
        if x == "@agg": E(f"s_waitcnt vmcnt({E.vm('agg')})")
        elif x == "@f2": E(f"s_waitcnt vmcnt({E.vm('glu3')})\nbuffer_store_dword v19, v24, s[{RWS}:{RWS+3}], s{S_FGRP} offen offset:128 sc1")
        else: E(x.replace("|", "\n"))
    some(aq, 99)
    assert not aq and not wq
    pt(E, cfg, "f2")
    def trd(i):
        R = 192 + 4 * i
        E(f"ds_read_b64_tr_b16 v[{R}:{R+1}], v15 offset:{(i%3)*1024}\nds_read_b64_tr_b16 v[{R+2}:{R+3}], v15 offset:{(i%3)*1024+32}")
    for i in range(10):
        if i < 8:
            T = 96 + 8 * (i & 1); R = 224 + 4 * i
            for k in (0, 1):
                n = 2 * i + k
                E(pkm(T + 4 * k, re_(n), 20, 0)); E(pkm(T + 4 * k + 2, im_(n), 20, 0, True))
                E(pkf(T + 4 * k, im_(n), 20, T + 4 * k, 1, True)); E(pkf(T + 4 * k + 2, re_(n), 20, T + 4 * k + 2, 1, True))
            for k in (0, 1):
                E(f"v_cvt_pk_bf16_f32 v{R+k}, v{T+4*k}, v{T+4*k+1}\nv_cvt_pk_bf16_f32 v{R+2+k}, v{T+4*k+2}, v{T+4*k+3}")
        if i == 8: setup2b(E)
        if i >= 2:
            E(f"s_waitcnt lgkmcnt({4 if i < 9 else 0})")
            store_quad(192 + 4 * (i - 2), 18 if i < 8 else Q_ST, "0", (i - 2) * 256, "h")
        if i < 8:
            E(f"ds_write_b64 v14, v[{R}:{R+1}] offset:{(i%3)*1024}\nds_write_b64 v14, v[{R+2}:{R+3}] offset:{(i%3)*1024+512}")
            trd(i)
    pt(E, cfg, "e1end")

def code_touch(E, label, n=[0]):
    n[0] += 1
    R = Rec()
    R(f"s_getpc_b64 s[76:77]\nKF_ct{n[0]}:\ns_add_u32 s76, s76, {label}-KF_ct{n[0]}")
    out = ["\n".join(R.L), "s_addc_u32 s77, s77, 0", f"s_lshl_b32 s78, s{S_W}, 4", "v_and_b32 v1, 15, v0", "v_add_lshl_u32 v1, v1, s78, 7", f"v_min_u32 v1, KF_last-({label}), v1", "global_load_dword a255, v1, s[76:77]"]
    if E is None: return out
    for x in out: E(x)

Q_ST, Q_TAG, Q_FLG = 136, 137, 138
def setup2b(E):
    for d, v in ((Q_ST, 18), (Q_TAG, 19), (Q_FLG, 24)): E(f"v_mov_b32 v{d}, v{v}")
    for k in range(4): E(f"v_mov_b32 v{V_A+k}, v{H_A+k}\nv_mov_b32 v{V_D+k}, v{132+k}")
    E("v_mov_b32 v30, v26\nv_mov_b32 v31, v25\nv_mov_b32 v27, v143\nv_lshlrev_b32 v22, 4, v0")
    E(f"s_lshl_b32 s{T0}, s{S_WM}, 11\nv_lshlrev_b32 v1, 12, v30\nv_lshl_add_u32 v1, v31, 4, v1\nv_add_u32 v{V_RA}, s{T0}, v1\nv_add_u32 v{V_RA+1}, 0x10000, v{V_RA}")
    E("v_bfe_u32 v1, v0, 2, 2\nv_lshl_add_u32 v28, v30, 3, v1\nv_lshlrev_b32 v28, 8, v28\nv_and_b32 v29, 1, v0\nv_lshl_add_u32 v28, v29, 3, v28")
    E(f"v_add_u32 v28, {WOFF}, v28\nv_and_b32 v29, 1, v30\nv_lshl_add_u32 v1, v29, 2, v1\nv_lshlrev_b32 v1, 1, v1")
    E(f"v_bfe_u32 v29, v0, 1, 1\ns_lshl_b32 s{T0}, s{S_WN}, 3\nv_add_u32 v29, s{T0}, v29\nv_xor_b32 v1, v1, v29")
    for jt in range(4): E(f"v_xor_b32 v29, {2*jt}, v1\nv_lshl_add_u32 v{V_RD+jt}, v29, 4, v28")

def later_setup():
    E = Rec()
    E("v_lshrrev_b32 v28, 3, v0\nv_and_b32 v29, 7, v0\nv_lshrrev_b32 v1, 1, v28\nv_xor_b32 v29, v29, v1\nv_lshlrev_b32 v29, 4, v29")
    E(f"s_lshl_b32 s{T0}, s{S_NB}, 7\ns_lshl_b32 s{T1}, s{S_W}, 5\ns_add_u32 s{T0}, s{T0}, s{T1}\nv_add_u32 v28, s{T0}, v28\nv_lshlrev_b32 v28, 11, v28")
    E(f"v_add_u32 v{V_C}, v28, v29\nv_xor_b32 v29, 64, v29\nv_add_u32 v{V_C+1}, v28, v29\nv_add_u32 v{V_C+1}, {8*2048 - 1024}, v{V_C+1}")
    E(f"v_add_u32 v{V_C+2}, {16*2048 - 2048}, v{V_C}\nv_add_u32 v{V_C+3}, {16*2048 - 2048}, v{V_C+1}")
    E(f"v_lshrrev_b32 v1, 1, v31\nv_xor_b32 v1, v1, v30\nv_lshlrev_b32 v1, 4, v1\nv_lshl_add_u32 v1, v31, 7, v1\ns_lshl_b32 s{T0}, s{S_WN}, 13\ns_add_u32 s{T0}, s{T0}, {WOFF}")
    E(f"v_add_u32 v{V_RC}, s{T0}, v1\nv_xor_b32 v{V_RC+1}, 64, v{V_RC}")
    E("v_lshrrev_b32 v1, 2, v31\nv_lshlrev_b32 v1, 5, v1\nv_and_b32 v28, 1, v31\nv_lshl_add_u32 v1, v28, 4, v1\nv_bfe_u32 v28, v31, 1, 1\nv_add_u32 v1, v1, v28")
    E(f"s_lshl_b32 s{T0}, s{S_MT}, 8\ns_lshl_b32 s{T1}, s{S_WM}, 7\ns_add_u32 s{T0}, s{T0}, s{T1}\ns_lshl_b32 s{T1}, s{S_KQ}, 2\ns_add_u32 s{T0}, s{T0}, s{T1}\nv_add_u32 v1, s{T0}, v1")
    E(f"s_lshl_b32 s{T0}, s{S_NB}, 7\ns_lshl_b32 s{T1}, s{S_WN}, 6\ns_add_u32 s{T0}, s{T0}, s{T1}\nv_lshl_add_u32 v28, v30, 2, s{T0}")
    E("v_accvgpr_write_b32 a169, v28\nv_lshl_add_u32 v1, v1, 10, v28\nv_accvgpr_write_b32 a168, v1")
    E(f"s_lshl_b32 s{T0}, s{S_WM}, 10\ns_add_u32 s{T0}, s{T0}, {GLDS}\nv_lshlrev_b32 v23, 3, v31\nv_add_u32 v23, s{T0}, v23\ns_lshl_b32 s{T1}, s{S_KXR}, 8\nv_xor_b32 v23, s{T1}, v23")
    for k in range(1, 4): E(f"v_xor_b32 v{23+k}, {256*k}, v23")
    E("v_min_u32 v27, 43, v0\nv_lshlrev_b32 v27, 2, v27")
    return E.L

def gemm2(E, cfg):
    E.age = cfg.get("age", 6)
    every = cfg.get("dma2_every", 4)
    F2POLL = f"buffer_load_dword v29, v27, s[{RWS}:{RWS+3}], s{S_FOWN} offen offset:128 sc1"
    E(f"s_waitcnt vmcnt({E.vm('st0')})\ns_barrier")
    E("KF_k2:")
    pt(E, cfg, "k2start")
    segstamp_init(E, cfg, 1, S_W)
    def add_dma(S, st, end=58):
        w, a = dma2(st); prev = ""
        for t in w + a:
            S.add(t, 0, end, "dma", 1 if (not t.startswith("buffer") or " m0," in prev) else every); prev = t
    for it in rd_a(0, 0, 0) + rd_w(0, 0) + rd_w(0, 1) + rd_a(0, 1, 1) + rd_w(0, 2) + rd_w(0, 3) + rd_a(0, 2, 2): E.ds(*it)
    S = Stream()
    for i in range(5): group2(S, 0, i, i)
    for i in range(3, 8):
        for it in rd_a(0, i, i): S.ds(*it, 8 * (i - 3), min(8 * i, 40) - LAT)
    prev = ""
    for st in range(cfg.get("a_pre", 2), 3):
        for t in dma2(st)[1]: S.add(t, 0, 36, "dma", 1 if (not t.startswith("buffer") or " m0," in prev) else 4); prev = t
    S.add(F2POLL + " @f2", 24, 39, "dma", 2)
    S.emit(E)
    scale = []
    for i in range(8): scale += [f"v_accvgpr_read_b32 v{V_G+i}, a{A_G+2*i}", f"v_and_b32 v{V_G+i}, 0xffff0000, v{V_G+i}"]
    for i in range(8):
        for jt in range(4):
            k, r = acc1(i, jt)
            for e in range(4):
                if k == "v": scale.append(f"v_mul_f32 v{r+e}, v{V_G+i}, v{r+e}")
                else: scale += [f"v_accvgpr_read_b32 v30, a{r+e}", f"v_mul_f32 v30, v{V_G+i}, v30", f"v_accvgpr_write_b32 a{r+e}, v30"]
    F3POLL = f"buffer_load_dword v28, v27, s[{RWS}:{RWS+3}], s{S_FOWN} offen offset:256 sc1"
    gtest = ["v_mov_b32 v1, 0"] + [x for i in range(8) for x in (f"v_accvgpr_read_b32 v30, a{A_G+2*i+1}", f"v_xor_b32 v30, s{S_TAG}, v30", "v_or_b32 v1, v1, v30")] + ["v_cmp_ne_u32 vcc, 0, v1"]
    greload = f"s_lshl_b32 s{T3}, s{S_MT}, 11\ns_add_u32 s{T3}, s{T3}, {G_OFF - GLDS}\n" + "\n".join(
        f"buffer_load_dwordx2 {ar(A_G+2*i,2)}, v{23+(i>>1)}, s[{RWS}:{RWS+3}], s{T3} offen offset:{(i&1)*128} sc1" for i in range(8))
    ls = later_setup()
    per = -(-len(scale) // 6)
    for st in range(1, NST - 2):
        S = Stream()
        for k, (s_, i) in enumerate([(st - 1, 5), (st - 1, 6), (st - 1, 7)] + [(st, i) for i in range(5)]): group2(S, s_, i, i)
        for jt in range(4):
            for it in rd_w(st, jt): S.ds(*it, 0, 24 + 2 * jt - LAT)
        for i in range(8):
            for it in rd_a(st, i, i): S.ds(*it, 8 * i, min(24 + 8 * i, 64) - LAT)
        if st == 2:
            S.at(0, lambda E: E(f"s_waitcnt vmcnt({E.vm('f2')})\nv_cmp_ne_u32 vcc, s{S_TAG}, v29"))
            S.at(2, cold_poll("KF_f2", F2POLL, f"v_cmp_ne_u32 vcc, s{S_TAG}, v29"))
            S.add("s_nop 0", 3, 58, "dma", 1)
        if st == 10:
            for t in lines([f"s_mul_i32 s{T0}, s{S_W}, {7*32768}\ns_add_u32 s{T0}, s{T0}, {6*32768}\ns_mul_i32 s{T1}, s{S_W}, {56*2048}\ns_add_u32 s{T1}, s{T1}, {48*2048}\ns_add_u32 s{T3}, s{T1}, {48*2048}",
                            f"v_add_u32 v{V_D}, s{T1}, v{V_D}\nv_add_u32 v{V_D+1}, s{T1}, v{V_D+1}\nv_add_u32 v{V_D+2}, s{T3}, v{V_D+2}\nv_add_u32 v{V_D+3}, s{T3}, v{V_D+3}",
                            f"v_add_u32 v{V_A}, s{T0}, v{V_A}\nv_add_u32 v{V_A+1}, s{T0}, v{V_A+1}\nv_add_u32 v{V_A+2}, {7*32768}, v{V_A}\nv_add_u32 v{V_A+3}, {7*32768}, v{V_A+1}"]): S.add(t, 0, 58, "dma", 0)
        if st == 12:
            for t in lines([f"s_mul_i32 s{T0}, s{S_W}, {12*32768}\ns_add_u32 s{T0}, s{T0}, {6*32768}",
                            f"v_subrev_u32 v{V_A}, s{T0}, v{V_A}\nv_subrev_u32 v{V_A+1}, s{T0}, v{V_A+1}\nv_add_u32 v{V_A+2}, 0x8000, v{V_A}\nv_add_u32 v{V_A+3}, 0x8000, v{V_A+1}"]): S.add(t, 0, 58, "dma", 0)
        add_dma(S, st + 2, 60 if st < NST - 3 else 44)
        if st == 3: S.add(f"buffer_store_dword v{Q_TAG}, v{Q_FLG}, s[{RWS}:{RWS+3}], s{S_FGRP} offen offset:256 sc1", 0, 63, "dma", 2)
        if st in (3, 4):
            for t in (ls[:len(ls)//2] if st == 3 else ls[len(ls)//2:]): S.add(t, 0, 63, "extra", 0)
        if st == 5: S.add(f"s_mov_b32 m0, s{S_GLDS}", 0, 62, "dma", 1); S.add(f"buffer_load_dwordx4 v22, s[{RWS}:{RWS+3}], s{S_GSRC} offen sc1 lds", 0, 63, "dma", 1)
        if st == 7: S.add(F3POLL, 0, 63, "dma", 2)
        if st == 8:
            for i in range(8): S.ds(f"ds_read_b64 {ar(A_G+2*i,2)}, v{23 + (i>>1)} offset:{(i&1)*128}", ("g", i), 24, 56)
        if st == 9:
            for t in gtest: S.add(t, 0, 58, "extra", 0)
            S.add(cold_poll("KF_g", greload, "\n".join(gtest)), 0, 63, "extra", 3)
        if st == 11:
            S.add(f"v_cmp_ne_u32 vcc, s{S_TAG}, v28", 30, 50, "extra", 0)
            S.add(cold_poll("KF_f3", F3POLL, f"v_cmp_ne_u32 vcc, s{S_TAG}, v28"), 0, 63, "extra", 3)
        if st in (1, 6, 13) and cfg.get("ctouch", True):
            for t in code_touch(None, f"KF_k2+{8192 * (1 + (1, 6, 13).index(st))}"): S.add(t, 0, 63, "dma", 1 if t.startswith("global") else 0)
        if st >= ND:
            for t in scale[:per]: S.add(t, 30 if st == ND else 0, 63, "extra", 0)
            scale = scale[per:]
        E.drain(f"vmcnt({E.vm('st%d' % st)})"); E("s_barrier")
        segstamp(E, cfg, RWS)
        S.emit(E)
    assert not scale, len(scale)
    a_, b_ = NST - 2, NST - 1
    order = [(a_ - 1, 5), (a_ - 1, 6), (a_ - 1, 7)] + [(s_, 2 * p + ii) for p in range(4) for s_ in (a_, b_) for ii in (0, 1)]
    S = Stream()
    for k, (s_, i) in enumerate(order): group2(S, s_, i, k + 5)
    B21 = cfg.get("b21", 20)
    S.at(B21, lambda E: E(f"s_waitcnt vmcnt({E.vm('st%d' % b_)})\ns_barrier"))
    for jt in range(4):
        for it in rd_w(a_, jt): S.ds(*it, 0, 24 + 2 * jt - LAT)
        for it in rd_w(b_, jt): S.ds(*it, max(24, B21 + 1), 40 + 2 * jt - LAT)
    for k, (s_, i) in enumerate(order):
        if k >= 3:
            for it in rd_a(s_, i, k + 5): S.ds(*it, max(8 * (k - 3), B21 + 1 if s_ == b_ else 0), 8 * k - LAT)
    for i in range(8):
        for t in (f"v_accvgpr_read_b32 v{2+i}, a{A_G+2*i}", f"v_lshlrev_b32 v{2+i}, 16, v{2+i}"): S.add(t, 0, 50, "send", 0)
    for t in ("v_lshlrev_b32 v10, 4, v0", f"s_add_u32 s70, s{S_RECV}, 4096", f"s_add_u32 s71, s{S_RECV}, 8192"): S.add(t, 0, 50, "send", 0)
    for t in lines(["v_accvgpr_read_b32 v29, a168\nv_accvgpr_read_b32 v13, a169\nv_lshlrev_b32 v11, 1, v29\nv_add_u32 v12, 0x1000, v11\nv_lshlrev_b32 v13, 1, v13\nv_lshlrev_b32 v29, 2, v29"]): S.add(t, 0, 30, "xl", 0)
    for ii in (0, 1):
        for jt in range(4): S.add(f"buffer_load_dwordx2 {ar(A_X+(ii*4+jt)*2,2)}, v{11+ii}, s[{RX}:{RX+3}], 0 offen offset:{jt*32} @x", B21 + 1, 54, "xl", 2)
    for jt in range(4): S.add(f"global_load_dwordx2 {ar(A_DS+jt*2,2)}, v13, s[80:81] offset:{jt*32} @x", B21 + 1, 54, "xl", 2)
    done = {i: 8 * k for k, (s_, i) in enumerate(order) if s_ == b_}
    for i in range(6):
        for a in (0, 1):
            R = acc1(i, 2 * a)[1]; t0 = done[i] + 4 * a + 6
            for jt in (2 * a, 2 * a + 1):
                d = acc2(i, jt); c = acc1(i, jt)[1]
                for e in range(4): S.add(f"v_fma_f32 v{d+e}, v{d+e}, v{2+i}, v{c+e}", t0, t0 + 16, "send", 0)
            for k in range(4):
                d = acc2(i, 2 * a + (k >> 1)) + 2 * (k & 1)
                S.add(f"v_cvt_pk_bf16_f32 v{R+k}, v{d}, v{d+1}", t0, t0 + 16, "send", 0)
            if cfg.get("recv", 3) == 3 and i >= 4:
                for x in rl(2 - (i & 1))[2*a:2*a+2]: S.add(x + f" @r{2 - (i & 1)}", t0, t0 + 16, "send", 0)
            S.add(f"buffer_store_dwordx4 {vr(R,4)}, v10, s[{RWS}:{RWS+3}], s{S_SEND+(i>>1)} offen offset:{((i&1)*2+a)*1024} sc1 @send", t0, t0 + 16, "send", 0)
    E.drain(f"vmcnt({E.vm('st%d' % a_)})"); E("s_barrier")
    segstamp(E, cfg, RWS)
    for x in S.emit(E, True): put(E, x)
    E.drain()
    pt(E, cfg, "loop2")
    epilogue2(E, cfg)

RV = lambda k, u: 32 + ((2 - k) * 4 + u) * 4
rl = lambda k: [f"buffer_load_dwordx4 {vr(RV(k,u),4)}, v10, s[{RWS}:{RWS+3}], s{(S_RECV, 70, 71)[k]} offen offset:{u*1024} sc1" for u in range(4)]
def epilogue2(E, cfg):
    P = lambda r: vr(r, 2)
    mode = cfg.get("recv", 3)
    if mode == 0:
        for k in (2, 1):
            for x in rl(k): E(x + f" @r{k}")
    if mode == 3:
        for x in rl(0): E(x + " @r0")
    for r in range(32): E(f"v_accvgpr_read_b32 v{96+r}, a{r}")
    for i in (6, 7):
        for jt in range(4):
            d = acc2(i, jt); c = 96 + ((i - 6) * 4 + jt) * 4
            for h in (0, 2): E(f"v_pk_fma_f32 {P(d+h)}, {P(d+h)}, v[8:9], {P(c+h)} op_sel:[0,{i&1},0] op_sel_hi:[1,{i&1},1]")
    if mode == 0:
        for x in rl(0): E(x + " @r0")
    E(f"s_waitcnt vmcnt({E.vm('x')})")
    pt(E, cfg, "x")
    for jt in range(4):
        E(f"v_accvgpr_read_b32 v30, a{A_DS+2*jt}\nv_accvgpr_read_b32 v31, a{A_DS+2*jt+1}")
        E("v_lshlrev_b32 v96, 16, v30\nv_and_b32 v97, 0xffff0000, v30\nv_lshlrev_b32 v98, 16, v31\nv_and_b32 v99, 0xffff0000, v31")
        for ii in (0, 1):
            x = A_X + (ii * 4 + jt) * 2; d = acc2(6 + ii, jt)
            E(f"v_accvgpr_read_b32 v30, a{x}\nv_accvgpr_read_b32 v31, a{x+1}")
            E("v_lshlrev_b32 v100, 16, v30\nv_and_b32 v101, 0xffff0000, v30\nv_lshlrev_b32 v102, 16, v31\nv_and_b32 v103, 0xffff0000, v31")
            E("v_pk_mul_f32 v[100:101], v[100:101], v[96:97]\nv_pk_mul_f32 v[102:103], v[102:103], v[98:99]")
            E("v_cvt_pk_bf16_f32 v30, v100, v101\nv_cvt_pk_bf16_f32 v31, v102, v103")
            E("v_lshlrev_b32 v100, 16, v30\nv_and_b32 v101, 0xffff0000, v30\nv_lshlrev_b32 v102, 16, v31\nv_and_b32 v103, 0xffff0000, v31")
            for h in (0, 2): E(f"v_pk_fma_f32 {P(d+h)}, {P(100+h)}, v[8:9], {P(d+h)} op_sel:[0,{ii},0] op_sel_hi:[1,{ii},1]")
    pt(E, cfg, "skip")
    if mode == 1:
        for k in (2, 1, 0):
            for x in rl(k): E(x + f" @r{k}")
    if mode == 2 or cfg.get("ackstamp"):
        E(f"s_waitcnt vmcnt({E.vm('send')})")
        pt(E, cfg, "ack")
    if mode == 2:
        for k in (2, 1, 0):
            for x in rl(k): E(x + f" @r{k}")
    E(f"s_movk_i32 s{T3}, 0x2000")
    if cfg.get("wide_out"):
        E(f"v_and_b32 v30, 8, v0\nv_mul_u32_u24 v31, {8*4096 - 8}, v30\nv_sub_u32 v28, v29, v31\nv_add_u32 v27, {64*4096}, v28")
    for k in (2, 1, 0):
        r = RV(k, 0)
        chk = f"v_max3_u32 v30, v{r}, v{r+1}, v{r+2}\nv_max3_u32 v31, v{r+3}, v{r+4}, v{r+5}\n"
        for e in range(6, 14, 4): chk += f"v_max3_u32 v30, v30, v{r+e}, v{r+e+1}\nv_max3_u32 v31, v31, v{r+e+2}, v{r+e+3}\n"
        chk += f"v_max3_u32 v30, v30, v{r+14}, v{r+15}\nv_max_u32 v30, v30, v31\nv_cmp_eq_u32 vcc, -1, v30"
        E(f"s_waitcnt vmcnt({E.vm('r%d' % k)})\n{chk}\ns_nop 3")
        E(cold_poll(f"KF_r{k}", "\n".join(rl(k)), chk))
        pt(E, cfg, f"r{k}")
        for u in range(4):
            for j2 in (0, 1):
                jt = 2 * (u & 1) + j2; d = acc2(6 + (u >> 1), jt); t = 96 + 4 * ((2 * u + j2) & 1)
                for h in (0, 1):
                    q = RV(k, u) + 2 * j2 + h
                    E(f"v_lshlrev_b32 v{t+2*h}, 16, v{q}\nv_and_b32 v{t+2*h+1}, 0xffff0000, v{q}")
                for h in (0, 2): E(f"v_pk_add_f32 {P(d+h)}, {P(d+h)}, {P(t+h)}")
                if k == 0 and cfg.get("wide_out"):
                    if j2 == 1:
                        x_, y_ = d - 4, d
                        for e in range(4): E(f"v_mov_b32 v{104+e}, v{x_+e}")
                        for e in range(4): E(f"v_mov_b32_dpp v{x_+e}, v{y_+e} row_ror:8 row_mask:0xf bank_mask:0xc")
                        for e in range(4): E(f"v_mov_b32_dpp v{y_+e}, v{104+e} row_ror:8 row_mask:0xf bank_mask:0x3")
                        for h, r_ in enumerate((x_, y_)):
                            E(f"buffer_store_dwordx4 {vr(r_,4)}, v{28-h}, s[{ROUT}:{ROUT+3}], {'s%d' % T3 if u >> 1 else '0'} offen offset:{(u&1)*128} {cfg.get('out_aux','sc1')}")
                elif k == 0: E(f"buffer_store_dwordx4 {vr(d,4)}, v29, s[{ROUT}:{ROUT+3}], {'s%d' % T3 if u >> 1 else '0'} offen offset:{jt*64} {cfg.get('out_aux','sc1')}")

def build(cfg=None):
    t, e = gen(cfg)
    assert not e, e[:10]
    REF = open("gated_mix__ssm_conv_s5__glu_gated_geglu__prompt.s.ref").read().split("\n")
    head = [l for l in REF if l.startswith(";") and "@launch" not in l and "Override" not in l and "grid=ceil" not in l][:18]
    ln = f"; @launch kernel={NAME} grid=(256,1,1) block=(256,1,1) lds={LDS}" if (cfg or {}).get("aslist", True) else f"; @launch grid=(256,1,1) block=(256,1,1) lds={LDS}"
    return "\n".join(head) + "\n" + ln + '\n.amdgcn_target "amdgcn-amd-amdhsa--gfx950"\n.text\n.p2align 12\n' + t + '.section .rodata,"a"\n.p2align 6\n' + kernel_desc(NAME, sgpr=102) + "\n"

if __name__ == "__main__":
    import sys, json
    cfg = json.loads(sys.argv[2]) if len(sys.argv) > 2 else {}
    s = build(cfg); open(sys.argv[1], "w").write(s); print("wrote", sys.argv[1], s.count("\n"), "lines")
```
